```python
import torch

def _softmax(x, axis=-1):
    return torch.softmax(x, dim=axis)
def _gelu(x):
    return torch.nn.functional.gelu(x, approximate="tanh")
def _silu(x):
    return torch.nn.functional.silu(x)
def _sigmoid(x):
    return torch.sigmoid(x)
def _layernorm(x, axis=-1, eps=1e-5):
    m = x.mean(dim=axis, keepdim=True)
    v = x.var(dim=axis, keepdim=True, unbiased=False)
    return (x - m) / torch.sqrt(v + eps)
def _scatter_add(tgt, idx, src, axis=0):
    return tgt.clone().index_add_(axis, idx, src)
def _segment_sum(src, seg, n):
    out = torch.zeros((n,) + src.shape[1:], dtype=src.dtype)
    return out.index_add_(0, seg, src)
def _pad(x, pw):
    flat = tuple(v for pair in reversed(pw) for v in pair)
    return torch.nn.functional.pad(x, flat)

kernel_name = 'gated_mix__ssm_conv_s5__dense_activation_relu__prompt'

def setup_inputs():

    _w = (lambda a: (lambda t: t.to(torch.bfloat16) if t.is_floating_point() else t)(torch.as_tensor(a)))
    def _A_setup():
        B, S, D = 1, 2048, 640
        P = D
        Lambda_re = -0.5 * (lambda _x: torch.exp(torch.as_tensor(_x)))((lambda *s: torch.randn(*s, dtype=torch.bfloat16) * 0.8)(P))
        Lambda_im = (lambda *s: torch.randn(*s, dtype=torch.bfloat16) * 0.8)(P) * 1.0
        B_re = (lambda *s: torch.randn(*s, dtype=torch.bfloat16) * 0.8)(P, D) * (D ** -0.5)
        B_im = (lambda *s: torch.randn(*s, dtype=torch.bfloat16) * 0.8)(P, D) * (D ** -0.5)
        C_re = (lambda *s: torch.randn(*s, dtype=torch.bfloat16) * 0.8)(D, P) * (P ** -0.5)
        C_im = (lambda *s: torch.randn(*s, dtype=torch.bfloat16) * 0.8)(D, P) * (P ** -0.5)
        log_dt = (lambda *s: torch.randn(*s, dtype=torch.bfloat16) * 0.8)(P) * 0.3 - 2.0
        Dskip = (lambda *s: torch.randn(*s, dtype=torch.bfloat16) * 0.8)(D)
        return {
            "x": _w((lambda *s: torch.randn(*s, dtype=torch.bfloat16) * 0.05)(B, S, D)),
            "Lambda_re": _w(Lambda_re),
            "Lambda_im": _w(Lambda_im),
            "B_re": _w(B_re),
            "B_im": _w(B_im),
            "C_re": _w(C_re),
            "C_im": _w(C_im),
            "log_dt": _w(log_dt),
            "Dskip": _w(Dskip),
        }
    _A_in = _A_setup()

    def _B_setup():
        B, S, D, Dff = 1, 2048, 640, 1536
        return {
            "x": _w((lambda *s: torch.randn(*s, dtype=torch.bfloat16) * 0.05)(B, S, D)),
            "w1": _w((lambda *s: torch.randn(*s, dtype=torch.bfloat16) * 0.05)(D, Dff)),
            "w2": _w((lambda *s: torch.randn(*s, dtype=torch.bfloat16) * 0.05)(Dff, D)),
        }
    _B_in = _B_setup()

    return {
        "A_x": _A_in["x"],
        "A_Lambda_re": _A_in["Lambda_re"],
        "A_Lambda_im": _A_in["Lambda_im"],
        "A_B_re": _A_in["B_re"],
        "A_B_im": _A_in["B_im"],
        "A_C_re": _A_in["C_re"],
        "A_C_im": _A_in["C_im"],
        "A_log_dt": _A_in["log_dt"],
        "A_Dskip": _A_in["Dskip"],
        "B_x": _B_in["x"],
        "B_w1": _B_in["w1"],
        "B_w2": _B_in["w2"],
        "gate_w": _w((lambda *s: torch.randn(*s, dtype=torch.bfloat16) * 0.05)(640) * 16.0),
    }

def reference(A_x, A_Lambda_re, A_Lambda_im, A_B_re, A_B_im, A_C_re, A_C_im, A_log_dt, A_Dskip, B_x, B_w1, B_w2, gate_w):
    def _A_ref(x, Lambda_re, Lambda_im, B_re, B_im, C_re, C_im, log_dt, Dskip):
        Bsz, L, H = x.shape
        Lam = Lambda_re + 1j * Lambda_im
        Bmat = B_re + 1j * B_im
        Cmat = C_re + 1j * C_im
        dt = torch.exp(log_dt)
        Lam_bar = torch.exp(dt * Lam)
        B_bar = ((Lam_bar - 1.0) / Lam)[:, None] * Bmat
        Bu = torch.einsum("bld,pd->blp", x + 0j, B_bar)
        h = torch.zeros_like(Bu[:, 0, :])
        hs = []
        for t in range(L):
            h = Lam_bar[None, :] * h + Bu[:, t, :]
            hs.append(h)
        hseq = torch.stack(hs, 1)
        y = 2.0 * torch.einsum("blp,dp->bld", hseq, Cmat).real + x * Dskip[None, None, :]
        return y

    def _B_ref(x, w1, w2):
        h = torch.einsum("bsd,df->bsf", x, w1)
        zero = torch.zeros_like(h)
        h = torch.maximum(h, zero)
        return torch.einsum("bsf,fd->bsd", h, w2)

    x = A_x
    g = _sigmoid((x * gate_w).sum(-1, keepdims=True))
    a = _A_ref(x, A_Lambda_re, A_Lambda_im, A_B_re, A_B_im, A_C_re, A_C_im, A_log_dt, A_Dskip)
    b = _B_ref(x, B_w1, B_w2)
    return g * a + (1 - g) * b
```

```python
import re


class Asm:
    def __init__(self):
        self.lines = []
        self.vm = []

    def __call__(self, s, *a):
        for ln in s.split('\n'):
            ln = ln.strip()
            if ln:
                self.lines.append(ln)

    def label(self, name):
        self.lines.append(name + ':')

    def comment(self, s):
        self.lines.append('; ' + s)

    def vmem(self, s, tag):
        self.lines.append(s)
        self.vm.append(tag)

    def wait_vm(self, tags, extra=''):
        if isinstance(tags, str):
            tags = [tags]
        last = -1
        for i, t in enumerate(self.vm):
            if t in tags:
                last = i
        if last < 0:
            if extra:
                self.lines.append('s_waitcnt ' + extra)
            return
        n = len(self.vm) - 1 - last
        assert n <= 63
        self.lines.append(('s_waitcnt vmcnt(%d) ' % n + extra).strip())
        self.vm = self.vm[last + 1:]

    def wait_vm_all(self, extra=''):
        self.lines.append(('s_waitcnt vmcnt(0) ' + extra).strip())
        self.vm = []

    def text(self):
        out = []
        for ln in self.lines:
            if ln.endswith(':') or ln.startswith('.') or ln.startswith(';'):
                out.append(ln)
            else:
                out.append('    ' + ln)
        return '\n'.join(out) + '\n'


def interleave(main, fill, start=0, end=None, per=None):
    if end is None:
        end = len(main)
    n = end - start
    out = []
    fi = 0
    for i, m in enumerate(main):
        out.append(m)
        if start <= i < end:
            k = i - start + 1
            want = (len(fill) * k + n - 1) // n if per is None else min(len(fill), per * k)
            while fi < want:
                out.append(fill[fi])
                fi += 1
    while fi < len(fill):
        out.append(fill[fi])
        fi += 1
    return out


_REG = re.compile(r'(-?)(?:abs\()?\b([vas])(\d+)\b|\b([vas])\[(\d+):(\d+)\]')


def regs_of(op):
    out = []
    for m in _REG.finditer(op):
        if m.group(2):
            out.append((m.group(2), int(m.group(3))))
        else:
            for i in range(int(m.group(5)), int(m.group(6)) + 1):
                out.append((m.group(4), i))
    if re.search(r'\bvcc\b', op):
        out.append(('s', 'vcc'))
    if re.search(r'\bm0\b', op):
        out.append(('s', 'm0'))
    if re.search(r'\bexec\b', op):
        out.append(('s', 'exec'))
    return out


TRANS = ('v_exp_f32', 'v_log_f32', 'v_rcp_f32', 'v_rsq_f32', 'v_sqrt_f32', 'v_sin_f32', 'v_cos_f32')


class Ins:
    pass


def parse(line):
    line = line.split(';')[0].strip()
    if not line or line.endswith(':') or line.startswith('.'):
        return None
    parts = line.split(None, 1)
    mn = parts[0]
    rest = parts[1] if len(parts) > 1 else ''
    ops = [o.strip() for o in re.split(r',(?![^\[]*\])', rest)] if rest else []
    ins = Ins()
    ins.text = line
    ins.mn = mn
    base = re.sub(r'_(e32|e64|dpp|sdwa)$', '', mn)
    ins.base = base
    ins.is_mfma = mn.startswith('v_mfma')
    ins.is_valu = mn.startswith('v_') and not ins.is_mfma
    ins.is_ds = mn.startswith('ds_')
    ins.is_vmem = mn.startswith(('buffer_', 'global_'))
    ins.is_smem = mn.startswith(('s_load', 's_mem'))
    ins.is_salu = mn.startswith('s_') and not ins.is_smem
    ins.is_trans = base in TRANS
    ins.is_dpp = 'row_' in rest or 'quad_perm' in rest or mn.endswith('_dpp')
    ins.w = []
    ins.r = []
    ins.nop = 0
    if mn == 's_nop':
        ins.nop = int(ops[0], 0) + 1
        return ins
    last = ops[-1].split(' ')[0] if ops else ''
    opsc = [o.split(' ')[0] if not o.startswith(('s[', 'v[', 'a[')) else re.match(r'\S+', o).group(0) for o in ops]
    if ins.is_mfma:
        ins.w = regs_of(opsc[0])
        ins.a = regs_of(opsc[1])
        ins.b = regs_of(opsc[2])
        ins.c = regs_of(opsc[3])
        ins.r = ins.a + ins.b + ins.c
        ins.passes = 8 if '32x32' in mn else 4
    elif ins.is_valu:
        if base.startswith('v_cmp'):
            ins.w = regs_of(opsc[0])
            for o in opsc[1:]:
                ins.r += regs_of(o)
            if base.startswith('v_cmpx'):
                ins.w.append(('s', 'exec'))
        elif base in ('v_permlane32_swap_b32', 'v_permlane16_swap_b32'):
            ins.w = regs_of(opsc[0]) + regs_of(opsc[1])
            ins.r = list(ins.w)
        else:
            ins.w = regs_of(opsc[0])
            k = 1
            if base in ('v_add_co_u32', 'v_addc_co_u32', 'v_sub_co_u32'):
                ins.w += regs_of(opsc[1])
                k = 2
            for o in opsc[k:]:
                ins.r += regs_of(o)
            if base in ('v_fmac_f32', 'v_dot2c_f32_bf16', 'v_pk_fmac_f16', 'v_writelane_b32') or ins.is_dpp:
                ins.r += regs_of(opsc[0])
            if base == 'v_cndmask_b32' and len(opsc) == 3:
                ins.r.append(('s', 'vcc'))
    elif ins.is_ds:
        if 'read' in mn or 'bpermute' in mn or 'swizzle' in mn:
            ins.w = regs_of(opsc[0])
            for o in opsc[1:]:
                ins.r += regs_of(o)
        else:
            for o in opsc:
                ins.r += regs_of(o)
    elif ins.is_vmem:
        lds = re.search(r'\blds\b', rest) is not None
        is_load = '_load' in mn
        is_atomic = '_atomic' in mn
        if is_load and not lds:
            ins.w = regs_of(opsc[0])
            for o in opsc[1:]:
                ins.r += regs_of(o)
            if 'd16' in mn:
                ins.r += regs_of(opsc[0])
        elif is_atomic and 'sc0' in rest:
            ins.w = regs_of(opsc[0])
            for o in opsc:
                ins.r += regs_of(o)
        else:
            for o in opsc:
                ins.r += regs_of(o)
            if lds:
                ins.r.append(('s', 'm0'))
        ins.wide_store = ('_store' in mn) and ('x4' in mn or 'x3' in mn)
        ins.store_data = []
        if ins.wide_store:
            ins.store_data = regs_of(opsc[0]) if mn.startswith('buffer') else regs_of(opsc[1])
        ins.lds = lds
    elif ins.is_smem:
        ins.w = regs_of(opsc[0])
        for o in opsc[1:]:
            ins.r += regs_of(o)
    elif ins.is_salu:
        if mn.startswith(('s_cmp', 's_cbranch', 's_branch', 's_waitcnt', 's_barrier', 's_endpgm', 's_sleep', 's_setprio', 's_bitcmp')):
            for o in opsc:
                ins.r += regs_of(o)
        else:
            if opsc:
                ins.w = regs_of(opsc[0])
            for o in opsc[1:]:
                ins.r += regs_of(o)
            if 'saveexec' in mn:
                ins.w.append(('s', 'exec'))
    return ins


def check_hazards(lines, name=''):
    ins = []
    for ln in lines:
        p = parse(ln)
        if p is not None:
            ins.append(p)
    problems = []
    n = len(ins)

    def vg(rs):
        return set(r for r in rs if r[0] in 'va')

    def sg(rs):
        return set(r for r in rs if r[0] == 's')

    for i, p in enumerate(ins):
        if p.nop:
            continue
        dist = 0
        for j in range(i + 1, min(n, i + 24)):
            c = ins[j]
            need = 0
            why = ''
            if not c.nop:
                cr, cw = set(c.r), set(c.w)
                if p.is_valu:
                    pwv, pws = vg(p.w), sg(p.w)
                    if c.is_mfma and pwv & vg(cr):
                        need, why = 2, 'VALU->MFMA'
                    if c.is_valu and c.is_dpp and pwv & vg(cr):
                        need, why = max(need, 2), 'VALU->DPP'
                    if c.is_valu and c.base.startswith('v_permlane') and pwv & vg(cr):
                        need, why = max(need, 2), 'VALU->permlane'
                    if c.is_valu and c.base in ('v_readfirstlane_b32', 'v_readlane_b32') and pwv & vg(cr):
                        need, why = max(need, 1), 'VALU->readlane'
                    if p.is_trans and c.is_valu and not c.is_trans and pwv & vg(cr):
                        need, why = max(need, 1), 'trans->VALU'
                    if pws and c.is_vmem and pws & sg(cr):
                        need, why = max(need, 5), 'VALU sgpr->VMEM'
                    if pws and c.is_valu and pws & sg(cr):
                        need, why = max(need, 2), 'VALU sgpr->VALU const'
                    if pws and c.is_valu and c.base in ('v_readlane_b32', 'v_writelane_b32') and pws & sg(cr):
                        need, why = max(need, 4), 'VALU sgpr->lane select'
                    if ('s', 'exec') in p.w:
                        if c.is_mfma:
                            need, why = max(need, 4), 'VALU exec->MFMA'
                        if c.is_valu and c.is_dpp:
                            need, why = max(need, 5), 'VALU exec->DPP'
                if p.is_mfma:
                    pw = set(p.w)
                    P = p.passes
                    if c.is_mfma:
                        if set(c.c) & pw and set(c.c) != pw:
                            need, why = {4: 6, 8: 10}[P], 'MFMA D->MFMA C partial overlap'
                        if (set(c.a) | set(c.b)) & pw:
                            need, why = max(need, {4: 8, 8: 12}[P]), 'MFMA D->MFMA A/B'
                    elif (c.is_valu or c.is_ds or c.is_vmem) and ((cr | cw) & pw):
                        need, why = {4: 8, 8: 12}[P], 'MFMA D->VALU/mem'
                    if c.is_valu and set(p.c) & cw:
                        need, why = max(need, {4: 3, 8: 7}[P]), 'MFMA C WAR'
                if p.is_salu and ('s', 'm0') in p.w:
                    if c.is_vmem and getattr(c, 'lds', False):
                        need, why = max(need, 1), 'M0->LDS DMA'
                if p.is_vmem and getattr(p, 'wide_store', False):
                    if c.is_valu and set(p.store_data) & cw:
                        need, why = max(need, 2), 'wide store WAR VALU'
                    elif set(p.store_data) & cw:
                        need, why = max(need, 1), 'wide store WAR'
                if need > dist:
                    problems.append('%s: %s needs %d has %d:\n    %s\n    %s' % (name, why, need, dist, p.text, c.text))
            dist += c.nop if c.nop else 1
            if dist >= 20:
                break
    return problems
```

```python
import sys
from asmlib import Asm, interleave, check_hazards

NAME = 'gated_mix__ssm_conv_s5__dense_activation_relu__prompt'

WS_HF = 0
WS_WT = 32 * 88 * 4096
WS_G = WS_WT + 8 * 88 * 5120
WS_AGG = WS_G + 8192
WS_DIAG = 16 << 20
WS_SIZE = 32 << 20

X_BYTES = 2048 * 1280
B_BYTES = 640 * 1280
W1_BYTES = 640 * 3072
W2_BYTES = 1536 * 1280
OUT_BYTES = 2048 * 640 * 4

OPT = dict(R_SSM=5, R_FFN=3, diag=False, st_sc1=False, K2D=6)

sX, sLRE, sLIM, sBRE, sBIM, sCRE, sCIM, sLDT = 4, 6, 8, 10, 12, 14, 16, 18
sDSK, sBX, sW1, sW2, sGW, sOUT, sDBG, sWS = 20, 22, 24, 26, 28, 30, 32, 34
sC, sB, sW, sWT, sWC = 36, 37, 38, 39, 40
sT0, sT1, sT2, sT3, sT4, sT5 = 41, 42, 43, 44, 45, 46
sNONCE = 47
rX, rB, rWS, rT0, rT1 = 48, 52, 56, 60, 64
sK, sMA, sMB, sK2 = 68, 69, 70, 71
sTS = 72
sHI = 92
sM0, sM1 = 94, 96


def srd(a, r, ptr, size, off=0):
    if off:
        a(f's_add_u32 s{r}, s{ptr}, {off}')
        a(f's_addc_u32 s{r+1}, s{ptr+1}, 0')
    else:
        a(f's_mov_b32 s{r}, s{ptr}')
        a(f's_mov_b32 s{r+1}, s{ptr+1}')
    a(f's_mov_b32 s{r+2}, {size}')
    a(f's_mov_b32 s{r+3}, 0x20000')


def load_ptrs(a):
    a('s_load_dwordx16 s[4:19], s[0:1], 0')
    a('s_load_dwordx16 s[20:35], s[0:1], 64')


def stamp(a, idx):
    if OPT['diag']:
        a(f's_memrealtime s[{sTS + 2*idx}:{sTS + 2*idx + 1}]')


def stamps_out(a, n, kern):
    if not OPT['diag']:
        return
    a('s_waitcnt lgkmcnt(0)')
    a(f's_lshl_b32 s{sT0}, s2, 8')
    a(f's_lshl_b32 s{sT1}, s{sW}, 6')
    a(f's_add_u32 s{sT0}, s{sT0}, s{sT1}')
    a(f's_add_u32 s{sT0}, s{sT0}, {WS_DIAG + kern * 65536}')
    a(f'v_mov_b32 v2, s{sT0}')
    for i in range(n):
        a(f'v_mov_b32 v3, s{sTS + 2*i}')
        a(f'buffer_store_dword v3, v2, s[{rWS}:{rWS+3}], 0 offen offset:{4*i}')
        a('s_nop 1')


def vreg(r, n=1):
    return f'v{r}' if n == 1 else f'v[{r}:{r+n-1}]'


def areg(r, n=1):
    return f'a{r}' if n == 1 else f'a[{r}:{r+n-1}]'


def pair(r):
    return f'v[{r}:{r+1}]'


def pk_fma(a, d, s0, s1, s2, b0=None, b1=None, swap1=False, neg0=None):
    osel = [0, 0, 0]
    ohi = [1, 1, 1]
    if b0 is not None:
        osel[0] = ohi[0] = b0
    if b1 is not None:
        osel[1] = ohi[1] = b1
    if swap1:
        osel[1], ohi[1] = 1, 0
    s = f'v_pk_fma_f32 {pair(d)}, {pair(s0)}, {pair(s1)}, {pair(s2)} op_sel:[{osel[0]},{osel[1]},{osel[2]}] op_sel_hi:[{ohi[0]},{ohi[1]},{ohi[2]}]'
    if neg0 == 'both':
        s += ' neg_lo:[1,0,0] neg_hi:[1,0,0]'
    elif neg0 == 'lo':
        s += ' neg_lo:[1,0,0]'
    return s


def pk_mul(d, s0, s1, b0=None):
    osel = [0, 0]
    ohi = [1, 1]
    if b0 is not None:
        osel[0] = ohi[0] = b0
    return f'v_pk_mul_f32 {pair(d)}, {pair(s0)}, {pair(s1)} op_sel:[{osel[0]},{osel[1]}] op_sel_hi:[{ohi[0]},{ohi[1]}]'


def cmul_s(a, dr, di, ar, ai, br, bi, tmp):
    a(f'v_mul_f32 v{dr}, v{ar}, v{br}')
    a(f'v_mul_f32 v{di}, v{ar}, v{bi}')
    a(f'v_fma_f32 v{dr}, -v{ai}, v{bi}, v{dr}')
    a(f'v_fma_f32 v{di}, v{ai}, v{br}, v{di}')


def csq(a, dr, di, sr, si):
    a(f'v_mul_f32 v{dr}, v{sr}, v{sr}')
    a(f'v_mul_f32 v{di}, v{sr}, v{si}')
    a(f'v_fma_f32 v{dr}, -v{si}, v{si}, v{dr}')
    a(f'v_add_f32 v{di}, v{di}, v{di}')


def gen_ssm(a):
    R = OPT['R_SSM']
    SLOT = 32768
    NST = 10
    vL = 1
    vA, vB_ = 10, 14
    nset = (R + 1) // 2
    vRA = [18 + 8 * s for s in range(nset)]
    vRB = [22 + 8 * s for s in range(nset)]
    LAM, L16, L128, L256, COEF = 42, 44, 46, 48, 50
    WRE, WIM = 52, 54
    SRE, SIM, TRE, TIM = 56, 58, 60, 62
    G = 64
    P = 80
    GR = 96
    ACC = 128
    TW = 192
    CP = 208
    GX = 220
    GW = 240
    sc = ' sc1' if OPT['st_sc1'] else ''

    def acc(m, part):
        return ACC + 32 * m + 16 * part

    def ure(u):
        return acc(u >> 3, 0) + 2 * (u & 7)

    def uim(u):
        return acc(u >> 3, 1) + 2 * (u & 7)

    def fA(s, m, kk):
        return 64 * s + 16 * m + 4 * kk

    def fB(s, part, kk):
        return 64 * s + 32 + 16 * part + 4 * kk

    a(f's_lshr_b32 s{sWT}, s{sW}, 1')
    a(f's_and_b32 s{sWC}, s{sW}, 1')
    srd(a, rX, sX, X_BYTES)
    a(f's_cmp_eq_u32 s{sWC}, 0')
    a(f's_cselect_b32 s{rB}, s{sBRE}, s{sBIM}')
    a(f's_cselect_b32 s{rB+1}, s{sBRE+1}, s{sBIM+1}')
    a(f's_mov_b32 s{rB+2}, {B_BYTES}')
    a(f's_mov_b32 s{rB+3}, 0x20000')
    srd(a, rWS, sWS, WS_SIZE)
    a(f'v_lshrrev_b32 v2, 4, v{vL}')
    a(f'v_and_b32 v3, 7, v{vL}')
    a('v_xor_b32 v3, v2, v3')
    a('v_lshlrev_b32 v3, 4, v3')
    a('v_xor_b32 v4, 64, v3')
    a(f'v_lshrrev_b32 v5, 5, v{vL}')
    a('v_lshlrev_b32 v5, 5, v5')
    a(f'v_bfe_u32 v6, v{vL}, 3, 1')
    a('v_lshl_add_u32 v5, v6, 4, v5')
    a(f'v_bfe_u32 v6, v{vL}, 4, 1')
    a('v_add_u32 v5, v5, v6')
    a(f's_lshl_b32 s{sT0}, s{sC}, 7')
    a(f's_lshl_b32 s{sT1}, s{sWT}, 6')
    a(f's_add_u32 s{sT0}, s{sT0}, s{sT1}')
    a(f's_lshl_b32 s{sT1}, s{sWC}, 3')
    a(f's_add_u32 s{sT0}, s{sT0}, s{sT1}')
    a(f'v_add_u32 v5, s{sT0}, v5')
    a(f's_movk_i32 s{sT2}, 1280')
    a(f'v_mul_lo_u32 v5, v5, s{sT2}')
    for i in range(4):
        a(f'v_add_u32 v{vA+i}, v5, v{3 + (i & 1)}')
        if i:
            a(f'v_add_u32 v{vA+i}, {1536*i}, v{vA+i}')
    a(f's_lshl_b32 s{sT0}, s{sB}, 6')
    a(f's_lshl_b32 s{sT1}, s{sWT}, 5')
    a(f's_add_u32 s{sT0}, s{sT0}, s{sT1}')
    a(f'v_lshrrev_b32 v5, 3, v{vL}')
    a(f'v_add_u32 v5, s{sT0}, v5')
    a(f'v_mul_lo_u32 v5, v5, s{sT2}')
    for i in range(4):
        a(f'v_add_u32 v{vB_+i}, v5, v{3 + (i & 1)}')
        if i:
            a(f'v_add_u32 v{vB_+i}, {9216*i}, v{vB_+i}')
    a(f's_lshl_b32 s{sMA}, s{sW}, 12')
    a(f's_add_u32 s{sMB}, s{sMA}, 16384')

    def dma(stage):
        slot = stage % R
        out = []
        out.append(('s', f's_add_u32 m0, s{sMA}, {slot*SLOT}'))
        out.append(('s', f's_mov_b32 s{sK}, {stage*128}'))
        for i in range(4):
            out.append(('v', f'buffer_load_dwordx4 v{vA+i}, s[{rX}:{rX+3}], s{sK} offen offset:{1024*i} lds', f'st{stage}'))
        out.append(('s', f's_add_u32 m0, s{sMB}, {slot*SLOT}'))
        out.append(('s', 's_nop 0'))
        for i in range(4):
            out.append(('v', f'buffer_load_dwordx4 v{vB_+i}, s[{rB}:{rB+3}], s{sK} offen offset:{1024*i} lds', f'st{stage}'))
        return out

    def emit(items):
        for it in items:
            if isinstance(it, str):
                a(it)
            elif it[0] == 'v':
                a.vmem(it[1], it[2])
            else:
                a(it[1])

    for st in range(R):
        emit(dma(st))
    stamp(a, 1)

    a(f's_cmp_lg_u32 s{sW}, 0')
    a('s_cbranch_scc1 L_ssm_no_nonce')
    a(f's_memrealtime s[{sT0+1}:{sT0+2}]')
    a('s_waitcnt lgkmcnt(0)')
    a(f's_or_b32 s{sT0+1}, s{sT0+1}, 1')
    a(f'v_mov_b32 v250, s{sT0+1}')
    a('v_mov_b32 v251, 0')
    a('v_mov_b32 v252, 0')
    a(f'v_mov_b32 v253, s{sT0+1}')
    a('s_mov_b64 exec, 1')
    a(f'global_atomic_cmpswap v250, v252, v[250:251], s[{sDBG}:{sDBG+1}] sc0 sc1')
    a('s_mov_b64 exec, -1')
    a.label('L_ssm_no_nonce')

    a(f's_lshl_b32 s{sT0}, s{sB}, 6')
    a(f's_lshl_b32 s{sT1}, s{sWC}, 5')
    a(f's_add_u32 s{sT0}, s{sT0}, s{sT1}')
    a(f'v_and_b32 v2, 31, v{vL}')
    a(f'v_add_u32 v2, s{sT0}, v2')
    a('v_lshlrev_b32 v2, 1, v2')
    a.vmem(f'global_load_ushort v3, v2, s[{sLRE}:{sLRE+1}]', 'lam')
    a.vmem(f'global_load_ushort v4, v2, s[{sLIM}:{sLIM+1}]', 'lam')
    a.vmem(f'global_load_ushort v5, v2, s[{sLDT}:{sLDT+1}]', 'lam')

    a(f'v_and_b32 v9, 31, v{vL}')
    a(f'v_lshrrev_b32 v2, 5, v{vL}')
    a(f'v_bfe_u32 v{TRE}, v{vL}, 1, 3')
    a(f'v_xor_b32 v2, v2, v{TRE}')
    a('v_lshlrev_b32 v2, 4, v2')
    a('v_lshl_add_u32 v2, v9, 7, v2')
    a(f's_lshl_b32 s{sT0}, s{sWT}, 13')
    a(f's_lshl_b32 s{sT1}, s{sWC}, 13')
    a(f's_add_u32 s{sT1}, s{sT1}, 16384')
    for kk in range(4):
        if kk:
            a(f'v_xor_b32 v{TRE}, {32*kk}, v2')
        else:
            a(f'v_mov_b32 v{TRE}, v2')
        for s in range(nset):
            a(f'v_add_u32 v{vRA[s]+kk}, s{sT0}, v{TRE}')
            a(f'v_add_u32 v{vRB[s]+kk}, s{sT1}, v{TRE}')
            if s:
                a(f'v_add_u32 v{vRA[s]+kk}, {65536*s}, v{vRA[s]+kk}')
                a(f'v_add_u32 v{vRB[s]+kk}, {65536*s}, v{vRB[s]+kk}')

    a.wait_vm('lam')
    a('v_lshlrev_b32 v3, 16, v3')
    a('v_lshlrev_b32 v4, 16, v4')
    a('v_lshlrev_b32 v5, 16, v5')
    a('v_mul_f32 v5, 0x3fb8aa3b, v5')
    a('v_exp_f32 v5, v5')
    a('s_nop 0')
    a('v_cvt_pk_bf16_f32 v5, v5, v5')
    a('v_lshlrev_b32 v5, 16, v5')
    a(f'v_mul_f32 v{TRE}, v5, v3')
    a(f'v_mul_f32 v{TRE+1}, v5, v4')
    a(f'v_mul_f32 v{TRE}, 0x3fb8aa3b, v{TRE}')
    a(f'v_exp_f32 v{TRE}, v{TRE}')
    a(f'v_mul_f32 v{TRE+1}, 0.15915494, v{TRE+1}')
    a(f'v_rndne_f32 v{TIM}, v{TRE+1}')
    a(f'v_sub_f32 v{TRE+1}, v{TRE+1}, v{TIM}')
    a(f'v_cos_f32 v{TIM}, v{TRE+1}')
    a(f'v_sin_f32 v{TIM+1}, v{TRE+1}')
    a('s_nop 0')
    a(f'v_mul_f32 v{LAM}, v{TRE}, v{TIM}')
    a(f'v_mul_f32 v{LAM+1}, v{TRE}, v{TIM+1}')
    a(f'v_add_f32 v{TRE}, -1.0, v{LAM}')
    a(f'v_mul_f32 v{TIM}, v3, v3')
    a(f'v_fmac_f32 v{TIM}, v4, v4')
    a(f'v_rcp_f32 v{TIM}, v{TIM}')
    a(f'v_mul_f32 v{COEF}, v{TRE}, v3')
    a(f'v_fmac_f32 v{COEF}, v{LAM+1}, v4')
    a(f'v_mul_f32 v{COEF+1}, v{LAM+1}, v3')
    a(f'v_fma_f32 v{COEF+1}, -v{TRE}, v4, v{COEF+1}')
    a(f'v_add_f32 v{TIM}, v{TIM}, v{TIM}')
    a(f'v_mul_f32 v{COEF}, v{COEF}, v{TIM}')
    a(f'v_mul_f32 v{COEF+1}, v{COEF+1}, v{TIM}')
    t0, t1 = G, G + 2
    csq(a, t0, t0 + 1, LAM, LAM + 1)
    csq(a, t1, t1 + 1, t0, t0 + 1)
    csq(a, t0, t0 + 1, t1, t1 + 1)
    csq(a, L16, L16 + 1, t0, t0 + 1)
    L32, L64 = G + 4, G + 6
    csq(a, L32, L32 + 1, L16, L16 + 1)
    csq(a, L64, L64 + 1, L32, L32 + 1)
    csq(a, L128, L128 + 1, L64, L64 + 1)
    csq(a, L256, L256 + 1, L128, L128 + 1)
    a(f'v_cmp_lt_u32 vcc, 31, v{vL}')
    a(f's_cmp_eq_u32 s{sWT}, 1')
    a(f's_cselect_b64 s[{sM0}:{sM0+1}], -1, 0')
    a(f'v_mov_b32 v{t0}, 1.0')
    a(f'v_mov_b32 v{t0+1}, 0')
    a(f'v_cndmask_b32 v{t1}, v{t0}, v{L32}, vcc')
    a(f'v_cndmask_b32 v{t1+1}, v{t0+1}, v{L32+1}, vcc')
    a(f'v_cndmask_b32 v{t0}, v{t0}, v{L64}, s[{sM0}:{sM0+1}]')
    a(f'v_cndmask_b32 v{t0+1}, v{t0+1}, v{L64+1}, s[{sM0}:{sM0+1}]')
    cmul_s(a, WRE, WIM, t0, t0 + 1, t1, t1 + 1, None)
    cmul_s(a, WRE + 1, WIM + 1, WRE, WIM, L16, L16 + 1, None)

    TB0 = 8192 if R == 5 else 2 * SLOT + 8192
    AGB = 0 if R == 5 else 2 * SLOT
    PB = TB0 + 4 * 8192 if R == 5 else 4 * SLOT
    a(f'v_and_b32 v2, 31, v{vL}')
    a('v_lshrrev_b32 v3, 2, v2')
    a('v_lshlrev_b32 v3, 4, v3')
    a('v_and_b32 v2, 3, v2')
    a('v_lshl_add_u32 v3, v2, 2, v3')
    a(f'v_lshrrev_b32 v2, 5, v{vL}')
    a('v_lshl_add_u32 v3, v2, 11, v3')
    a(f's_lshl_b32 s{sT0}, s{sW}, 13')
    a(f's_add_u32 s{sT0}, s{sT0}, {TB0}')
    for u in range(16):
        a(f'v_xor_b32 v{TW+u}, {(u << 7) | ((u >> 1) << 4)}, v3')
        a(f'v_add_u32 v{TW+u}, s{sT0}, v{TW+u}')

    def reads(stage):
        slot = stage % R
        st_, off = slot // 2, (slot % 2) * SLOT
        rs = stage & 1
        out = []
        for kk in range(4):
            for m in range(2):
                out.append(f'ds_read_b128 {areg(fA(rs, m, kk), 4)}, v{vRA[st_]+kk} offset:{off + 4096*m}')
            for part in range(2):
                out.append(f'ds_read_b128 {areg(fB(rs, part, kk), 4)}, v{vRB[st_]+kk} offset:{off + 4096*part}')
        return out

    def mfmas(stage, order='k'):
        rs = stage & 1
        out = []
        if order == 'k':
            seq = [(kk, m, part) for kk in range(4) for m in range(2) for part in range(2)]
        else:
            seq = [(kk, m, part) for m in range(2) for kk in range(4) for part in range(2)]
        for kk, m, part in seq:
            c = '0' if (stage == 0 and kk == 0) else vreg(acc(m, part), 16)
            out.append(f'v_mfma_f32_32x32x16_bf16 {vreg(acc(m, part), 16)}, {areg(fA(rs, m, kk), 4)}, {areg(fB(rs, part, kk), 4)}, {c}')
        return out

    a.wait_vm('st0')
    a('s_barrier')
    stamp(a, 2)
    emit(reads(0))

    for s in range(NST):
        a.comment(f'SSM stage {s}')
        a('s_waitcnt lgkmcnt(0)')
        mm = mfmas(s, 'k' if s < NST - 1 else 'm')
        fill = []
        if s + 1 < NST:
            a(mm[0])
            a(mm[1])
            mm = mm[2:]
            a.wait_vm(f'st{s+1}')
            a('s_barrier')
            if s + R < NST:
                fill += dma(s + R)
            fill += reads(s + 1)
        seq = interleave(mm, fill, 0, len(mm) - 1)
        emit(seq)
        if s == 6:
            prep_loads(a, R, PB, CP, GX, GW, vL)
    stamp(a, 3)

    a('s_nop 7')
    a('s_nop 3')
    for u in range(1, 16):
        pr = ure(0) if u == 1 else SRE
        pi = uim(0) if u == 1 else SIM
        a(pk_fma(a, TRE, LAM, pi, ure(u), b0=1, neg0='both'))
        a(pk_fma(a, TIM, LAM, pr, uim(u), b0=1))
        a(pk_fma(a, SRE, LAM, pr, TRE, b0=0))
        a(pk_fma(a, SIM, LAM, pi, TIM, b0=0))
    a(f'v_and_b32 v2, 31, v{vL}')
    a(f's_lshl_b32 s{sT0}, s{sWC}, 5')
    a(f'v_add_u32 v2, s{sT0}, v2')
    a('v_lshlrev_b32 v2, 3, v2')
    a(f'v_add_u32 v2, {AGB}, v2') if AGB else None
    a(f'v_lshrrev_b32 v3, 5, v{vL}')
    a('v_lshl_add_u32 v3, v3, 10, v2')
    a(f's_lshl_b32 s{sT0}, s{sWT}, 11')
    a(f'v_add_u32 v3, s{sT0}, v3')
    a(f'ds_write2_b32 v3, v{SRE}, v{SIM} offset0:0 offset1:1')
    a(f'ds_write2_b32 v3, v{SRE+1}, v{SIM+1} offset0:128 offset1:129')
    a(f's_cmp_lg_u32 s{sW}, 0')
    a('s_cbranch_scc1 L_ssm_no_nonce2')
    a('v_cmp_eq_u32 vcc, 0, v250')
    a('s_nop 1')
    a('v_cndmask_b32 v8, v250, v253, vcc')
    a(f'v_mov_b32 v7, {AGB + 4096}')
    a('s_mov_b64 exec, 1')
    a('ds_write_b32 v7, v8')
    a('s_mov_b64 exec, -1')
    a.label('L_ssm_no_nonce2')
    a('s_waitcnt lgkmcnt(0)')
    a('s_barrier')
    a(f'v_mov_b32 v7, {AGB + 4096}')
    a('ds_read_b32 v8, v7')
    for s in range(8):
        a(f'ds_read_b64 {pair(G+2*s)}, v2 offset:{512*s}')
    a('s_waitcnt lgkmcnt(0)')
    a(f'v_mov_b32 v{P}, v{G}')
    a(f'v_mov_b32 v{P+1}, v{G+1}')
    for s in range(1, 8):
        a(pk_fma(a, TRE, L16, P + 2*(s-1), G + 2*s, b0=0))
        a(pk_fma(a, P + 2*s, L16, P + 2*(s-1), TRE, b0=1, swap1=True, neg0='lo'))
    a(f'v_mov_b32 v{GR}, v{P+14}')
    a(f'v_mov_b32 v{GR+1}, v8')
    a(f'v_mov_b32 v{GR+2}, v{P+15}')
    a(f'v_mov_b32 v{GR+3}, v8')
    a(f's_lshl_b32 s{sT0}, s{sB}, 4')
    a(f's_add_u32 s{sT0}, s{sT0}, s{sC}')
    a(f's_lshl_b32 s{sT0}, s{sT0}, 10')
    a(f's_add_u32 s{sT0}, s{sT0}, {WS_AGG}')
    a('v_lshlrev_b32 v3, 1, v2')
    if AGB:
        a(f'v_subrev_u32 v3, {2*AGB}, v3')
    a(f's_cmp_lg_u32 s{sWT}, 0')
    a('s_cbranch_scc1 L_ssm_no_pub')
    a('s_mov_b32 exec_hi, 0')
    a(f'buffer_store_dwordx4 {vreg(GR, 4)}, v3, s[{rWS}:{rWS+3}], s{sT0} offen sc0 sc1')
    a('s_mov_b64 exec, -1')
    a.label('L_ssm_no_pub')
    a(f'v_readfirstlane_b32 s{sNONCE}, v8')
    stamp(a, 4)

    a(f'v_cmp_lt_u32 vcc, 31, v{vL}')
    a(f'v_mov_b32 v{TRE}, 0')
    a('s_nop 0')
    PS = G
    for comp in range(2):
        a(f'v_cndmask_b32 v{TIM}, v{TRE}, v{P+2+comp}, vcc')
        a(f'v_cndmask_b32 v{TIM+1}, v{P+6+comp}, v{P+10+comp}, vcc')
        a(f'v_cndmask_b32 v{PS+comp}, v{TIM}, v{TIM+1}, s[{sM0}:{sM0+1}]')
        a(f'v_cndmask_b32 v{TIM}, v{P+comp}, v{P+4+comp}, vcc')
        a(f'v_cndmask_b32 v{TIM+1}, v{P+8+comp}, v{P+12+comp}, vcc')
        a(f'v_cndmask_b32 v{PS+2+comp}, v{TIM}, v{TIM+1}, s[{sM0}:{sM0+1}]')
    CPR, CPI, CWR, CWI = G + 4, G + 6, G + 8, G + 10
    for sg_ in range(2):
        cmul_s(a, CPR + sg_, CPI + sg_, COEF, COEF + 1, PS + 2*sg_, PS + 2*sg_ + 1, None)
        cmul_s(a, CWR + sg_, CWI + sg_, COEF, COEF + 1, WRE + sg_, WIM + sg_, None)
    for u in range(16):
        a(pk_mul(TRE, COEF, uim(u), b0=1))
        a(pk_mul(TIM, COEF, ure(u), b0=1))
        a(f'v_pk_fma_f32 {pair(ure(u))}, {pair(COEF)}, {pair(ure(u))}, {pair(TRE)} op_sel:[0,0,0] op_sel_hi:[0,1,1] neg_lo:[0,0,1] neg_hi:[0,0,1]')
        a(pk_fma(a, uim(u), COEF, uim(u), TIM, b0=0))

    prep_finish(a, R, PB, CP, GX, GW, vL, sc)
    stamp(a, 5)

    a(f's_lshl_b32 s{sT0}, s{sB}, 14')
    a(f's_add_u32 s{sT0}, s{sT0}, {WS_AGG}')
    a(f's_add_u32 s{rT0}, s{sWS}, s{sT0}')
    a(f's_addc_u32 s{rT0+1}, s{sWS+1}, 0')
    a(f's_mov_b32 s{rT0+2}, 16384')
    a(f's_mov_b32 s{rT0+3}, 0x20000')
    a(f'v_lshrrev_b32 v2, 5, v{vL}')
    a(f's_sub_u32 s{sT1}, s{sC}, 1')
    a(f'v_sub_u32 v2, s{sT1}, v2')
    a('v_lshl_add_u32 v3, v2, 10, v3')
    LA = P
    for i in range(8):
        a(f'v_subrev_u32 v{LA+i}, {2048*i}, v3')
    a(f's_mov_b32 s{sT2}, 0')
    a.label('L_ssm_poll')
    for i in range(8):
        a(f'buffer_load_dwordx4 {vreg(GR+4*i, 4)}, v{LA+i}, s[{rT0}:{rT0+3}], 0 offen sc0 sc1')
    a('s_waitcnt vmcnt(0)')
    a.vm = []
    a(f's_mov_b64 s[{sM1}:{sM1+1}], -1')
    for i in range(8):
        a(f'v_cmp_eq_u32 vcc, s{sNONCE}, v{GR+4*i+1}')
        a(f'v_cmp_eq_u32 s[{sT3}:{sT4}], s{sNONCE}, v{GR+4*i+3}')
        a(f's_and_b64 vcc, vcc, s[{sT3}:{sT4}]')
        a(f'v_cmp_gt_i32 s[{sT3}:{sT4}], {2*i}, v2')
        a(f's_or_b64 vcc, vcc, s[{sT3}:{sT4}]')
        a(f's_and_b64 s[{sM1}:{sM1+1}], s[{sM1}:{sM1+1}], vcc')
    a(f's_cmp_eq_u64 s[{sM1}:{sM1+1}], -1')
    a('s_cbranch_scc1 L_ssm_poll_done')
    a(f's_add_u32 s{sT2}, s{sT2}, 1')
    a(f's_cmp_lt_u32 s{sT2}, 0x40000')
    a('s_cbranch_scc0 L_ssm_poll_done')
    a('s_sleep 2')
    a('s_branch L_ssm_poll')
    a.label('L_ssm_poll_done')
    stamp(a, 6)
    a(f'v_mov_b32 v{SRE}, v{GR+28}')
    a(f'v_mov_b32 v{SRE+1}, v{GR+30}')
    for i in range(6, -1, -1):
        a(f'v_mov_b32 v{TIM}, v{GR+4*i}')
        a(f'v_mov_b32 v{TIM+1}, v{GR+4*i+2}')
        a(pk_fma(a, TRE, L256, SRE, TIM, b0=0))
        a(pk_fma(a, SRE, L256, SRE, TRE, b0=1, swap1=True, neg0='lo'))
    cmul_s(a, TRE, TRE + 1, L128, L128 + 1, SRE, SRE + 1, None)
    a(f'v_cmp_lt_u32 vcc, 31, v{vL}')
    a('s_nop 1')
    a(f'v_cndmask_b32 v{SRE}, v{SRE}, v{TRE}, vcc')
    a(f'v_cndmask_b32 v{SRE+1}, v{SRE+1}, v{TRE+1}, vcc')
    a(f'v_mov_b32 v{TRE}, v{SRE}')
    a(f'v_mov_b32 v{TRE+1}, v{SRE+1}')
    a('s_nop 1')
    a(f'v_permlane32_swap_b32 v{SRE}, v{TRE}')
    a(f'v_permlane32_swap_b32 v{SRE+1}, v{TRE+1}')
    a('s_nop 1')
    a(f'v_add_f32 v{SRE}, v{SRE}, v{TRE}')
    a(f'v_add_f32 v{SRE+1}, v{SRE+1}, v{TRE+1}')
    HR, HI = TRE, TIM
    a(pk_fma(a, HR, CWR, SRE, CPR, b1=0))
    a(pk_fma(a, HI, CWR, SRE, CPI, b1=1))
    a(pk_fma(a, HR, CWI, SRE, HR, b1=1, neg0='both'))
    a(pk_fma(a, HI, CWI, SRE, HI, b1=0))
    D0 = GR
    for u in range(16):
        pr = HR if u == 0 else ure(u - 1)
        pi = HI if u == 0 else uim(u - 1)
        a(pk_fma(a, ure(u), LAM, pi, ure(u), b0=1, neg0='both'))
        a(pk_fma(a, uim(u), LAM, pr, uim(u), b0=1))
        a(pk_fma(a, ure(u), LAM, pr, ure(u), b0=0))
        a(pk_fma(a, uim(u), LAM, pi, uim(u), b0=0))
        if u:
            v = u - 1
            d = D0 + 2 * v
            a(f'v_cvt_pk_bf16_f32 v{d}, v{ure(v)}, -v{uim(v)}')
            a(f'v_cvt_pk_bf16_f32 v{d+1}, v{ure(v)+1}, -v{uim(v)+1}')
            a(f'ds_write2st64_b32 v{TW+v}, v{d}, v{d+1} offset0:0 offset1:16')
    v = 15
    d = D0 + 2 * v
    a(f'v_cvt_pk_bf16_f32 v{d}, v{ure(v)}, -v{uim(v)}')
    a(f'v_cvt_pk_bf16_f32 v{d+1}, v{ure(v)+1}, -v{uim(v)+1}')
    a(f'ds_write2st64_b32 v{TW+v}, v{d}, v{d+1} offset0:0 offset1:16')
    a(f'v_and_b32 v2, 15, v{vL}')
    a(f'v_lshrrev_b32 v3, 4, v{vL}')
    a('v_lshrrev_b32 v4, 1, v2')
    a('v_xor_b32 v3, v3, v4')
    a('v_lshlrev_b32 v3, 4, v3')
    a('v_lshl_add_u32 v3, v2, 7, v3')
    a(f's_lshl_b32 s{sT0}, s{sW}, 13')
    a(f's_add_u32 s{sT0}, s{sT0}, {TB0}')
    a(f'v_add_u32 v3, s{sT0}, v3')
    a('v_xor_b32 v4, 64, v3')
    rowoff = [0, 4096, 2048, 6144]
    for kp in range(2):
        for tb in range(4):
            a(f'ds_read_b128 {vreg(ACC + 16*kp + 4*tb, 4)}, v{3+kp} offset:{rowoff[tb]}')
    a(f's_lshl_b32 s{sT0}, s{sC}, 1')
    a(f's_add_u32 s{sT0}, s{sT0}, s{sWT}')
    a(f's_mul_i32 s{sT0}, s{sT0}, 88')
    a(f's_lshl_b32 s{sT1}, s{sB}, 2')
    a(f's_add_u32 s{sT0}, s{sT0}, s{sT1}')
    a(f's_lshl_b32 s{sT1}, s{sWC}, 1')
    a(f's_add_u32 s{sT0}, s{sT0}, s{sT1}')
    a(f's_lshl_b32 s{sT0}, s{sT0}, 12')
    a(f's_add_u32 s{sT1}, s{sT0}, 4096')
    a(f'v_lshlrev_b32 v2, 4, v{vL}')
    for kp in range(2):
        for tb in range(4):
            a(f's_waitcnt lgkmcnt({7 - (4*kp + tb)})')
            a(f'buffer_store_dwordx4 {vreg(ACC + 16*kp + 4*tb, 4)}, v2, s[{rWS}:{rWS+3}], s{sT0 + kp} offen offset:{1024*tb}{sc}')
    stamp(a, 7)
    stamps_out(a, 8, 0)
    a('s_endpgm')


def prep_loads(a, R, PB, CP, GX, GW, vL):
    a.comment('side-job loads')
    a(f's_cmp_ge_u32 s{sB}, 5')
    a(f's_cselect_b32 s{sT0}, 1, 0')
    a(f's_mul_i32 s{sT1}, s{sT0}, 5')
    a(f's_sub_u32 s{sT1}, s{sB}, s{sT1}')
    a(f's_lshr_b32 s{sT2}, s{sC}, 1')
    a(f's_and_b32 s{sT3}, s{sC}, 1')
    a(f's_mul_i32 s{sT4}, s{sT2}, 80')
    a(f's_lshl_b32 s{sT5}, s{sT1}, 4')
    a(f's_add_u32 s{sT4}, s{sT4}, s{sT5}')
    a(f's_mul_i32 s88, s{sT2}, 440')
    a(f's_add_u32 s88, s88, s{sT1}')
    a(f's_mul_i32 s89, s{sT3}, 24')
    a(f's_mul_i32 s{sT5}, s{sT0}, 12')
    a(f's_add_u32 s89, s89, s{sT5}')
    a(f's_mul_i32 s{sT5}, s{sW}, 3')
    a(f's_add_u32 s89, s89, s{sT5}')
    a(f's_lshl_b32 s90, s{sT3}, 3')
    a(f's_lshl_b32 s{sT5}, s{sT0}, 2')
    a(f's_add_u32 s90, s90, s{sT5}')
    a(f's_add_u32 s90, s90, s{sW}')
    a(f's_mov_b32 s91, s{sT3}')
    srd(a, rT0, sW2, W2_BYTES)
    a(f'v_lshrrev_b32 v2, 1, v{vL}')
    a(f's_movk_i32 s{sT5}, 1280')
    a(f'v_mul_lo_u32 v2, v2, s{sT5}')
    a(f'v_and_b32 v3, 1, v{vL}')
    a('v_lshl_add_u32 v2, v3, 4, v2')
    a(f's_lshl_b32 s{sT4}, s{sT4}, 1')
    a(f'v_add_u32 v2, s{sT4}, v2')
    a(f's_mul_i32 s93, s89, 40960')
    a(f's_mul_i32 s98, s{sW}, 3072')
    a(f's_add_u32 s98, s98, {PB}')
    for i in range(3):
        a(f's_add_u32 m0, s98, {1024*i}')
        a(f's_add_u32 s{sT5}, s93, {40960*i}')
        a.vmem(f'buffer_load_dwordx4 v2, s[{rT0}:{rT0+3}], s{sT5} offen lds', 'prep')
    srd(a, rT0, sCRE, 640 * 1280)
    srd(a, rT1, sCIM, 640 * 1280)
    a(f'v_and_b32 v2, 15, v{vL}')
    a(f's_lshr_b32 s{sT4}, s{sT4}, 1')
    a(f'v_add_u32 v2, s{sT4}, v2')
    a(f's_movk_i32 s{sT5}, 1280')
    a(f'v_mul_lo_u32 v2, v2, s{sT5}')
    a(f'v_lshrrev_b32 v3, 4, v{vL}')
    a('v_lshl_add_u32 v2, v3, 3, v2')
    for i in range(3):
        a(f's_add_u32 s{sT5}, s90, {16*i}')
        a(f's_min_u32 s{sT5}, s{sT5}, 39')
        a(f's_lshl_b32 s{sT5}, s{sT5}, 5')
        a.vmem(f'buffer_load_dwordx2 {vreg(CP+4*i, 2)}, v2, s[{rT0}:{rT0+3}], s{sT5} offen', 'prep')
        a.vmem(f'buffer_load_dwordx2 {vreg(CP+4*i+2, 2)}, v2, s[{rT1}:{rT1+3}], s{sT5} offen', 'prep')
    a(f's_min_u32 s{sT0}, s{sB}, 7')
    a(f's_lshl_b32 s{sT0}, s{sT0}, 4')
    a(f's_lshl_b32 s{sT1}, s{sC}, 7')
    a(f's_add_u32 s{sT0}, s{sT0}, s{sT1}')
    a(f's_lshl_b32 s{sT1}, s{sW}, 2')
    a(f's_add_u32 s99, s{sT0}, s{sT1}')
    a(f'v_and_b32 v2, 31, v{vL}')
    a('v_mul_u32_u24 v2, 40, v2')
    a(f'v_lshrrev_b32 v3, 5, v{vL}')
    a(f'v_add_u32 v3, s99, v3')
    a(f's_movk_i32 s{sT5}, 1280')
    a(f'v_mul_lo_u32 v3, v3, s{sT5}')
    a('v_add_u32 v3, v2, v3')
    srd(a, rT0, sGW, 1280)
    a.vmem(f'buffer_load_dwordx4 {vreg(GW, 4)}, v2, s[{rT0}:{rT0+3}], 0 offen', 'prep')
    a.vmem(f'buffer_load_dwordx4 {vreg(GW+4, 4)}, v2, s[{rT0}:{rT0+3}], 0 offen offset:16', 'prep')
    a.vmem(f'buffer_load_dwordx2 {vreg(GW+8, 2)}, v2, s[{rT0}:{rT0+3}], 0 offen offset:32', 'prep')
    for i in range(2):
        a.vmem(f'buffer_load_dwordx4 {vreg(GX+10*i, 4)}, v3, s[{rX}:{rX+3}], 0 offen offset:{2560*i}', 'prep')
        a.vmem(f'buffer_load_dwordx4 {vreg(GX+10*i+4, 4)}, v3, s[{rX}:{rX+3}], 0 offen offset:{2560*i+16}', 'prep')
        a.vmem(f'buffer_load_dwordx2 {vreg(GX+10*i+8, 2)}, v3, s[{rX}:{rX+3}], 0 offen offset:{2560*i+32}', 'prep')


def prep_finish(a, R, PB, CP, GX, GW, vL, sc):
    a.comment('side jobs')
    a.wait_vm('prep')
    T = 96
    a(f'v_lshrrev_b32 v4, 5, v{vL}')
    a('v_lshlrev_b32 v4, 4, v4')
    a(f'v_bfe_u32 v5, v{vL}, 4, 1')
    a('v_lshl_add_u32 v4, v5, 2, v4')
    a(f'v_bfe_u32 v5, v{vL}, 2, 2')
    a('v_add_u32 v4, v4, v5')
    a('v_lshlrev_b32 v4, 5, v4')
    a(f'v_and_b32 v5, 3, v{vL}')
    a('v_lshl_add_u32 v4, v5, 3, v4')
    a(f'v_add_u32 v4, s98, v4')
    for i in range(3):
        a(f'ds_read_b64_tr_b16 {vreg(T+4*i, 2)}, v4 offset:{1024*i}')
        a(f'ds_read_b64_tr_b16 {vreg(T+4*i+2, 2)}, v4 offset:{1024*i + 256}')
    a(f'v_lshlrev_b32 v5, 4, v{vL}')
    a(f's_mov_b32 s{sT0}, 0x05040100')
    a(f's_mov_b32 s{sT1}, 0x07060302')
    for i in range(3):
        o = T + 12 + 4 * i
        a(f'v_perm_b32 v{o}, v{CP+4*i+2}, v{CP+4*i}, s{sT0}')
        a(f'v_perm_b32 v{o+1}, v{CP+4*i+2}, v{CP+4*i}, s{sT1}')
        a(f'v_perm_b32 v{o+2}, v{CP+4*i+3}, v{CP+4*i+1}, s{sT0}')
        a(f'v_perm_b32 v{o+3}, v{CP+4*i+3}, v{CP+4*i+1}, s{sT1}')
    for i in range(3):
        a(f's_add_u32 s{sT2}, s90, {16*i}')
        if i == 2:
            a(f's_cmp_ge_u32 s{sT2}, 40')
            a('s_cbranch_scc1 L_ssm_no_c2')
        a(f's_mul_i32 s{sT2}, s{sT2}, 5')
        a(f's_add_u32 s{sT2}, s{sT2}, s88')
        a(f's_lshl_b32 s{sT2}, s{sT2}, 10')
        a(f's_add_u32 s{sT2}, s{sT2}, {WS_WT}')
        a(f'buffer_store_dwordx4 {vreg(T+12+4*i, 4)}, v5, s[{rWS}:{rWS+3}], s{sT2} offen{sc}')
        if i == 2:
            a.label('L_ssm_no_c2')
    a('s_waitcnt lgkmcnt(0)')
    for i in range(3):
        a(f's_add_u32 s{sT2}, s89, {40 + i}')
        a(f's_mul_i32 s{sT2}, s{sT2}, 5')
        a(f's_add_u32 s{sT2}, s{sT2}, s88')
        a(f's_lshl_b32 s{sT2}, s{sT2}, 10')
        a(f's_add_u32 s{sT2}, s{sT2}, {WS_WT}')
        a.vmem(f'buffer_store_dwordx4 {vreg(T+4*i, 4)}, v5, s[{rWS}:{rWS+3}], s{sT2} offen{sc}', 'prepst')
    a(f's_cmp_ge_u32 s{sB}, 8')
    a('s_cbranch_scc1 L_ssm_no_gate')
    a(f's_mov_b32 s{sHI}, 0xffff0000')
    U = T + 24
    for i in range(2):
        a(f'v_mov_b32 v{U+6}, 0')
        for d in range(10):
            x, w = GX + 10 * i + d, GW + d
            a(f'v_lshlrev_b32 v{U}, 16, v{x}')
            a(f'v_and_b32 v{U+1}, s{sHI}, v{x}')
            a(f'v_lshlrev_b32 v{U+2}, 16, v{w}')
            a(f'v_and_b32 v{U+3}, s{sHI}, v{w}')
            a(f'v_mul_f32 v{U}, v{U}, v{U+2}')
            a(f'v_mul_f32 v{U+1}, v{U+1}, v{U+3}')
            a(f'v_cvt_pk_bf16_f32 v{U}, v{U}, v{U+1}')
            a(f'v_lshlrev_b32 v{U+1}, 16, v{U}')
            a(f'v_and_b32 v{U}, s{sHI}, v{U}')
            a(f'v_add_f32 v{U+6}, v{U+6}, v{U+1}')
            a(f'v_add_f32 v{U+6}, v{U+6}, v{U}')
        z = U + 6
        for sh in (1, 2, 4, 8):
            a('s_nop 1')
            a(f'v_add_f32_dpp v{z}, v{z}, v{z} row_ror:{sh} row_mask:0xf bank_mask:0xf')
        a('s_nop 1')
        a(f'ds_swizzle_b32 v{U}, v{z} offset:0x401f')
        a('s_waitcnt lgkmcnt(0)')
        a(f'v_add_f32 v{z}, v{z}, v{U}')
        a(f'v_cvt_pk_bf16_f32 v{z}, v{z}, v{z}')
        a(f'v_lshlrev_b32 v{z}, 16, v{z}')
        a(f'v_mul_f32 v{z}, 0xbfb8aa3b, v{z}')
        a(f'v_exp_f32 v{z}, v{z}')
        a('s_nop 0')
        a(f'v_add_f32 v{z}, 1.0, v{z}')
        a(f'v_rcp_f32 v{z}, v{z}')
        a('s_nop 0')
        a(f'v_cvt_pk_bf16_f32 v{z}, v{z}, v{z}')
        a(f'v_lshlrev_b32 v{U+4+i}, 16, v{z}')
    a(f'v_lshrrev_b32 v4, 5, v{vL}')
    a(f'v_add_u32 v4, s99, v4')
    a('v_lshlrev_b32 v4, 2, v4')
    a(f'v_add_u32 v4, {WS_G}, v4')
    a('s_mov_b32 exec_lo, 1')
    a('s_mov_b32 exec_hi, 1')
    a(f'buffer_store_dword v{U+4}, v4, s[{rWS}:{rWS+3}], 0 offen{sc}')
    a(f'buffer_store_dword v{U+5}, v4, s[{rWS}:{rWS+3}], 0 offen offset:8{sc}')
    a('s_mov_b64 exec, -1')
    a.label('L_ssm_no_gate')


def gen_ffn(a):
    R = OPT['R_FFN']
    SLOT = 49152
    NST = 10
    vL = 1
    vX, vW = 10, 14
    vRX = [22 + 4 * s for s in range(R)]
    vRW = [34 + 4 * s for s in range(R)]
    ACC = 128
    PK = 64
    sc = ' sc1' if OPT['st_sc1'] else ''

    def acc(mf, nt):
        return ACC + 16 * (2 * mf + nt)

    def fX(s, nt, kk):
        return 96 * s + 16 * nt + 4 * kk

    def fW(s, mf, kk):
        return 96 * s + 32 + 16 * mf + 4 * kk

    a(f's_lshr_b32 s{sWT}, s{sW}, 1')
    a(f's_and_b32 s{sWC}, s{sW}, 1')
    srd(a, rX, sX, X_BYTES)
    srd(a, rB, sW1, W1_BYTES)
    srd(a, rWS, sWS, WS_SIZE)
    a(f'v_lshrrev_b32 v2, 4, v{vL}')
    a(f'v_and_b32 v3, 7, v{vL}')
    a('v_xor_b32 v3, v2, v3')
    a('v_lshlrev_b32 v3, 4, v3')
    a('v_xor_b32 v4, 64, v3')
    a(f's_lshl_b32 s{sT0}, s{sC}, 7')
    a(f's_lshl_b32 s{sT1}, s{sW}, 5')
    a(f's_add_u32 s{sT0}, s{sT0}, s{sT1}')
    a(f'v_lshrrev_b32 v5, 3, v{vL}')
    a(f'v_add_u32 v5, s{sT0}, v5')
    a(f's_movk_i32 s{sT2}, 1280')
    a(f'v_mul_lo_u32 v5, v5, s{sT2}')
    for i in range(4):
        a(f'v_add_u32 v{vX+i}, v5, v{3 + (i & 1)}')
        if i:
            a(f'v_add_u32 v{vX+i}, {9216*i}, v{vX+i}')
    a(f'v_lshrrev_b32 v2, 5, v{vL}')
    a(f's_lshl_b32 s{sT0}, s{sW}, 4')
    a(f'v_add_u32 v5, s{sT0}, v2')
    a(f's_movk_i32 s{sT2}, 3072')
    a(f'v_mul_lo_u32 v5, v5, s{sT2}')
    a(f's_lshl_b32 s{sT0}, s{sB}, 9')
    a(f'v_add_u32 v5, s{sT0}, v5')
    a(f'v_and_b32 v6, 31, v{vL}')
    a('v_lshlrev_b32 v7, 2, v2')
    a('v_xor_b32 v6, v6, v7')
    a('v_lshlrev_b32 v6, 4, v6')
    a('v_xor_b32 v7, 128, v6')
    for i in range(8):
        a(f'v_add_u32 v{vW+i}, v5, v{6 + (i & 1)}')
        off = 6144 * i - 1024 * (i & 3)
        if off:
            a(f'v_add_u32 v{vW+i}, {off}, v{vW+i}')
    a(f's_lshl_b32 s{sMA}, s{sW}, 12')
    a(f's_lshl_b32 s{sMB}, s{sW}, 13')
    a(f's_add_u32 s{sMB}, s{sMB}, 16384')

    def dma(stage):
        slot = stage % R
        out = []
        out.append(('s', f's_mov_b32 s{sK}, {stage*128}'))
        out.append(('s', f's_add_u32 m0, s{sMA}, {slot*SLOT}'))
        out.append(('s', f's_mov_b32 s{sK2}, {stage*64*3072}'))
        for i in range(4):
            out.append(('v', f'buffer_load_dwordx4 v{vX+i}, s[{rX}:{rX+3}], s{sK} offen offset:{1024*i} lds', f'st{stage}'))
        for h in range(2):
            out.append(('s', f's_add_u32 m0, s{sMB}, {slot*SLOT + 4096*h}'))
            out.append(('s', 's_nop 0'))
            for i in range(4):
                out.append(('v', f'buffer_load_dwordx4 v{vW+4*h+i}, s[{rB}:{rB+3}], s{sK2} offen offset:{1024*i} lds', f'st{stage}'))
        return out

    def emit(items):
        for it in items:
            if isinstance(it, str):
                a(it)
            elif it[0] == 'v':
                a.vmem(it[1], it[2])
            else:
                a(it[1])

    for st in range(R):
        emit(dma(st))
    stamp(a, 1)

    a(f'v_and_b32 v9, 31, v{vL}')
    a(f'v_lshrrev_b32 v2, 5, v{vL}')
    a(f'v_bfe_u32 v3, v{vL}, 1, 3')
    a('v_xor_b32 v2, v2, v3')
    a('v_lshlrev_b32 v2, 4, v2')
    a('v_lshl_add_u32 v2, v9, 7, v2')
    a(f's_lshl_b32 s{sT0}, s{sWT}, 13')
    a(f'v_add_u32 v2, s{sT0}, v2')
    for kk in range(4):
        for s in range(R):
            if kk:
                a(f'v_xor_b32 v{vRX[s]+kk}, {32*kk}, v2')
            else:
                a(f'v_mov_b32 v{vRX[s]+kk}, v2')
            if s:
                a(f'v_add_u32 v{vRX[s]+kk}, {SLOT*s}, v{vRX[s]+kk}')
    a(f'v_lshrrev_b32 v2, 5, v{vL}')
    a('v_lshlrev_b32 v2, 3, v2')
    a(f'v_bfe_u32 v3, v{vL}, 2, 2')
    a('v_add_u32 v2, v2, v3')
    a('v_lshlrev_b32 v2, 9, v2')
    a(f'v_bfe_u32 v4, v{vL}, 4, 1')
    a('v_lshl_add_u32 v2, v4, 5, v2')
    a(f'v_and_b32 v4, 3, v{vL}')
    a('v_lshl_add_u32 v2, v4, 3, v2')
    a('v_lshl_add_u32 v2, v3, 6, v2')
    a(f's_lshl_b32 s{sT0}, s{sWC}, 8')
    a(f's_add_u32 s{sT0}, s{sT0}, 16384')
    a(f'v_add_u32 v2, s{sT0}, v2')
    for mf in range(4):
        for s in range(R):
            if mf:
                a(f'v_xor_b32 v{vRW[s]+mf}, {64*mf}, v2')
            else:
                a(f'v_mov_b32 v{vRW[s]+mf}, v2')
            if s:
                a(f'v_add_u32 v{vRW[s]+mf}, {SLOT*s}, v{vRW[s]+mf}')

    def reads(stage):
        slot = stage % R
        rs = stage & 1
        out = []
        for kk in range(4):
            for nt in range(2):
                out.append(f'ds_read_b128 {areg(fX(rs, nt, kk), 4)}, v{vRX[slot]+kk} offset:{4096*nt}')
            for mf in range(4):
                for n in range(2):
                    out.append(f'ds_read_b64_tr_b16 {areg(fW(rs, mf, kk) + 2*n, 2)}, v{vRW[slot]+mf} offset:{8192*kk + 2048*n}')
        return out

    def mf_(rs, stage, kk, mf, nt):
        c = '0' if (stage == 0 and kk == 0) else vreg(acc(mf, nt), 16)
        return f'v_mfma_f32_32x32x16_bf16 {vreg(acc(mf, nt), 16)}, {areg(fW(rs, mf, kk), 4)}, {areg(fX(rs, nt, kk), 4)}, {c}'

    a.wait_vm('st0')
    a('s_barrier')
    stamp(a, 2)
    emit(reads(0))
    for s in range(NST - 1):
        a.comment(f'FFN stage {s}')
        a('s_waitcnt lgkmcnt(0)')
        rs = s & 1
        mm = [mf_(rs, s, kk, mf, nt) for kk in range(4) for mf in range(4) for nt in range(2)]
        a(mm[0])
        a(mm[1])
        mm = mm[2:]
        a.wait_vm(f'st{s+1}')
        a('s_barrier')
        fill = []
        if s + R < NST:
            fill += dma(s + R)
        fill += reads(s + 1)
        emit(interleave(mm, fill, 0, len(mm) - 2))
    s = NST - 1
    rs = s & 1
    a('s_waitcnt lgkmcnt(0)')
    stamp(a, 3)
    a(f'v_bfe_u32 v2, v{vL}, 4, 1')
    a('v_lshlrev_b32 v2, 10, v2')
    a(f'v_lshrrev_b32 v3, 5, v{vL}')
    a('v_lshl_add_u32 v2, v3, 8, v2')
    a(f'v_and_b32 v3, 15, v{vL}')
    a('v_lshl_add_u32 v2, v3, 4, v2')
    a(f's_lshl_b32 s{sT0}, s{sC}, 1')
    a(f's_add_u32 s{sT0}, s{sT0}, s{sWT}')
    a(f's_mul_i32 s{sT0}, s{sT0}, 88')
    a(f's_lshl_b32 s{sT1}, s{sB}, 3')
    a(f's_add_u32 s{sT0}, s{sT0}, s{sT1}')
    a(f's_lshl_b32 s{sT1}, s{sWC}, 2')
    a(f's_add_u32 s{sT0}, s{sT0}, s{sT1}')
    a(f's_add_u32 s{sT0}, s{sT0}, 40')
    a(f's_lshl_b32 s{sT0}, s{sT0}, 12')
    for mf in range(1, 4):
        a(f's_add_u32 s{sT0+mf}, s{sT0}, {4096*mf}')
    tiles = [(mf, nt) for mf in range(4) for nt in range(2)]

    def epi(idx):
        mf, nt = tiles[idx]
        base = PK + 8 * (idx & 3)
        out = []
        for P_ in range(2):
            for d in range(4):
                r = acc(mf, nt) + 8 * P_ + 2 * d
                out.append(f'v_cvt_pk_bf16_f32 v{base+4*P_+d}, v{r}, v{r+1}')
            for d in range(4):
                out.append(f'v_pk_max_i16 v{base+4*P_+d}, v{base+4*P_+d}, 0')
            out.append(('v', f'buffer_store_dwordx4 {vreg(base+4*P_, 4)}, v2, s[{rWS}:{rWS+3}], s{sT0+mf} offen offset:{2048*nt + 512*P_}{sc}', 'h1'))
        return out

    for idx, (mf, nt) in enumerate(tiles):
        mm = [mf_(rs, s, kk, mf, nt) for kk in range(4)]
        if idx >= 2:
            e = epi(idx - 2)
            a(mm[0])
            if idx == 2:
                a('s_nop 7')
            emit(e[:5])
            a(mm[1])
            emit(e[5:10])
            a(mm[2])
            emit(e[10:14])
            a(mm[3])
            emit(e[14:])
        else:
            emit(mm)
    emit(epi(len(tiles) - 2))
    emit(epi(len(tiles) - 1))
    stamp(a, 4)
    stamps_out(a, 5, 0)
    a('s_endpgm')


def gen_k1(a):
    a.label('k1_kernel')
    a('s_cmp_ge_u32 s2, 256')
    a('s_cbranch_scc1 L_k1_exit')
    load_ptrs(a)
    stamp(a, 0)
    a('v_and_b32 v1, 63, v0')
    a('v_lshrrev_b32 v2, 6, v0')
    a('s_nop 0')
    a(f'v_readfirstlane_b32 s{sW}, v2')
    a(f's_and_b32 s{sT0}, s2, 3')
    a(f's_lshl_b32 s{sT0}, s{sT0}, 2')
    a(f's_bfe_u32 s{sT1}, s2, 0x20003')
    a(f's_add_u32 s{sC}, s{sT0}, s{sT1}')
    a(f's_lshr_b32 s{sT1}, s2, 5')
    a(f's_bfe_u32 s{sT2}, s2, 0x10002')
    a('s_waitcnt lgkmcnt(0)')
    a(f's_cmp_ge_u32 s{sT1}, 5')
    a('s_cbranch_scc1 L_ffn')
    a(f's_mul_i32 s{sT2}, s{sT2}, 5')
    a(f's_add_u32 s{sB}, s{sT2}, s{sT1}')
    sub = Asm()
    gen_ssm(sub)
    a.lines += sub.lines
    a.label('L_ffn')
    a(f's_mul_i32 s{sT2}, s{sT2}, 3')
    a(f's_add_u32 s{sB}, s{sT2}, s{sT1}')
    a(f's_sub_u32 s{sB}, s{sB}, 5')
    sub = Asm()
    gen_ffn(sub)
    a.lines += sub.lines
    a.label('L_k1_exit')
    a('s_endpgm')


def gen_k2(a):
    D = OPT['K2D']
    vL = 1
    ACC = 128
    PSZ = 64 * 336
    XS, DS, GG = 16, 26, 36
    SK = 44
    OA = 64
    RA = 70

    def acc(tb, nt):
        return ACC + 4 * (5 * tb + nt)

    def fH(d, tb):
        return 36 * d + 4 * tb

    def fWt(d, nt):
        return 36 * d + 16 + 4 * nt

    a.label('k2_kernel')
    a('s_cmp_ge_u32 s2, 256')
    a('s_cbranch_scc1 L_k2_exit')
    load_ptrs(a)
    stamp(a, 0)
    a('v_and_b32 v1, 63, v0')
    a('v_lshrrev_b32 v2, 6, v0')
    a('s_nop 0')
    a(f'v_readfirstlane_b32 s{sW}, v2')
    a(f's_and_b32 s{sT0}, s2, 3')
    a(f's_lshl_b32 s{sT0}, s{sT0}, 3')
    a(f's_bfe_u32 s{sT1}, s2, 0x30003')
    a(f's_add_u32 s{sC}, s{sT0}, s{sT1}')
    a(f's_bfe_u32 s{sT0}, s2, 0x10002')
    a(f's_lshl_b32 s{sT0}, s{sT0}, 2')
    a(f's_lshr_b32 s{sT1}, s2, 6')
    a(f's_add_u32 s{sB}, s{sT0}, s{sT1}')
    a(f's_mul_i32 s{sT0}, s{sW}, 20')
    a(f's_cmp_eq_u32 s{sW}, 3')
    a(f's_cselect_b32 s{sT1}, 4, 0')
    a(f's_add_u32 s{sT0}, s{sT0}, s{sT1}')
    a(f's_cmp_ge_u32 s{sW}, 2')
    a(f's_cselect_b32 s{sT1}, 24, 20')
    a('s_waitcnt lgkmcnt(0)')
    a(f's_mul_i32 s{sT2}, s{sC}, 88')
    a(f's_add_u32 s{sT2}, s{sT2}, s{sT0}')
    a(f's_lshl_b32 s{sT2}, s{sT2}, 12')
    a(f's_add_u32 s{rT0}, s{sWS}, s{sT2}')
    a(f's_addc_u32 s{rT0+1}, s{sWS+1}, 0')
    a(f's_lshl_b32 s{rT0+2}, s{sT1}, 12')
    a(f's_mov_b32 s{rT0+3}, 0x20000')
    a(f's_mul_i32 s{sT2}, s{sB}, 88')
    a(f's_add_u32 s{sT2}, s{sT2}, s{sT0}')
    a(f's_mul_i32 s{sT2}, s{sT2}, 5120')
    a(f's_add_u32 s{sT2}, s{sT2}, {WS_WT}')
    a(f's_add_u32 s{rT1}, s{sWS}, s{sT2}')
    a(f's_addc_u32 s{rT1+1}, s{sWS+1}, 0')
    a(f's_mul_i32 s{rT1+2}, s{sT1}, 5120')
    a(f's_mov_b32 s{rT1+3}, 0x20000')
    a(f'v_lshlrev_b32 v2, 4, v{vL}')
    a('v_add_u32 v3, 4096, v2')

    def loads(d, tag):
        out = []
        for tb in range(4):
            out.append(('v', f'buffer_load_dwordx4 {areg(fH(d, tb), 4)}, v2, s[{rT0}:{rT0+3}], s{sK} offen offset:{1024*tb}', tag))
        for nt in range(4):
            out.append(('v', f'buffer_load_dwordx4 {areg(fWt(d, nt), 4)}, v2, s[{rT1}:{rT1+3}], s{sK2} offen offset:{1024*nt}', tag))
        out.append(('v', f'buffer_load_dwordx4 {areg(fWt(d, 4), 4)}, v3, s[{rT1}:{rT1+3}], s{sK2} offen', tag))
        return out

    def emit(items):
        for it in items:
            if isinstance(it, str):
                a(it)
            elif it[0] == 'v':
                a.vmem(it[1], it[2])
            else:
                a(it[1])

    a(f's_mov_b32 s{sK}, 0')
    a(f's_mov_b32 s{sK2}, 0')
    for d in range(D - 1):
        emit(loads(d, f'k{d}'))
        a(f's_add_u32 s{sK}, s{sK}, 4096')
        a(f's_add_u32 s{sK2}, s{sK2}, 5120')
    srd(a, rX, sX, X_BYTES)
    srd(a, rB, sDSK, 1280)
    srd(a, rWS, sWS, WS_SIZE)
    for i in range(5):
        a(f'v_add_u32 v4, {64*i}, v{vL}')
        a('v_mul_u32_u24 v5, 0xccd, v4')
        a('v_lshrrev_b32 v5, 16, v5')
        a('v_mul_u32_u24 v6, 20, v5')
        a('v_sub_u32 v6, v4, v6')
        a(f's_lshl_b32 s{sT2}, s{sW}, 4')
        a(f'v_add_u32 v5, s{sT2}, v5')
        a('v_mul_u32_u24 v7, 336, v5')
        a(f'v_lshl_add_u32 v{RA+i}, v6, 4, v7')
        a(f's_lshl_b32 s{sT2}, s{sC}, 6')
        a(f'v_add_u32 v5, s{sT2}, v5')
        a(f's_mul_i32 s{sT3}, s{sB}, 80')
        a('v_lshlrev_b32 v6, 2, v6')
        a(f'v_add_u32 v6, s{sT3}, v6')
        a('v_mul_u32_u24 v7, 640, v5')
        a('v_add_u32 v7, v7, v6')
        a(f'v_lshlrev_b32 v{OA+i}, 2, v7')
        a('v_lshlrev_b32 v7, 1, v7')
        a.vmem(f'buffer_load_dwordx2 {vreg(XS+2*i, 2)}, v7, s[{rX}:{rX+3}], 0 offen', 'epi')
        a('v_lshlrev_b32 v6, 1, v6')
        a.vmem(f'buffer_load_dwordx2 {vreg(DS+2*i, 2)}, v6, s[{rB}:{rB+3}], 0 offen', 'epi')
        a('v_lshlrev_b32 v5, 2, v5')
        a(f'v_add_u32 v5, {WS_G}, v5')
        a.vmem(f'buffer_load_dword v{GG+i}, v5, s[{rWS}:{rWS+3}], 0 offen', 'epi')
    stamp(a, 1)
    for r in range(80):
        a(f'v_mov_b32 v{ACC+r}, 0')
    a.wait_vm('epi')
    emit(loads(D - 1, 'last'))
    a(f's_add_u32 s{sK}, s{sK}, 4096')
    a(f's_add_u32 s{sK2}, s{sK2}, 5120')
    a(f's_mov_b32 s{sHI}, 0xffff0000')
    for i in range(5):
        for h in range(2):
            x, dd, o = XS + 2*i + h, DS + 2*i + h, SK + 4*i + 2*h
            a(f'v_lshlrev_b32 v4, 16, v{x}')
            a(f'v_and_b32 v5, s{sHI}, v{x}')
            a(f'v_lshlrev_b32 v6, 16, v{dd}')
            a(f'v_and_b32 v7, s{sHI}, v{dd}')
            a('v_mul_f32 v4, v4, v6')
            a('v_mul_f32 v5, v5, v7')
            a('v_cvt_pk_bf16_f32 v4, v4, v5')
            a(f'v_lshlrev_b32 v{o}, 16, v4')
            a(f'v_and_b32 v{o+1}, s{sHI}, v4')
    NSTEP = 24
    assert NSTEP % D == 0
    a(f's_mov_b32 s{sT5}, {NSTEP // D}')
    a.label('L_k2_loop')
    for d in range(D):
        a(f's_waitcnt vmcnt({9*(D-1)})')
        ld = [it[1] for it in loads(d, 'x')]
        for tb in range(4):
            for nt in range(5):
                a(f'v_mfma_f32_16x16x32_bf16 {vreg(acc(tb, nt), 4)}, {areg(fWt(d, nt), 4)}, {areg(fH(d, tb), 4)}, {vreg(acc(tb, nt), 4)}')
                if tb == 3:
                    a(ld[4 + nt])
            a(ld[tb])
        a(f's_add_u32 s{sK}, s{sK}, 4096')
        a(f's_add_u32 s{sK2}, s{sK2}, 5120')
    a(f's_sub_u32 s{sT5}, s{sT5}, 1')
    a(f's_cmp_lg_u32 s{sT5}, 0')
    a('s_cbranch_scc1 L_k2_loop')
    a.vm = []
    stamp(a, 2)
    a(f'v_and_b32 v4, 15, v{vL}')
    a('v_mul_u32_u24 v4, 336, v4')
    a(f'v_lshrrev_b32 v5, 4, v{vL}')
    a('v_lshl_add_u32 v4, v5, 4, v4')
    a(f's_mul_i32 s{sT0}, s{sW}, {PSZ}')
    a(f'v_add_u32 v4, s{sT0}, v4')
    a('s_nop 4')
    for tb in range(4):
        for nt in range(5):
            a(f'ds_write_b128 v4, {vreg(acc(tb, nt), 4)} offset:{5376*tb + 64*nt}')
    a('s_waitcnt vmcnt(0) lgkmcnt(0)')
    a('s_barrier')
    srd(a, rT0, sOUT, OUT_BYTES)
    RD = 128
    def rd(i):
        for p in range(4):
            a(f'ds_read_b128 {vreg(RD + 16*i + 4*p, 4)}, v{RA+i} offset:{PSZ*p}')
    rd(0)
    rd(1)
    for i in range(5):
        b = RD + 16 * i
        if i + 2 < 5:
            rd(i + 2)
        a(f's_waitcnt lgkmcnt({4 * min(2, 4 - i)})')
        g = GG + i
        a(f'v_pk_add_f32 {pair(b)}, {pair(b)}, {pair(b+4)}')
        a(f'v_pk_add_f32 {pair(b+2)}, {pair(b+2)}, {pair(b+6)}')
        a(f'v_pk_add_f32 {pair(b+8)}, {pair(b+8)}, {pair(b+12)}')
        a(f'v_pk_add_f32 {pair(b+10)}, {pair(b+10)}, {pair(b+14)}')
        a(f'v_sub_f32 v4, 1.0, v{g}')
        a('v_cvt_pk_bf16_f32 v4, v4, v4')
        a('v_lshlrev_b32 v4, 16, v4')
        for h in range(2):
            bb = b + 8 + 2 * h
            a(f'v_cvt_pk_bf16_f32 v5, v{bb}, v{bb+1}')
            a('v_lshlrev_b32 v6, 16, v5')
            a(f'v_and_b32 v7, s{sHI}, v5')
            a('v_mul_f32 v6, v4, v6')
            a('v_mul_f32 v7, v4, v7')
            a('v_cvt_pk_bf16_f32 v5, v6, v7')
            a(f'v_lshlrev_b32 v{bb}, 16, v5')
            a(f'v_and_b32 v{bb+1}, s{sHI}, v5')
        for h in range(2):
            a(f'v_pk_add_f32 {pair(b+2*h)}, {pair(b+2*h)}, {pair(SK+4*i+2*h)}')
        for e in range(4):
            a(f'v_fma_f32 v{b+e}, v{g}, v{b+e}, v{b+8+e}')
        a(f'buffer_store_dwordx4 {vreg(b, 4)}, v{OA+i}, s[{rT0}:{rT0+3}], 0 offen')
    stamp(a, 3)
    stamps_out(a, 4, 1)
    a.label('L_k2_exit')
    a('s_endpgm')


HEADER = open('cdna_kernels/' + NAME + '.s.ref').read().split('; Override launch')[0]


def kd(name, nsgpr=102):
    return f'''.amdhsa_kernel {name}
  .amdhsa_next_free_vgpr 512
  .amdhsa_next_free_sgpr {nsgpr}
  .amdhsa_accum_offset 256
  .amdhsa_group_segment_fixed_size 0
  .amdhsa_kernarg_size 128
  .amdhsa_user_sgpr_count 2
  .amdhsa_user_sgpr_kernarg_segment_ptr 1
  .amdhsa_system_sgpr_workgroup_id_x 1
  .amdhsa_float_denorm_mode_32 3
.end_amdhsa_kernel
'''


def build():
    k1 = Asm()
    gen_k1(k1)
    k2 = Asm()
    gen_k2(k2)
    probs = check_hazards(k1.lines, 'k1') + check_hazards(k2.lines, 'k2')
    lds1 = max(OPT['R_SSM'] * 32768, OPT['R_FFN'] * 49152)
    out = HEADER
    out += f'; @launch kernel=k1_kernel grid=(256,1,1) block=(256,1,1) lds={lds1}\n'
    out += f'; @launch kernel=k2_kernel grid=(256,1,1) block=(256,1,1) lds={4*64*336}\n'
    out += '.amdgcn_target "amdgcn-amd-amdhsa--gfx950"\n.text\n'
    for name, k in (('k1_kernel', k1), ('k2_kernel', k2)):
        out += f'.globl {name}\n.p2align 8\n.type {name},@function\n' + k.text()
    out += '.section .rodata,"a"\n.p2align 6\n' + kd('k1_kernel') + '.p2align 6\n' + kd('k2_kernel')
    return out, probs


if __name__ == '__main__':
    dst = sys.argv[1] if len(sys.argv) > 1 else 'cdna_kernels/' + NAME + '.s'
    for kv in sys.argv[2:]:
        k, v = kv.split('=')
        OPT[k] = type(OPT[k])(int(v)) if not isinstance(OPT[k], str) else v
    text, probs = build()
    for p in probs:
        print('HAZARD', p)
    open(dst, 'w').write(text)
    print('wrote', dst, len(text), 'bytes', len(probs), 'hazards')
```

```python
import sys
from asmlib import Asm, interleave, check_hazards

NAME = 'gated_mix__ssm_conv_s5__dense_activation_relu__prompt'

WS_HF = 0
WS_WT = 32 * 88 * 4096
WS_G = WS_WT + 8 * 88 * 5120
WS_AGG = WS_G + 8192
WS_DIAG = 16 << 20
WS_SIZE = 32 << 20

X_BYTES = 2048 * 1280
B_BYTES = 640 * 1280
W1_BYTES = 640 * 3072
W2_BYTES = 1536 * 1280
OUT_BYTES = 2048 * 640 * 4

OPT = dict(R_SSM=5, R_FFN=3, diag=False, st_sc1=False, K2D=4, k2_nomfma=0, k2_same=0, k2_bal=0,
           ssm_dma_pos=[0, 2, 4, 6, 8, 10, 12, 13], ffn_dma_pos=[0, 3, 5, 8, 10, 13, 15, 18, 20, 23, 25, 28])

sX, sLRE, sLIM, sBRE, sBIM, sCRE, sCIM, sLDT = 4, 6, 8, 10, 12, 14, 16, 18
sDSK, sBX, sW1, sW2, sGW, sOUT, sDBG, sWS = 20, 22, 24, 26, 28, 30, 32, 34
sC, sB, sW, sWT, sWC = 36, 37, 38, 39, 40
sT0, sT1, sT2, sT3, sT4, sT5 = 41, 42, 43, 44, 45, 46
sNONCE = 47
rX, rB, rWS, rT0, rT1 = 48, 52, 56, 60, 64
sK, sMA, sMB, sK2 = 68, 69, 70, 71
sTS = 72
sHI = 92
sM0, sM1 = 94, 96


def srd(a, r, ptr, size, off=0):
    if off:
        a(f's_add_u32 s{r}, s{ptr}, {off}')
        a(f's_addc_u32 s{r+1}, s{ptr+1}, 0')
    else:
        a(f's_mov_b32 s{r}, s{ptr}')
        a(f's_mov_b32 s{r+1}, s{ptr+1}')
    a(f's_mov_b32 s{r+2}, {size}')
    a(f's_mov_b32 s{r+3}, 0x20000')


def load_ptrs(a):
    a('s_load_dwordx16 s[4:19], s[0:1], 0')
    a('s_load_dwordx16 s[20:35], s[0:1], 64')


def stamp(a, idx):
    if OPT['diag']:
        if idx == 0:
            a('s_memtime s[100:101]')
        a(f's_memrealtime s[{sTS}:{sTS + 1}]')
        a('s_waitcnt lgkmcnt(0)')
        a(f'v_writelane_b32 v255, s{sTS}, {idx}')


def stamps_out(a, n, kern):
    if not OPT['diag']:
        return
    a('s_memtime s[42:43]')
    a('s_waitcnt lgkmcnt(0)')
    a('s_sub_u32 s100, s42, s100')
    a(f's_lshl_b32 s{sT0}, s2, 8')
    a(f's_lshl_b32 s{sT1}, s{sW}, 6')
    a(f's_add_u32 s{sT0}, s{sT0}, s{sT1}')
    a(f's_add_u32 s{sT0}, s{sT0}, {WS_DIAG + kern * 65536}')
    a('v_writelane_b32 v255, s100, 15')
    a('v_and_b32 v3, 15, v0')
    a('v_lshlrev_b32 v3, 2, v3')
    a(f'v_add_u32 v2, s{sT0}, v3')
    a('s_mov_b32 exec_lo, 0xffff')
    a('s_mov_b32 exec_hi, 0')
    a(f'buffer_store_dword v255, v2, s[{rWS}:{rWS+3}], 0 offen')
    a(f'v_add_u32 v2, {2 * 65536}, v2')
    a(f'buffer_store_dword v254, v2, s[{rWS}:{rWS+3}], 0 offen')
    a('s_mov_b64 exec, -1')


def sched(mm, slots):
    out = []
    for i, m in enumerate(mm):
        out.append(m)
        out += slots.get(i, [])
    return out


def spread(groups, positions, slots):
    for g, p in zip(groups, positions):
        slots.setdefault(p, []).extend(g)


def dma_groups(items):
    out, cur = [], []
    for it in items:
        cur.append(it)
        if not isinstance(it, str) and it[0] == 'v':
            out.append(cur)
            cur = []
    assert not cur
    return out


def stage_stamp(a, s):
    if OPT['diag']:
        if s > 0:
            a(f'v_writelane_b32 v254, s{72 + 12 + 2*((s-1) & 1)}, {s-1}')
        a(f's_memtime s[{72 + 12 + 2*(s & 1)}:{72 + 13 + 2*(s & 1)}]')


def vreg(r, n=1):
    return f'v{r}' if n == 1 else f'v[{r}:{r+n-1}]'


def areg(r, n=1):
    return f'a{r}' if n == 1 else f'a[{r}:{r+n-1}]'


def pair(r):
    return f'v[{r}:{r+1}]'


def pk_fma(a, d, s0, s1, s2, b0=None, b1=None, swap1=False, neg0=None):
    osel = [0, 0, 0]
    ohi = [1, 1, 1]
    if b0 is not None:
        osel[0] = ohi[0] = b0
    if b1 is not None:
        osel[1] = ohi[1] = b1
    if swap1:
        osel[1], ohi[1] = 1, 0
    s = f'v_pk_fma_f32 {pair(d)}, {pair(s0)}, {pair(s1)}, {pair(s2)} op_sel:[{osel[0]},{osel[1]},{osel[2]}] op_sel_hi:[{ohi[0]},{ohi[1]},{ohi[2]}]'
    if neg0 == 'both':
        s += ' neg_lo:[1,0,0] neg_hi:[1,0,0]'
    elif neg0 == 'lo':
        s += ' neg_lo:[1,0,0]'
    return s


def pk_mul(d, s0, s1, b0=None):
    osel = [0, 0]
    ohi = [1, 1]
    if b0 is not None:
        osel[0] = ohi[0] = b0
    return f'v_pk_mul_f32 {pair(d)}, {pair(s0)}, {pair(s1)} op_sel:[{osel[0]},{osel[1]}] op_sel_hi:[{ohi[0]},{ohi[1]}]'


def cmul_s(a, dr, di, ar, ai, br, bi, tmp):
    a(f'v_mul_f32 v{dr}, v{ar}, v{br}')
    a(f'v_mul_f32 v{di}, v{ar}, v{bi}')
    a(f'v_fma_f32 v{dr}, -v{ai}, v{bi}, v{dr}')
    a(f'v_fma_f32 v{di}, v{ai}, v{br}, v{di}')


def csq(a, dr, di, sr, si):
    a(f'v_mul_f32 v{dr}, v{sr}, v{sr}')
    a(f'v_mul_f32 v{di}, v{sr}, v{si}')
    a(f'v_fma_f32 v{dr}, -v{si}, v{si}, v{dr}')
    a(f'v_add_f32 v{di}, v{di}, v{di}')


def gen_ssm(a):
    R = OPT['R_SSM']
    SLOT = 32768
    NST = 10
    vL = 1
    vA, vB_ = 10, 14
    nset = (R + 1) // 2
    vRA = [18 + 8 * s for s in range(nset)]
    vRB = [22 + 8 * s for s in range(nset)]
    LAM, L16, L128, L256, COEF = 42, 44, 46, 48, 50
    WRE, WIM = 52, 54
    SRE, SIM, TRE, TIM = 56, 58, 60, 62
    G = 64
    P = 80
    GR = 96
    ACC = 128
    TW = 192
    CP = 208
    GX = 220
    GW = 240
    sc = ' sc1' if OPT['st_sc1'] else ''

    def acc(m, part):
        return ACC + 32 * m + 16 * part

    def ure(u):
        return acc(u >> 3, 0) + 2 * (u & 7)

    def uim(u):
        return acc(u >> 3, 1) + 2 * (u & 7)

    def fA(s, m, kk):
        return 64 * s + 16 * m + 4 * kk

    def fB(s, part, kk):
        return 64 * s + 32 + 16 * part + 4 * kk

    a(f's_lshr_b32 s{sWT}, s{sW}, 1')
    a(f's_and_b32 s{sWC}, s{sW}, 1')
    srd(a, rX, sX, X_BYTES)
    a(f's_cmp_eq_u32 s{sWC}, 0')
    a(f's_cselect_b32 s{rB}, s{sBRE}, s{sBIM}')
    a(f's_cselect_b32 s{rB+1}, s{sBRE+1}, s{sBIM+1}')
    a(f's_mov_b32 s{rB+2}, {B_BYTES}')
    a(f's_mov_b32 s{rB+3}, 0x20000')
    srd(a, rWS, sWS, WS_SIZE)
    a(f'v_lshrrev_b32 v2, 4, v{vL}')
    a(f'v_and_b32 v3, 7, v{vL}')
    a('v_xor_b32 v3, v2, v3')
    a('v_lshlrev_b32 v3, 4, v3')
    a('v_xor_b32 v4, 64, v3')
    a(f'v_lshrrev_b32 v5, 5, v{vL}')
    a('v_lshlrev_b32 v5, 5, v5')
    a(f'v_bfe_u32 v6, v{vL}, 3, 1')
    a('v_lshl_add_u32 v5, v6, 4, v5')
    a(f'v_bfe_u32 v6, v{vL}, 4, 1')
    a('v_add_u32 v5, v5, v6')
    a(f's_lshl_b32 s{sT0}, s{sC}, 7')
    a(f's_lshl_b32 s{sT1}, s{sWT}, 6')
    a(f's_add_u32 s{sT0}, s{sT0}, s{sT1}')
    a(f's_lshl_b32 s{sT1}, s{sWC}, 3')
    a(f's_add_u32 s{sT0}, s{sT0}, s{sT1}')
    a(f'v_add_u32 v5, s{sT0}, v5')
    a(f's_movk_i32 s{sT2}, 1280')
    a(f'v_mul_lo_u32 v5, v5, s{sT2}')
    for i in range(4):
        a(f'v_add_u32 v{vA+i}, v5, v{3 + (i & 1)}')
        if i:
            a(f'v_add_u32 v{vA+i}, {1536*i}, v{vA+i}')
    a(f's_lshl_b32 s{sT0}, s{sB}, 6')
    a(f's_lshl_b32 s{sT1}, s{sWT}, 5')
    a(f's_add_u32 s{sT0}, s{sT0}, s{sT1}')
    a(f'v_lshrrev_b32 v5, 3, v{vL}')
    a(f'v_add_u32 v5, s{sT0}, v5')
    a(f'v_mul_lo_u32 v5, v5, s{sT2}')
    for i in range(4):
        a(f'v_add_u32 v{vB_+i}, v5, v{3 + (i & 1)}')
        if i:
            a(f'v_add_u32 v{vB_+i}, {9216*i}, v{vB_+i}')
    a(f's_lshl_b32 s{sMA}, s{sW}, 12')
    a(f's_add_u32 s{sMB}, s{sMA}, 16384')

    def dma(stage):
        slot = stage % R
        out = []
        out.append(('s', f's_add_u32 m0, s{sMA}, {slot*SLOT}'))
        out.append(('s', f's_mov_b32 s{sK}, {stage*128}'))
        for i in range(4):
            out.append(('v', f'buffer_load_dwordx4 v{vA+i}, s[{rX}:{rX+3}], s{sK} offen offset:{1024*i} lds', f'st{stage}'))
        out.append(('s', f's_add_u32 m0, s{sMB}, {slot*SLOT}'))
        out.append(('s', 's_nop 0'))
        for i in range(4):
            out.append(('v', f'buffer_load_dwordx4 v{vB_+i}, s[{rB}:{rB+3}], s{sK} offen offset:{1024*i} lds', f'st{stage}'))
        return out

    def emit(items):
        for it in items:
            if isinstance(it, str):
                a(it)
            elif it[0] == 'v':
                a.vmem(it[1], it[2])
            else:
                a(it[1])

    a(f's_lshl_b32 s{sT0}, s{sB}, 6')
    a(f's_lshl_b32 s{sT1}, s{sWC}, 5')
    a(f's_add_u32 s{sT0}, s{sT0}, s{sT1}')
    a(f'v_and_b32 v60, 31, v{vL}')
    a(f'v_add_u32 v60, s{sT0}, v60')
    a('v_lshlrev_b32 v60, 1, v60')
    a.vmem(f'global_load_ushort v61, v60, s[{sLRE}:{sLRE+1}]', 'lam')
    a.vmem(f'global_load_ushort v62, v60, s[{sLIM}:{sLIM+1}]', 'lam')
    a.vmem(f'global_load_ushort v63, v60, s[{sLDT}:{sLDT+1}]', 'lam')

    for st in range(R):
        emit(dma(st))
    stamp(a, 1)

    a(f's_cmp_lg_u32 s{sW}, 0')
    a('s_cbranch_scc1 L_ssm_no_nonce')
    a(f's_memrealtime s[{sT0+1}:{sT0+2}]')
    a('s_waitcnt lgkmcnt(0)')
    a(f's_or_b32 s{sT0+1}, s{sT0+1}, 1')
    a(f'v_mov_b32 v250, s{sT0+1}')
    a('v_mov_b32 v251, 0')
    a('v_mov_b32 v252, 0')
    a(f'v_mov_b32 v253, s{sT0+1}')
    a('s_mov_b64 exec, 1')
    a(f'global_atomic_cmpswap v250, v252, v[250:251], s[{sDBG}:{sDBG+1}] sc0 sc1')
    a('s_mov_b64 exec, -1')
    a.label('L_ssm_no_nonce')

    a(f'v_and_b32 v9, 31, v{vL}')
    a(f'v_lshrrev_b32 v2, 5, v{vL}')
    a(f'v_bfe_u32 v{TRE}, v{vL}, 1, 3')
    a(f'v_xor_b32 v2, v2, v{TRE}')
    a('v_lshlrev_b32 v2, 4, v2')
    a('v_lshl_add_u32 v2, v9, 7, v2')
    a(f's_lshl_b32 s{sT0}, s{sWT}, 13')
    a(f's_lshl_b32 s{sT1}, s{sWC}, 13')
    a(f's_add_u32 s{sT1}, s{sT1}, 16384')
    for kk in range(4):
        if kk:
            a(f'v_xor_b32 v{TRE}, {32*kk}, v2')
        else:
            a(f'v_mov_b32 v{TRE}, v2')
        for s in range(nset):
            a(f'v_add_u32 v{vRA[s]+kk}, s{sT0}, v{TRE}')
            a(f'v_add_u32 v{vRB[s]+kk}, s{sT1}, v{TRE}')
            if s:
                a(f'v_add_u32 v{vRA[s]+kk}, {65536*s}, v{vRA[s]+kk}')
                a(f'v_add_u32 v{vRB[s]+kk}, {65536*s}, v{vRB[s]+kk}')

    a.wait_vm('lam')
    a('v_lshlrev_b32 v3, 16, v61')
    a('v_lshlrev_b32 v4, 16, v62')
    a('v_lshlrev_b32 v5, 16, v63')
    a('v_mul_f32 v5, 0x3fb8aa3b, v5')
    a('v_exp_f32 v5, v5')
    a('s_nop 0')
    a('v_cvt_pk_bf16_f32 v5, v5, v5')
    a('v_lshlrev_b32 v5, 16, v5')
    a(f'v_mul_f32 v{TRE}, v5, v3')
    a(f'v_mul_f32 v{TRE+1}, v5, v4')
    a(f'v_mul_f32 v{TRE}, 0x3fb8aa3b, v{TRE}')
    a(f'v_exp_f32 v{TRE}, v{TRE}')
    a(f'v_mul_f32 v{TRE+1}, 0.15915494, v{TRE+1}')
    a(f'v_rndne_f32 v{TIM}, v{TRE+1}')
    a(f'v_sub_f32 v{TRE+1}, v{TRE+1}, v{TIM}')
    a(f'v_cos_f32 v{TIM}, v{TRE+1}')
    a(f'v_sin_f32 v{TIM+1}, v{TRE+1}')
    a('s_nop 0')
    a(f'v_mul_f32 v{LAM}, v{TRE}, v{TIM}')
    a(f'v_mul_f32 v{LAM+1}, v{TRE}, v{TIM+1}')
    a(f'v_add_f32 v{TRE}, -1.0, v{LAM}')
    a(f'v_mul_f32 v{TIM}, v3, v3')
    a(f'v_fmac_f32 v{TIM}, v4, v4')
    a(f'v_rcp_f32 v{TIM}, v{TIM}')
    a(f'v_mul_f32 v{COEF}, v{TRE}, v3')
    a(f'v_fmac_f32 v{COEF}, v{LAM+1}, v4')
    a(f'v_mul_f32 v{COEF+1}, v{LAM+1}, v3')
    a(f'v_fma_f32 v{COEF+1}, -v{TRE}, v4, v{COEF+1}')
    a(f'v_add_f32 v{TIM}, v{TIM}, v{TIM}')
    a(f'v_mul_f32 v{COEF}, v{COEF}, v{TIM}')
    a(f'v_mul_f32 v{COEF+1}, v{COEF+1}, v{TIM}')
    t0, t1 = G, G + 2
    csq(a, t0, t0 + 1, LAM, LAM + 1)
    csq(a, t1, t1 + 1, t0, t0 + 1)
    csq(a, t0, t0 + 1, t1, t1 + 1)
    csq(a, L16, L16 + 1, t0, t0 + 1)
    L32, L64 = G + 4, G + 6
    csq(a, L32, L32 + 1, L16, L16 + 1)
    csq(a, L64, L64 + 1, L32, L32 + 1)
    csq(a, L128, L128 + 1, L64, L64 + 1)
    csq(a, L256, L256 + 1, L128, L128 + 1)
    a(f'v_cmp_lt_u32 vcc, 31, v{vL}')
    a(f's_cmp_eq_u32 s{sWT}, 1')
    a(f's_cselect_b64 s[{sM0}:{sM0+1}], -1, 0')
    a(f'v_mov_b32 v{t0}, 1.0')
    a(f'v_mov_b32 v{t0+1}, 0')
    a(f'v_cndmask_b32 v{t1}, v{t0}, v{L32}, vcc')
    a(f'v_cndmask_b32 v{t1+1}, v{t0+1}, v{L32+1}, vcc')
    a(f'v_cndmask_b32 v{t0}, v{t0}, v{L64}, s[{sM0}:{sM0+1}]')
    a(f'v_cndmask_b32 v{t0+1}, v{t0+1}, v{L64+1}, s[{sM0}:{sM0+1}]')
    cmul_s(a, WRE, WIM, t0, t0 + 1, t1, t1 + 1, None)
    cmul_s(a, WRE + 1, WIM + 1, WRE, WIM, L16, L16 + 1, None)

    TB0 = 8192 if R == 5 else 2 * SLOT + 8192
    AGB = 0 if R == 5 else 2 * SLOT
    PB = TB0 + 4 * 8192 if R == 5 else 4 * SLOT
    a(f'v_and_b32 v2, 31, v{vL}')
    a('v_lshrrev_b32 v3, 2, v2')
    a('v_lshlrev_b32 v3, 4, v3')
    a('v_and_b32 v2, 3, v2')
    a('v_lshl_add_u32 v3, v2, 2, v3')
    a(f'v_lshrrev_b32 v2, 5, v{vL}')
    a('v_lshl_add_u32 v3, v2, 11, v3')
    a(f's_lshl_b32 s{sT0}, s{sW}, 13')
    a(f's_add_u32 s{sT0}, s{sT0}, {TB0}')
    for u in range(16):
        a(f'v_xor_b32 v{TW+u}, {(u << 7) | ((u >> 1) << 4)}, v3')
        a(f'v_add_u32 v{TW+u}, s{sT0}, v{TW+u}')

    def reads(stage):
        slot = stage % R
        st_, off = slot // 2, (slot % 2) * SLOT
        rs = stage & 1
        out = []
        for kk in range(4):
            for m in range(2):
                out.append(f'ds_read_b128 {areg(fA(rs, m, kk), 4)}, v{vRA[st_]+kk} offset:{off + 4096*m}')
            for part in range(2):
                out.append(f'ds_read_b128 {areg(fB(rs, part, kk), 4)}, v{vRB[st_]+kk} offset:{off + 4096*part}')
        return out

    def mfmas(stage, order='k'):
        rs = stage & 1
        out = []
        if order == 'k':
            seq = [(kk, m, part) for kk in range(4) for m in range(2) for part in range(2)]
        else:
            seq = [(kk, m, part) for m in range(2) for kk in range(4) for part in range(2)]
        for kk, m, part in seq:
            c = '0' if (stage == 0 and kk == 0) else vreg(acc(m, part), 16)
            out.append(f'v_mfma_f32_32x32x16_bf16 {vreg(acc(m, part), 16)}, {areg(fA(rs, m, kk), 4)}, {areg(fB(rs, part, kk), 4)}, {c}')
        return out

    a.wait_vm('st0')
    a('s_barrier')
    stamp(a, 2)
    emit(reads(0))

    for s in range(NST):
        a.comment(f'SSM stage {s}')
        a('s_waitcnt lgkmcnt(0)')
        mm = mfmas(s, 'k' if s < NST - 1 else 'm')
        slots = {}
        if s + 1 < NST:
            a(mm[0])
            a(mm[1])
            mm = mm[2:]
            a.wait_vm(f'st{s+1}')
            a('s_barrier')
            stage_stamp(a, s)
            rd = reads(s + 1)
            spread([rd[2*i:2*i+2] for i in range(8)], range(8), slots)
            if s + R < NST:
                spread(dma_groups(dma(s + R)), OPT['ssm_dma_pos'], slots)
        emit(sched(mm, slots))
        if s == 6:
            prep_loads(a, R, PB, CP, GX, GW, vL)
    stamp(a, 3)

    a('s_nop 7')
    a('s_nop 3')
    for u in range(1, 16):
        pr = ure(0) if u == 1 else SRE
        pi = uim(0) if u == 1 else SIM
        a(pk_fma(a, TRE, LAM, pi, ure(u), b0=1, neg0='both'))
        a(pk_fma(a, TIM, LAM, pr, uim(u), b0=1))
        a(pk_fma(a, SRE, LAM, pr, TRE, b0=0))
        a(pk_fma(a, SIM, LAM, pi, TIM, b0=0))
    a(f'v_and_b32 v2, 31, v{vL}')
    a(f's_lshl_b32 s{sT0}, s{sWC}, 5')
    a(f'v_add_u32 v2, s{sT0}, v2')
    a('v_lshlrev_b32 v2, 3, v2')
    a(f'v_add_u32 v2, {AGB}, v2') if AGB else None
    a(f'v_lshrrev_b32 v3, 5, v{vL}')
    a('v_lshl_add_u32 v3, v3, 10, v2')
    a(f's_lshl_b32 s{sT0}, s{sWT}, 11')
    a(f'v_add_u32 v3, s{sT0}, v3')
    a(f'ds_write2_b32 v3, v{SRE}, v{SIM} offset0:0 offset1:1')
    a(f'ds_write2_b32 v3, v{SRE+1}, v{SIM+1} offset0:128 offset1:129')
    a(f's_cmp_lg_u32 s{sW}, 0')
    a('s_cbranch_scc1 L_ssm_no_nonce2')
    a('v_cmp_eq_u32 vcc, 0, v250')
    a('s_nop 1')
    a('v_cndmask_b32 v8, v250, v253, vcc')
    a(f'v_mov_b32 v7, {AGB + 4096}')
    a('s_mov_b64 exec, 1')
    a('ds_write_b32 v7, v8')
    a('s_mov_b64 exec, -1')
    a.label('L_ssm_no_nonce2')
    a('s_waitcnt lgkmcnt(0)')
    a('s_barrier')
    a(f'v_mov_b32 v7, {AGB + 4096}')
    a('ds_read_b32 v8, v7')
    for s in range(8):
        a(f'ds_read_b64 {pair(G+2*s)}, v2 offset:{512*s}')
    a('s_waitcnt lgkmcnt(0)')
    a(f'v_mov_b32 v{P}, v{G}')
    a(f'v_mov_b32 v{P+1}, v{G+1}')
    for s in range(1, 8):
        a(pk_fma(a, TRE, L16, P + 2*(s-1), G + 2*s, b0=0))
        a(pk_fma(a, P + 2*s, L16, P + 2*(s-1), TRE, b0=1, swap1=True, neg0='lo'))
    a(f'v_mov_b32 v{GR}, v{P+14}')
    a(f'v_mov_b32 v{GR+1}, v8')
    a(f'v_mov_b32 v{GR+2}, v{P+15}')
    a(f'v_mov_b32 v{GR+3}, v8')
    a(f's_lshl_b32 s{sT0}, s{sB}, 4')
    a(f's_add_u32 s{sT0}, s{sT0}, s{sC}')
    a(f's_lshl_b32 s{sT0}, s{sT0}, 10')
    a(f's_add_u32 s{sT0}, s{sT0}, {WS_AGG}')
    a('v_lshlrev_b32 v3, 1, v2')
    if AGB:
        a(f'v_subrev_u32 v3, {2*AGB}, v3')
    a(f's_cmp_lg_u32 s{sWT}, 0')
    a('s_cbranch_scc1 L_ssm_no_pub')
    a('s_mov_b32 exec_hi, 0')
    a(f'buffer_store_dwordx4 {vreg(GR, 4)}, v3, s[{rWS}:{rWS+3}], s{sT0} offen sc0 sc1')
    a('s_mov_b64 exec, -1')
    a.label('L_ssm_no_pub')
    a(f'v_readfirstlane_b32 s{sNONCE}, v8')
    stamp(a, 4)

    a(f'v_cmp_lt_u32 vcc, 31, v{vL}')
    a(f'v_mov_b32 v{TRE}, 0')
    a('s_nop 0')
    PS = G
    for comp in range(2):
        a(f'v_cndmask_b32 v{TIM}, v{TRE}, v{P+2+comp}, vcc')
        a(f'v_cndmask_b32 v{TIM+1}, v{P+6+comp}, v{P+10+comp}, vcc')
        a(f'v_cndmask_b32 v{PS+comp}, v{TIM}, v{TIM+1}, s[{sM0}:{sM0+1}]')
        a(f'v_cndmask_b32 v{TIM}, v{P+comp}, v{P+4+comp}, vcc')
        a(f'v_cndmask_b32 v{TIM+1}, v{P+8+comp}, v{P+12+comp}, vcc')
        a(f'v_cndmask_b32 v{PS+2+comp}, v{TIM}, v{TIM+1}, s[{sM0}:{sM0+1}]')
    CPR, CPI, CWR, CWI = G + 4, G + 6, G + 8, G + 10
    for sg_ in range(2):
        cmul_s(a, CPR + sg_, CPI + sg_, COEF, COEF + 1, PS + 2*sg_, PS + 2*sg_ + 1, None)
        cmul_s(a, CWR + sg_, CWI + sg_, COEF, COEF + 1, WRE + sg_, WIM + sg_, None)
    for u in range(16):
        a(pk_mul(TRE, COEF, uim(u), b0=1))
        a(pk_mul(TIM, COEF, ure(u), b0=1))
        a(f'v_pk_fma_f32 {pair(ure(u))}, {pair(COEF)}, {pair(ure(u))}, {pair(TRE)} op_sel:[0,0,0] op_sel_hi:[0,1,1] neg_lo:[0,0,1] neg_hi:[0,0,1]')
        a(pk_fma(a, uim(u), COEF, uim(u), TIM, b0=0))

    prep_finish(a, R, PB, CP, GX, GW, vL, sc)
    stamp(a, 5)

    a(f's_lshl_b32 s{sT0}, s{sB}, 14')
    a(f's_add_u32 s{sT0}, s{sT0}, {WS_AGG}')
    a(f's_add_u32 s{rT0}, s{sWS}, s{sT0}')
    a(f's_addc_u32 s{rT0+1}, s{sWS+1}, 0')
    a(f's_mov_b32 s{rT0+2}, 16384')
    a(f's_mov_b32 s{rT0+3}, 0x20000')
    a(f'v_lshrrev_b32 v2, 5, v{vL}')
    a(f's_sub_u32 s{sT1}, s{sC}, 1')
    a(f'v_sub_u32 v2, s{sT1}, v2')
    a('v_lshl_add_u32 v3, v2, 10, v3')
    LA = P
    for i in range(8):
        a(f'v_subrev_u32 v{LA+i}, {2048*i}, v3')
    a(f's_mov_b32 s{sT2}, 0')
    a.label('L_ssm_poll')
    for i in range(8):
        a(f'buffer_load_dwordx4 {vreg(GR+4*i, 4)}, v{LA+i}, s[{rT0}:{rT0+3}], 0 offen sc0 sc1')
    a('s_waitcnt vmcnt(0)')
    a.vm = []
    a(f's_mov_b64 s[{sM1}:{sM1+1}], -1')
    for i in range(8):
        a(f'v_cmp_eq_u32 vcc, s{sNONCE}, v{GR+4*i+1}')
        a(f'v_cmp_eq_u32 s[{sT3}:{sT4}], s{sNONCE}, v{GR+4*i+3}')
        a(f's_and_b64 vcc, vcc, s[{sT3}:{sT4}]')
        a(f'v_cmp_gt_i32 s[{sT3}:{sT4}], {2*i}, v2')
        a(f's_or_b64 vcc, vcc, s[{sT3}:{sT4}]')
        a(f's_and_b64 s[{sM1}:{sM1+1}], s[{sM1}:{sM1+1}], vcc')
    a(f's_cmp_eq_u64 s[{sM1}:{sM1+1}], -1')
    a('s_cbranch_scc1 L_ssm_poll_done')
    a(f's_add_u32 s{sT2}, s{sT2}, 1')
    a(f's_cmp_lt_u32 s{sT2}, 0x40000')
    a('s_cbranch_scc0 L_ssm_poll_done')
    a('s_sleep 2')
    a('s_branch L_ssm_poll')
    a.label('L_ssm_poll_done')
    stamp(a, 6)
    a(f'v_mov_b32 v{SRE}, v{GR+28}')
    a(f'v_mov_b32 v{SRE+1}, v{GR+30}')
    for i in range(6, -1, -1):
        a(f'v_mov_b32 v{TIM}, v{GR+4*i}')
        a(f'v_mov_b32 v{TIM+1}, v{GR+4*i+2}')
        a(pk_fma(a, TRE, L256, SRE, TIM, b0=0))
        a(pk_fma(a, SRE, L256, SRE, TRE, b0=1, swap1=True, neg0='lo'))
    cmul_s(a, TRE, TRE + 1, L128, L128 + 1, SRE, SRE + 1, None)
    a(f'v_cmp_lt_u32 vcc, 31, v{vL}')
    a('s_nop 1')
    a(f'v_cndmask_b32 v{SRE}, v{SRE}, v{TRE}, vcc')
    a(f'v_cndmask_b32 v{SRE+1}, v{SRE+1}, v{TRE+1}, vcc')
    a(f'v_mov_b32 v{TRE}, v{SRE}')
    a(f'v_mov_b32 v{TRE+1}, v{SRE+1}')
    a('s_nop 1')
    a(f'v_permlane32_swap_b32 v{SRE}, v{TRE}')
    a(f'v_permlane32_swap_b32 v{SRE+1}, v{TRE+1}')
    a('s_nop 1')
    a(f'v_add_f32 v{SRE}, v{SRE}, v{TRE}')
    a(f'v_add_f32 v{SRE+1}, v{SRE+1}, v{TRE+1}')
    HR, HI = TRE, TIM
    a(pk_fma(a, HR, CWR, SRE, CPR, b1=0))
    a(pk_fma(a, HI, CWR, SRE, CPI, b1=1))
    a(pk_fma(a, HR, CWI, SRE, HR, b1=1, neg0='both'))
    a(pk_fma(a, HI, CWI, SRE, HI, b1=0))
    D0 = GR
    for u in range(16):
        pr = HR if u == 0 else ure(u - 1)
        pi = HI if u == 0 else uim(u - 1)
        a(pk_fma(a, ure(u), LAM, pi, ure(u), b0=1, neg0='both'))
        a(pk_fma(a, uim(u), LAM, pr, uim(u), b0=1))
        a(pk_fma(a, ure(u), LAM, pr, ure(u), b0=0))
        a(pk_fma(a, uim(u), LAM, pi, uim(u), b0=0))
        if u:
            v = u - 1
            d = D0 + 2 * v
            a(f'v_cvt_pk_bf16_f32 v{d}, v{ure(v)}, -v{uim(v)}')
            a(f'v_cvt_pk_bf16_f32 v{d+1}, v{ure(v)+1}, -v{uim(v)+1}')
            a(f'ds_write2st64_b32 v{TW+v}, v{d}, v{d+1} offset0:0 offset1:16')
    v = 15
    d = D0 + 2 * v
    a(f'v_cvt_pk_bf16_f32 v{d}, v{ure(v)}, -v{uim(v)}')
    a(f'v_cvt_pk_bf16_f32 v{d+1}, v{ure(v)+1}, -v{uim(v)+1}')
    a(f'ds_write2st64_b32 v{TW+v}, v{d}, v{d+1} offset0:0 offset1:16')
    a(f'v_and_b32 v2, 15, v{vL}')
    a(f'v_lshrrev_b32 v3, 4, v{vL}')
    a('v_lshrrev_b32 v4, 1, v2')
    a('v_xor_b32 v3, v3, v4')
    a('v_lshlrev_b32 v3, 4, v3')
    a('v_lshl_add_u32 v3, v2, 7, v3')
    a(f's_lshl_b32 s{sT0}, s{sW}, 13')
    a(f's_add_u32 s{sT0}, s{sT0}, {TB0}')
    a(f'v_add_u32 v3, s{sT0}, v3')
    a('v_xor_b32 v4, 64, v3')
    rowoff = [0, 4096, 2048, 6144]
    for kp in range(2):
        for tb in range(4):
            a(f'ds_read_b128 {vreg(ACC + 16*kp + 4*tb, 4)}, v{3+kp} offset:{rowoff[tb]}')
    a(f's_lshl_b32 s{sT0}, s{sC}, 1')
    a(f's_add_u32 s{sT0}, s{sT0}, s{sWT}')
    a(f's_mul_i32 s{sT0}, s{sT0}, 88')
    a(f's_lshl_b32 s{sT1}, s{sB}, 2')
    a(f's_add_u32 s{sT0}, s{sT0}, s{sT1}')
    a(f's_lshl_b32 s{sT1}, s{sWC}, 1')
    a(f's_add_u32 s{sT0}, s{sT0}, s{sT1}')
    a(f's_lshl_b32 s{sT0}, s{sT0}, 12')
    a(f's_add_u32 s{sT1}, s{sT0}, 4096')
    a(f'v_lshlrev_b32 v2, 4, v{vL}')
    for kp in range(2):
        for tb in range(4):
            a(f's_waitcnt lgkmcnt({7 - (4*kp + tb)})')
            a(f'buffer_store_dwordx4 {vreg(ACC + 16*kp + 4*tb, 4)}, v2, s[{rWS}:{rWS+3}], s{sT0 + kp} offen offset:{1024*tb}{sc}')
    stamp(a, 7)
    stamps_out(a, 8, 0)
    a('s_endpgm')


def prep_loads(a, R, PB, CP, GX, GW, vL):
    a.comment('side-job loads')
    a(f's_cmp_ge_u32 s{sB}, 5')
    a(f's_cselect_b32 s{sT0}, 1, 0')
    a(f's_mul_i32 s{sT1}, s{sT0}, 5')
    a(f's_sub_u32 s{sT1}, s{sB}, s{sT1}')
    a(f's_lshr_b32 s{sT2}, s{sC}, 1')
    a(f's_and_b32 s{sT3}, s{sC}, 1')
    a(f's_mul_i32 s{sT4}, s{sT2}, 80')
    a(f's_lshl_b32 s{sT5}, s{sT1}, 4')
    a(f's_add_u32 s{sT4}, s{sT4}, s{sT5}')
    a(f's_mul_i32 s88, s{sT2}, 440')
    a(f's_add_u32 s88, s88, s{sT1}')
    a(f's_mul_i32 s89, s{sT3}, 24')
    a(f's_mul_i32 s{sT5}, s{sT0}, 12')
    a(f's_add_u32 s89, s89, s{sT5}')
    a(f's_mul_i32 s{sT5}, s{sW}, 3')
    a(f's_add_u32 s89, s89, s{sT5}')
    a(f's_lshl_b32 s90, s{sT3}, 3')
    a(f's_lshl_b32 s{sT5}, s{sT0}, 2')
    a(f's_add_u32 s90, s90, s{sT5}')
    a(f's_add_u32 s90, s90, s{sW}')
    a(f's_mov_b32 s91, s{sT3}')
    srd(a, rT0, sW2, W2_BYTES)
    a(f'v_lshrrev_b32 v2, 1, v{vL}')
    a(f's_movk_i32 s{sT5}, 1280')
    a(f'v_mul_lo_u32 v2, v2, s{sT5}')
    a(f'v_and_b32 v3, 1, v{vL}')
    a('v_lshl_add_u32 v2, v3, 4, v2')
    a(f's_lshl_b32 s{sT4}, s{sT4}, 1')
    a(f'v_add_u32 v2, s{sT4}, v2')
    a(f's_mul_i32 s93, s89, 40960')
    a(f's_mul_i32 s98, s{sW}, 3072')
    a(f's_add_u32 s98, s98, {PB}')
    for i in range(3):
        a(f's_add_u32 m0, s98, {1024*i}')
        a(f's_add_u32 s{sT5}, s93, {40960*i}')
        a.vmem(f'buffer_load_dwordx4 v2, s[{rT0}:{rT0+3}], s{sT5} offen lds', 'prep')
    srd(a, rT0, sCRE, 640 * 1280)
    srd(a, rT1, sCIM, 640 * 1280)
    a(f'v_and_b32 v2, 15, v{vL}')
    a(f's_lshr_b32 s{sT4}, s{sT4}, 1')
    a(f'v_add_u32 v2, s{sT4}, v2')
    a(f's_movk_i32 s{sT5}, 1280')
    a(f'v_mul_lo_u32 v2, v2, s{sT5}')
    a(f'v_lshrrev_b32 v3, 4, v{vL}')
    a('v_lshl_add_u32 v2, v3, 3, v2')
    for i in range(3):
        a(f's_add_u32 s{sT5}, s90, {16*i}')
        a(f's_min_u32 s{sT5}, s{sT5}, 39')
        a(f's_lshl_b32 s{sT5}, s{sT5}, 5')
        a.vmem(f'buffer_load_dwordx2 {vreg(CP+4*i, 2)}, v2, s[{rT0}:{rT0+3}], s{sT5} offen', 'prep')
        a.vmem(f'buffer_load_dwordx2 {vreg(CP+4*i+2, 2)}, v2, s[{rT1}:{rT1+3}], s{sT5} offen', 'prep')
    a(f's_min_u32 s{sT0}, s{sB}, 7')
    a(f's_lshl_b32 s{sT0}, s{sT0}, 4')
    a(f's_lshl_b32 s{sT1}, s{sC}, 7')
    a(f's_add_u32 s{sT0}, s{sT0}, s{sT1}')
    a(f's_lshl_b32 s{sT1}, s{sW}, 2')
    a(f's_add_u32 s99, s{sT0}, s{sT1}')
    a(f'v_and_b32 v2, 31, v{vL}')
    a('v_mul_u32_u24 v2, 40, v2')
    a(f'v_lshrrev_b32 v3, 5, v{vL}')
    a(f'v_add_u32 v3, s99, v3')
    a(f's_movk_i32 s{sT5}, 1280')
    a(f'v_mul_lo_u32 v3, v3, s{sT5}')
    a('v_add_u32 v3, v2, v3')
    srd(a, rT0, sGW, 1280)
    a.vmem(f'buffer_load_dwordx4 {vreg(GW, 4)}, v2, s[{rT0}:{rT0+3}], 0 offen', 'prep')
    a.vmem(f'buffer_load_dwordx4 {vreg(GW+4, 4)}, v2, s[{rT0}:{rT0+3}], 0 offen offset:16', 'prep')
    a.vmem(f'buffer_load_dwordx2 {vreg(GW+8, 2)}, v2, s[{rT0}:{rT0+3}], 0 offen offset:32', 'prep')
    for i in range(2):
        a.vmem(f'buffer_load_dwordx4 {vreg(GX+10*i, 4)}, v3, s[{rX}:{rX+3}], 0 offen offset:{2560*i}', 'prep')
        a.vmem(f'buffer_load_dwordx4 {vreg(GX+10*i+4, 4)}, v3, s[{rX}:{rX+3}], 0 offen offset:{2560*i+16}', 'prep')
        a.vmem(f'buffer_load_dwordx2 {vreg(GX+10*i+8, 2)}, v3, s[{rX}:{rX+3}], 0 offen offset:{2560*i+32}', 'prep')


def prep_finish(a, R, PB, CP, GX, GW, vL, sc):
    a.comment('side jobs')
    a.wait_vm('prep')
    T = 96
    a(f'v_lshrrev_b32 v4, 5, v{vL}')
    a('v_lshlrev_b32 v4, 4, v4')
    a(f'v_bfe_u32 v5, v{vL}, 4, 1')
    a('v_lshl_add_u32 v4, v5, 2, v4')
    a(f'v_bfe_u32 v5, v{vL}, 2, 2')
    a('v_add_u32 v4, v4, v5')
    a('v_lshlrev_b32 v4, 5, v4')
    a(f'v_and_b32 v5, 3, v{vL}')
    a('v_lshl_add_u32 v4, v5, 3, v4')
    a(f'v_add_u32 v4, s98, v4')
    for i in range(3):
        a(f'ds_read_b64_tr_b16 {vreg(T+4*i, 2)}, v4 offset:{1024*i}')
        a(f'ds_read_b64_tr_b16 {vreg(T+4*i+2, 2)}, v4 offset:{1024*i + 256}')
    a(f'v_lshlrev_b32 v5, 4, v{vL}')
    a(f's_mov_b32 s{sT0}, 0x05040100')
    a(f's_mov_b32 s{sT1}, 0x07060302')
    for i in range(3):
        o = T + 12 + 4 * i
        a(f'v_perm_b32 v{o}, v{CP+4*i+2}, v{CP+4*i}, s{sT0}')
        a(f'v_perm_b32 v{o+1}, v{CP+4*i+2}, v{CP+4*i}, s{sT1}')
        a(f'v_perm_b32 v{o+2}, v{CP+4*i+3}, v{CP+4*i+1}, s{sT0}')
        a(f'v_perm_b32 v{o+3}, v{CP+4*i+3}, v{CP+4*i+1}, s{sT1}')
    for i in range(3):
        a(f's_add_u32 s{sT2}, s90, {16*i}')
        if i == 2:
            a(f's_cmp_ge_u32 s{sT2}, 40')
            a('s_cbranch_scc1 L_ssm_no_c2')
        a(f's_mul_i32 s{sT2}, s{sT2}, 5')
        a(f's_add_u32 s{sT2}, s{sT2}, s88')
        a(f's_lshl_b32 s{sT2}, s{sT2}, 10')
        a(f's_add_u32 s{sT2}, s{sT2}, {WS_WT}')
        a(f'buffer_store_dwordx4 {vreg(T+12+4*i, 4)}, v5, s[{rWS}:{rWS+3}], s{sT2} offen{sc}')
        if i == 2:
            a.label('L_ssm_no_c2')
    a('s_waitcnt lgkmcnt(0)')
    for i in range(3):
        a(f's_add_u32 s{sT2}, s89, {40 + i}')
        a(f's_mul_i32 s{sT2}, s{sT2}, 5')
        a(f's_add_u32 s{sT2}, s{sT2}, s88')
        a(f's_lshl_b32 s{sT2}, s{sT2}, 10')
        a(f's_add_u32 s{sT2}, s{sT2}, {WS_WT}')
        a.vmem(f'buffer_store_dwordx4 {vreg(T+4*i, 4)}, v5, s[{rWS}:{rWS+3}], s{sT2} offen{sc}', 'prepst')
    a(f's_cmp_ge_u32 s{sB}, 8')
    a('s_cbranch_scc1 L_ssm_no_gate')
    a(f's_mov_b32 s{sHI}, 0xffff0000')
    U = T + 24
    for i in range(2):
        a(f'v_mov_b32 v{U+6}, 0')
        for d in range(10):
            x, w = GX + 10 * i + d, GW + d
            a(f'v_lshlrev_b32 v{U}, 16, v{x}')
            a(f'v_and_b32 v{U+1}, s{sHI}, v{x}')
            a(f'v_lshlrev_b32 v{U+2}, 16, v{w}')
            a(f'v_and_b32 v{U+3}, s{sHI}, v{w}')
            a(f'v_mul_f32 v{U}, v{U}, v{U+2}')
            a(f'v_mul_f32 v{U+1}, v{U+1}, v{U+3}')
            a(f'v_cvt_pk_bf16_f32 v{U}, v{U}, v{U+1}')
            a(f'v_lshlrev_b32 v{U+1}, 16, v{U}')
            a(f'v_and_b32 v{U}, s{sHI}, v{U}')
            a(f'v_add_f32 v{U+6}, v{U+6}, v{U+1}')
            a(f'v_add_f32 v{U+6}, v{U+6}, v{U}')
        z = U + 6
        for sh in (1, 2, 4, 8):
            a('s_nop 1')
            a(f'v_add_f32_dpp v{z}, v{z}, v{z} row_ror:{sh} row_mask:0xf bank_mask:0xf')
        a('s_nop 1')
        a(f'ds_swizzle_b32 v{U}, v{z} offset:0x401f')
        a('s_waitcnt lgkmcnt(0)')
        a(f'v_add_f32 v{z}, v{z}, v{U}')
        a(f'v_cvt_pk_bf16_f32 v{z}, v{z}, v{z}')
        a(f'v_lshlrev_b32 v{z}, 16, v{z}')
        a(f'v_mul_f32 v{z}, 0xbfb8aa3b, v{z}')
        a(f'v_exp_f32 v{z}, v{z}')
        a('s_nop 0')
        a(f'v_add_f32 v{z}, 1.0, v{z}')
        a(f'v_rcp_f32 v{z}, v{z}')
        a('s_nop 0')
        a(f'v_cvt_pk_bf16_f32 v{z}, v{z}, v{z}')
        a(f'v_lshlrev_b32 v{U+4+i}, 16, v{z}')
    a(f'v_lshrrev_b32 v4, 5, v{vL}')
    a(f'v_add_u32 v4, s99, v4')
    a('v_lshlrev_b32 v4, 2, v4')
    a(f'v_add_u32 v4, {WS_G}, v4')
    a('s_mov_b32 exec_lo, 1')
    a('s_mov_b32 exec_hi, 1')
    a(f'buffer_store_dword v{U+4}, v4, s[{rWS}:{rWS+3}], 0 offen{sc}')
    a(f'buffer_store_dword v{U+5}, v4, s[{rWS}:{rWS+3}], 0 offen offset:8{sc}')
    a('s_mov_b64 exec, -1')
    a.label('L_ssm_no_gate')


def gen_ffn(a):
    R = OPT['R_FFN']
    SLOT = 49152
    NST = 10
    vL = 1
    vX, vW = 10, 14
    vRX = [22 + 4 * s for s in range(R)]
    vRW = [34 + 4 * s for s in range(R)]
    ACC = 128
    PK = 64
    sc = ' sc1' if OPT['st_sc1'] else ''

    def acc(mf, nt):
        return ACC + 16 * (2 * mf + nt)

    def fX(s, nt, kk):
        return 96 * s + 16 * nt + 4 * kk

    def fW(s, mf, kk):
        return 96 * s + 32 + 16 * mf + 4 * kk

    a(f's_lshr_b32 s{sWT}, s{sW}, 1')
    a(f's_and_b32 s{sWC}, s{sW}, 1')
    srd(a, rX, sX, X_BYTES)
    srd(a, rB, sW1, W1_BYTES)
    srd(a, rWS, sWS, WS_SIZE)
    a(f'v_lshrrev_b32 v2, 4, v{vL}')
    a(f'v_and_b32 v3, 7, v{vL}')
    a('v_xor_b32 v3, v2, v3')
    a('v_lshlrev_b32 v3, 4, v3')
    a('v_xor_b32 v4, 64, v3')
    a(f's_lshl_b32 s{sT0}, s{sC}, 7')
    a(f's_lshl_b32 s{sT1}, s{sW}, 5')
    a(f's_add_u32 s{sT0}, s{sT0}, s{sT1}')
    a(f'v_lshrrev_b32 v5, 3, v{vL}')
    a(f'v_add_u32 v5, s{sT0}, v5')
    a(f's_movk_i32 s{sT2}, 1280')
    a(f'v_mul_lo_u32 v5, v5, s{sT2}')
    for i in range(4):
        a(f'v_add_u32 v{vX+i}, v5, v{3 + (i & 1)}')
        if i:
            a(f'v_add_u32 v{vX+i}, {9216*i}, v{vX+i}')
    a(f'v_lshrrev_b32 v2, 5, v{vL}')
    a(f's_lshl_b32 s{sT0}, s{sW}, 4')
    a(f'v_add_u32 v5, s{sT0}, v2')
    a(f's_movk_i32 s{sT2}, 3072')
    a(f'v_mul_lo_u32 v5, v5, s{sT2}')
    a(f's_lshl_b32 s{sT0}, s{sB}, 9')
    a(f'v_add_u32 v5, s{sT0}, v5')
    a(f'v_and_b32 v6, 31, v{vL}')
    a('v_lshlrev_b32 v7, 2, v2')
    a('v_xor_b32 v6, v6, v7')
    a('v_lshlrev_b32 v6, 4, v6')
    a('v_xor_b32 v7, 128, v6')
    for i in range(8):
        a(f'v_add_u32 v{vW+i}, v5, v{6 + (i & 1)}')
        off = 6144 * i - 1024 * (i & 3)
        if off:
            a(f'v_add_u32 v{vW+i}, {off}, v{vW+i}')
    a(f's_lshl_b32 s{sMA}, s{sW}, 12')
    a(f's_lshl_b32 s{sMB}, s{sW}, 13')
    a(f's_add_u32 s{sMB}, s{sMB}, 16384')

    def dma(stage):
        slot = stage % R
        out = []
        out.append(('s', f's_mov_b32 s{sK}, {stage*128}'))
        out.append(('s', f's_add_u32 m0, s{sMA}, {slot*SLOT}'))
        out.append(('s', f's_mov_b32 s{sK2}, {stage*64*3072}'))
        for i in range(4):
            out.append(('v', f'buffer_load_dwordx4 v{vX+i}, s[{rX}:{rX+3}], s{sK} offen offset:{1024*i} lds', f'st{stage}'))
        for h in range(2):
            out.append(('s', f's_add_u32 m0, s{sMB}, {slot*SLOT + 4096*h}'))
            out.append(('s', 's_nop 0'))
            for i in range(4):
                out.append(('v', f'buffer_load_dwordx4 v{vW+4*h+i}, s[{rB}:{rB+3}], s{sK2} offen offset:{1024*i} lds', f'st{stage}'))
        return out

    def emit(items):
        for it in items:
            if isinstance(it, str):
                a(it)
            elif it[0] == 'v':
                a.vmem(it[1], it[2])
            else:
                a(it[1])

    for st in range(R):
        emit(dma(st))
    stamp(a, 1)

    a(f'v_and_b32 v9, 31, v{vL}')
    a(f'v_lshrrev_b32 v2, 5, v{vL}')
    a(f'v_bfe_u32 v3, v{vL}, 1, 3')
    a('v_xor_b32 v2, v2, v3')
    a('v_lshlrev_b32 v2, 4, v2')
    a('v_lshl_add_u32 v2, v9, 7, v2')
    a(f's_lshl_b32 s{sT0}, s{sWT}, 13')
    a(f'v_add_u32 v2, s{sT0}, v2')
    for kk in range(4):
        for s in range(R):
            if kk:
                a(f'v_xor_b32 v{vRX[s]+kk}, {32*kk}, v2')
            else:
                a(f'v_mov_b32 v{vRX[s]+kk}, v2')
            if s:
                a(f'v_add_u32 v{vRX[s]+kk}, {SLOT*s}, v{vRX[s]+kk}')
    a(f'v_lshrrev_b32 v2, 5, v{vL}')
    a('v_lshlrev_b32 v2, 3, v2')
    a(f'v_bfe_u32 v3, v{vL}, 2, 2')
    a('v_add_u32 v2, v2, v3')
    a('v_lshlrev_b32 v2, 9, v2')
    a(f'v_bfe_u32 v4, v{vL}, 4, 1')
    a('v_lshl_add_u32 v2, v4, 5, v2')
    a(f'v_and_b32 v4, 3, v{vL}')
    a('v_lshl_add_u32 v2, v4, 3, v2')
    a('v_lshl_add_u32 v2, v3, 6, v2')
    a(f's_lshl_b32 s{sT0}, s{sWC}, 8')
    a(f's_add_u32 s{sT0}, s{sT0}, 16384')
    a(f'v_add_u32 v2, s{sT0}, v2')
    for mf in range(4):
        for s in range(R):
            if mf:
                a(f'v_xor_b32 v{vRW[s]+mf}, {64*mf}, v2')
            else:
                a(f'v_mov_b32 v{vRW[s]+mf}, v2')
            if s:
                a(f'v_add_u32 v{vRW[s]+mf}, {SLOT*s}, v{vRW[s]+mf}')

    def reads(stage):
        slot = stage % R
        rs = stage & 1
        out = []
        for kk in range(4):
            for nt in range(2):
                out.append(f'ds_read_b128 {areg(fX(rs, nt, kk), 4)}, v{vRX[slot]+kk} offset:{4096*nt}')
            for mf in range(4):
                for n in range(2):
                    out.append(f'ds_read_b64_tr_b16 {areg(fW(rs, mf, kk) + 2*n, 2)}, v{vRW[slot]+mf} offset:{8192*kk + 2048*n}')
        return out

    def mf_(rs, stage, kk, mf, nt):
        c = '0' if (stage == 0 and kk == 0) else vreg(acc(mf, nt), 16)
        return f'v_mfma_f32_32x32x16_bf16 {vreg(acc(mf, nt), 16)}, {areg(fW(rs, mf, kk), 4)}, {areg(fX(rs, nt, kk), 4)}, {c}'

    a.wait_vm('st0')
    a('s_barrier')
    stamp(a, 2)
    emit(reads(0))
    for s in range(NST - 1):
        a.comment(f'FFN stage {s}')
        a('s_waitcnt lgkmcnt(0)')
        rs = s & 1
        mm = [mf_(rs, s, kk, mf, nt) for kk in range(4) for mf in range(4) for nt in range(2)]
        a(mm[0])
        a(mm[1])
        mm = mm[2:]
        a.wait_vm(f'st{s+1}')
        a('s_barrier')
        stage_stamp(a, s)
        slots = {}
        rd = reads(s + 1)
        spread([rd[2*i:2*i+2] for i in range(20)], range(20), slots)
        if s + R < NST:
            spread(dma_groups(dma(s + R)), OPT['ffn_dma_pos'], slots)
        emit(sched(mm, slots))
    s = NST - 1
    rs = s & 1
    a('s_waitcnt lgkmcnt(0)')
    stamp(a, 3)
    a(f'v_bfe_u32 v2, v{vL}, 4, 1')
    a('v_lshlrev_b32 v2, 10, v2')
    a(f'v_lshrrev_b32 v3, 5, v{vL}')
    a('v_lshl_add_u32 v2, v3, 8, v2')
    a(f'v_and_b32 v3, 15, v{vL}')
    a('v_lshl_add_u32 v2, v3, 4, v2')
    a(f's_lshl_b32 s{sT0}, s{sC}, 1')
    a(f's_add_u32 s{sT0}, s{sT0}, s{sWT}')
    a(f's_mul_i32 s{sT0}, s{sT0}, 88')
    a(f's_lshl_b32 s{sT1}, s{sB}, 3')
    a(f's_add_u32 s{sT0}, s{sT0}, s{sT1}')
    a(f's_lshl_b32 s{sT1}, s{sWC}, 2')
    a(f's_add_u32 s{sT0}, s{sT0}, s{sT1}')
    a(f's_add_u32 s{sT0}, s{sT0}, 40')
    a(f's_lshl_b32 s{sT0}, s{sT0}, 12')
    for mf in range(1, 4):
        a(f's_add_u32 s{sT0+mf}, s{sT0}, {4096*mf}')
    tiles = [(mf, nt) for mf in range(4) for nt in range(2)]

    def epi(idx):
        mf, nt = tiles[idx]
        base = PK + 8 * (idx & 3)
        out = []
        for P_ in range(2):
            for d in range(4):
                r = acc(mf, nt) + 8 * P_ + 2 * d
                out.append(f'v_cvt_pk_bf16_f32 v{base+4*P_+d}, v{r}, v{r+1}')
            for d in range(4):
                out.append(f'v_pk_max_i16 v{base+4*P_+d}, v{base+4*P_+d}, 0')
            out.append(('v', f'buffer_store_dwordx4 {vreg(base+4*P_, 4)}, v2, s[{rWS}:{rWS+3}], s{sT0+mf} offen offset:{2048*nt + 512*P_}{sc}', 'h1'))
        return out

    for idx, (mf, nt) in enumerate(tiles):
        mm = [mf_(rs, s, kk, mf, nt) for kk in range(4)]
        if idx >= 2:
            e = epi(idx - 2)
            a(mm[0])
            if idx == 2:
                a('s_nop 7')
            emit(e[:5])
            a(mm[1])
            emit(e[5:10])
            a(mm[2])
            emit(e[10:14])
            a(mm[3])
            emit(e[14:])
        else:
            emit(mm)
    emit(epi(len(tiles) - 2))
    emit(epi(len(tiles) - 1))
    stamp(a, 4)
    stamps_out(a, 5, 0)
    a('s_endpgm')


def gen_k1(a):
    a.label('k1_kernel')
    a('s_cmp_ge_u32 s2, 256')
    a('s_cbranch_scc1 L_k1_exit')
    load_ptrs(a)
    stamp(a, 0)
    a('v_and_b32 v1, 63, v0')
    a('v_lshrrev_b32 v2, 6, v0')
    a('s_nop 0')
    a(f'v_readfirstlane_b32 s{sW}, v2')
    a(f's_and_b32 s{sT0}, s2, 3')
    a(f's_lshl_b32 s{sT0}, s{sT0}, 2')
    a(f's_bfe_u32 s{sT1}, s2, 0x20003')
    a(f's_add_u32 s{sC}, s{sT0}, s{sT1}')
    a(f's_lshr_b32 s{sT1}, s2, 5')
    a(f's_bfe_u32 s{sT2}, s2, 0x10002')
    a('s_waitcnt lgkmcnt(0)')
    a(f's_cmp_ge_u32 s{sT1}, 5')
    a('s_cbranch_scc1 L_ffn')
    a(f's_mul_i32 s{sT2}, s{sT2}, 5')
    a(f's_add_u32 s{sB}, s{sT2}, s{sT1}')
    sub = Asm()
    gen_ssm(sub)
    a.lines += sub.lines
    a.label('L_ffn')
    a(f's_mul_i32 s{sT2}, s{sT2}, 3')
    a(f's_add_u32 s{sB}, s{sT2}, s{sT1}')
    a(f's_sub_u32 s{sB}, s{sB}, 5')
    sub = Asm()
    gen_ffn(sub)
    a.lines += sub.lines
    a.label('L_k1_exit')
    a('s_endpgm')


def gen_k2(a):
    D = OPT['K2D']
    vL = 1
    ACC = 128
    PSZ = 64 * 336
    XS, DS, GG = 16, 26, 36
    SK = 44
    OA = 64
    RA = 70

    def acc(tb, nt):
        return ACC + 4 * (5 * tb + nt)

    def fH(d, tb):
        return 36 * d + 4 * tb

    def fWt(d, nt):
        return 36 * d + 16 + 4 * nt

    a.label('k2_kernel')
    a('s_cmp_ge_u32 s2, 256')
    a('s_cbranch_scc1 L_k2_exit')
    load_ptrs(a)
    stamp(a, 0)
    a('v_and_b32 v1, 63, v0')
    a('v_lshrrev_b32 v2, 6, v0')
    a('s_nop 0')
    a(f'v_readfirstlane_b32 s{sW}, v2')
    a(f's_and_b32 s{sT0}, s2, 3')
    a(f's_lshl_b32 s{sT0}, s{sT0}, 3')
    a(f's_bfe_u32 s{sT1}, s2, 0x30003')
    a(f's_add_u32 s{sC}, s{sT0}, s{sT1}')
    a(f's_bfe_u32 s{sT0}, s2, 0x10002')
    a(f's_lshl_b32 s{sT0}, s{sT0}, 2')
    a(f's_lshr_b32 s{sT1}, s2, 6')
    a(f's_add_u32 s{sB}, s{sT0}, s{sT1}')
    if OPT['k2_same']:
        a(f's_and_b32 s{sC}, s{sC}, {OPT["k2_same"] - 1}')
        a(f's_mov_b32 s{sB}, 0')
    a(f's_mul_i32 s{sT0}, s{sW}, 20')
    a(f's_cmp_eq_u32 s{sW}, 3')
    a(f's_cselect_b32 s{sT1}, 4, 0')
    a(f's_add_u32 s{sT0}, s{sT0}, s{sT1}')
    a(f's_cmp_ge_u32 s{sW}, 2')
    a(f's_cselect_b32 s{sT1}, 24, 20')
    if OPT['k2_bal']:
        a(f's_mul_i32 s{sT0}, s{sW}, 22')
        a(f's_mov_b32 s{sT1}, 22')
    a('s_waitcnt lgkmcnt(0)')
    a(f's_mul_i32 s{sT2}, s{sC}, 88')
    a(f's_add_u32 s{sT2}, s{sT2}, s{sT0}')
    a(f's_lshl_b32 s{sT2}, s{sT2}, 12')
    a(f's_add_u32 s{rT0}, s{sWS}, s{sT2}')
    a(f's_addc_u32 s{rT0+1}, s{sWS+1}, 0')
    a(f's_lshl_b32 s{rT0+2}, s{sT1}, 12')
    a(f's_mov_b32 s{rT0+3}, 0x20000')
    a(f's_mul_i32 s{sT2}, s{sB}, 88')
    a(f's_add_u32 s{sT2}, s{sT2}, s{sT0}')
    a(f's_mul_i32 s{sT2}, s{sT2}, 5120')
    a(f's_add_u32 s{sT2}, s{sT2}, {WS_WT}')
    a(f's_add_u32 s{rT1}, s{sWS}, s{sT2}')
    a(f's_addc_u32 s{rT1+1}, s{sWS+1}, 0')
    a(f's_mul_i32 s{rT1+2}, s{sT1}, 5120')
    a(f's_mov_b32 s{rT1+3}, 0x20000')
    a(f'v_lshlrev_b32 v2, 4, v{vL}')
    a('v_add_u32 v3, 4096, v2')

    def loads(d, tag):
        out = []
        for tb in range(4):
            out.append(('v', f'buffer_load_dwordx4 {areg(fH(d, tb), 4)}, v2, s[{rT0}:{rT0+3}], s{sK} offen offset:{1024*tb}', tag))
        for nt in range(4):
            out.append(('v', f'buffer_load_dwordx4 {areg(fWt(d, nt), 4)}, v2, s[{rT1}:{rT1+3}], s{sK2} offen offset:{1024*nt}', tag))
        out.append(('v', f'buffer_load_dwordx4 {areg(fWt(d, 4), 4)}, v3, s[{rT1}:{rT1+3}], s{sK2} offen', tag))
        return out

    def emit(items):
        for it in items:
            if isinstance(it, str):
                a(it)
            elif it[0] == 'v':
                a.vmem(it[1], it[2])
            else:
                a(it[1])

    a(f's_mov_b32 s{sK}, 0')
    a(f's_mov_b32 s{sK2}, 0')
    for d in range(D - 1):
        emit(loads(d, f'k{d}'))
        a(f's_add_u32 s{sK}, s{sK}, 4096')
        a(f's_add_u32 s{sK2}, s{sK2}, 5120')
    srd(a, rX, sX, X_BYTES)
    srd(a, rB, sDSK, 1280)
    srd(a, rWS, sWS, WS_SIZE)
    for i in range(5):
        a(f'v_add_u32 v4, {64*i}, v{vL}')
        a('v_mul_u32_u24 v5, 0xccd, v4')
        a('v_lshrrev_b32 v5, 16, v5')
        a('v_mul_u32_u24 v6, 20, v5')
        a('v_sub_u32 v6, v4, v6')
        a(f's_lshl_b32 s{sT2}, s{sW}, 4')
        a(f'v_add_u32 v5, s{sT2}, v5')
        a('v_mul_u32_u24 v7, 336, v5')
        a(f'v_lshl_add_u32 v{RA+i}, v6, 4, v7')
        a(f's_lshl_b32 s{sT2}, s{sC}, 6')
        a(f'v_add_u32 v5, s{sT2}, v5')
        a(f's_mul_i32 s{sT3}, s{sB}, 80')
        a('v_lshlrev_b32 v6, 2, v6')
        a(f'v_add_u32 v6, s{sT3}, v6')
        a('v_mul_u32_u24 v7, 640, v5')
        a('v_add_u32 v7, v7, v6')
        a(f'v_lshlrev_b32 v{OA+i}, 2, v7')
        a('v_lshlrev_b32 v7, 1, v7')
        a.vmem(f'buffer_load_dwordx2 {vreg(XS+2*i, 2)}, v7, s[{rX}:{rX+3}], 0 offen', 'epi')
        a('v_lshlrev_b32 v6, 1, v6')
        a.vmem(f'buffer_load_dwordx2 {vreg(DS+2*i, 2)}, v6, s[{rB}:{rB+3}], 0 offen', 'epi')
        a('v_lshlrev_b32 v5, 2, v5')
        a(f'v_add_u32 v5, {WS_G}, v5')
        a.vmem(f'buffer_load_dword v{GG+i}, v5, s[{rWS}:{rWS+3}], 0 offen', 'epi')
    stamp(a, 1)
    for r in range(80):
        a(f'v_mov_b32 v{ACC+r}, 0')
    a.wait_vm('epi')
    emit(loads(D - 1, 'last'))
    a(f's_add_u32 s{sK}, s{sK}, 4096')
    a(f's_add_u32 s{sK2}, s{sK2}, 5120')
    a(f's_mov_b32 s{sHI}, 0xffff0000')
    for i in range(5):
        for h in range(2):
            x, dd, o = XS + 2*i + h, DS + 2*i + h, SK + 4*i + 2*h
            a(f'v_lshlrev_b32 v4, 16, v{x}')
            a(f'v_and_b32 v5, s{sHI}, v{x}')
            a(f'v_lshlrev_b32 v6, 16, v{dd}')
            a(f'v_and_b32 v7, s{sHI}, v{dd}')
            a('v_mul_f32 v4, v4, v6')
            a('v_mul_f32 v5, v5, v7')
            a('v_cvt_pk_bf16_f32 v4, v4, v5')
            a(f'v_lshlrev_b32 v{o}, 16, v4')
            a(f'v_and_b32 v{o+1}, s{sHI}, v4')
    def step(d, with_loads, wait):
        a(f's_waitcnt vmcnt({wait})')
        ld = [it[1] for it in loads(d, 'x')] if with_loads else None
        for tb in range(4):
            for nt in range(5):
                if not OPT['k2_nomfma']:
                    a(f'v_mfma_f32_16x16x32_bf16 {vreg(acc(tb, nt), 4)}, {areg(fWt(d, nt), 4)}, {areg(fH(d, tb), 4)}, {vreg(acc(tb, nt), 4)}')
                if tb == 3 and ld:
                    a(ld[4 + nt])
            if ld:
                a(ld[tb])
        if ld:
            a(f's_add_u32 s{sK}, s{sK}, 4096')
            a(f's_add_u32 s{sK2}, s{sK2}, 5120')
    assert 20 % D == 0 and 24 % D == 0
    a(f's_cmp_ge_u32 s{sW}, 2')
    a(f's_cselect_b32 s{sT5}, {24 // D - 1}, {20 // D - 1}')
    a.label('L_k2_loop')
    for d in range(D):
        step(d, True, 9 * (D - 1))
    a(f's_sub_u32 s{sT5}, s{sT5}, 1')
    a(f's_cmp_lg_u32 s{sT5}, 0')
    a('s_cbranch_scc1 L_k2_loop')
    for d in range(D):
        step(d, False, 9 * (D - 1 - d))
    a.vm = []
    stamp(a, 2)
    a(f'v_and_b32 v4, 15, v{vL}')
    a('v_mul_u32_u24 v4, 336, v4')
    a(f'v_lshrrev_b32 v5, 4, v{vL}')
    a('v_lshl_add_u32 v4, v5, 4, v4')
    a(f's_mul_i32 s{sT0}, s{sW}, {PSZ}')
    a(f'v_add_u32 v4, s{sT0}, v4')
    a('s_nop 4')
    for tb in range(4):
        for nt in range(5):
            a(f'ds_write_b128 v4, {vreg(acc(tb, nt), 4)} offset:{5376*tb + 64*nt}')
    a('s_waitcnt vmcnt(0) lgkmcnt(0)')
    a('s_barrier')
    srd(a, rT0, sOUT, OUT_BYTES)
    RD = 128
    def rd(i):
        for p in range(4):
            a(f'ds_read_b128 {vreg(RD + 16*i + 4*p, 4)}, v{RA+i} offset:{PSZ*p}')
    rd(0)
    rd(1)
    for i in range(5):
        b = RD + 16 * i
        if i + 2 < 5:
            rd(i + 2)
        a(f's_waitcnt lgkmcnt({4 * min(2, 4 - i)})')
        g = GG + i
        a(f'v_pk_add_f32 {pair(b)}, {pair(b)}, {pair(b+4)}')
        a(f'v_pk_add_f32 {pair(b+2)}, {pair(b+2)}, {pair(b+6)}')
        a(f'v_pk_add_f32 {pair(b+8)}, {pair(b+8)}, {pair(b+12)}')
        a(f'v_pk_add_f32 {pair(b+10)}, {pair(b+10)}, {pair(b+14)}')
        a(f'v_sub_f32 v4, 1.0, v{g}')
        a('v_cvt_pk_bf16_f32 v4, v4, v4')
        a('v_lshlrev_b32 v4, 16, v4')
        for h in range(2):
            bb = b + 8 + 2 * h
            a(f'v_cvt_pk_bf16_f32 v5, v{bb}, v{bb+1}')
            a('v_lshlrev_b32 v6, 16, v5')
            a(f'v_and_b32 v7, s{sHI}, v5')
            a('v_mul_f32 v6, v4, v6')
            a('v_mul_f32 v7, v4, v7')
            a('v_cvt_pk_bf16_f32 v5, v6, v7')
            a(f'v_lshlrev_b32 v{bb}, 16, v5')
            a(f'v_and_b32 v{bb+1}, s{sHI}, v5')
        for h in range(2):
            a(f'v_pk_add_f32 {pair(b+2*h)}, {pair(b+2*h)}, {pair(SK+4*i+2*h)}')
        for e in range(4):
            a(f'v_fma_f32 v{b+e}, v{g}, v{b+e}, v{b+8+e}')
        a(f'buffer_store_dwordx4 {vreg(b, 4)}, v{OA+i}, s[{rT0}:{rT0+3}], 0 offen')
    stamp(a, 3)
    stamps_out(a, 4, 1)
    a.label('L_k2_exit')
    a('s_endpgm')


HEADER = open('cdna_kernels/' + NAME + '.s.ref').read().split('; Override launch')[0]


def kd(name, nsgpr=102):
    return f'''.amdhsa_kernel {name}
  .amdhsa_next_free_vgpr 512
  .amdhsa_next_free_sgpr {nsgpr}
  .amdhsa_accum_offset 256
  .amdhsa_group_segment_fixed_size 0
  .amdhsa_kernarg_size 128
  .amdhsa_user_sgpr_count 2
  .amdhsa_user_sgpr_kernarg_segment_ptr 1
  .amdhsa_system_sgpr_workgroup_id_x 1
  .amdhsa_float_denorm_mode_32 3
.end_amdhsa_kernel
'''


def build():
    k1 = Asm()
    gen_k1(k1)
    k2 = Asm()
    gen_k2(k2)
    probs = check_hazards(k1.lines, 'k1') + check_hazards(k2.lines, 'k2')
    lds1 = max(OPT['R_SSM'] * 32768, OPT['R_FFN'] * 49152)
    out = HEADER
    out += f'; @launch kernel=k1_kernel grid=(256,1,1) block=(256,1,1) lds={lds1}\n'
    out += f'; @launch kernel=k2_kernel grid=(256,1,1) block=(256,1,1) lds={4*64*336}\n'
    out += '.amdgcn_target "amdgcn-amd-amdhsa--gfx950"\n.text\n'
    for name, k in (('k1_kernel', k1), ('k2_kernel', k2)):
        out += f'.globl {name}\n.p2align 8\n.type {name},@function\n' + k.text()
    out += '.section .rodata,"a"\n.p2align 6\n' + kd('k1_kernel') + '.p2align 6\n' + kd('k2_kernel')
    return out, probs


if __name__ == '__main__':
    dst = sys.argv[1] if len(sys.argv) > 1 else 'cdna_kernels/' + NAME + '.s'
    for kv in sys.argv[2:]:
        k, v = kv.split('=')
        OPT[k] = type(OPT[k])(int(v)) if not isinstance(OPT[k], str) else v
    text, probs = build()
    for p in probs:
        print('HAZARD', p)
    open(dst, 'w').write(text)
    print('wrote', dst, len(text), 'bytes', len(probs), 'hazards')
```

```python
import re


class Asm:
    def __init__(self):
        self.lines = []
        self.vm = []

    def __call__(self, s, *a):
        for ln in s.split('\n'):
            ln = ln.strip()
            if ln:
                self.lines.append(ln)

    def label(self, name):
        self.lines.append(name + ':')

    def comment(self, s):
        self.lines.append('; ' + s)

    def vmem(self, s, tag):
        self.lines.append(s)
        self.vm.append(tag)

    def wait_vm(self, tags, extra=''):
        if isinstance(tags, str):
            tags = [tags]
        last = -1
        for i, t in enumerate(self.vm):
            if t in tags:
                last = i
        if last < 0:
            if extra:
                self.lines.append('s_waitcnt ' + extra)
            return
        n = len(self.vm) - 1 - last
        assert n <= 63
        self.lines.append(('s_waitcnt vmcnt(%d) ' % n + extra).strip())
        self.vm = self.vm[last + 1:]

    def wait_vm_all(self, extra=''):
        self.lines.append(('s_waitcnt vmcnt(0) ' + extra).strip())
        self.vm = []

    def text(self):
        out = []
        for ln in self.lines:
            if ln.endswith(':') or ln.startswith('.') or ln.startswith(';'):
                out.append(ln)
            else:
                out.append('    ' + ln)
        return '\n'.join(out) + '\n'


def interleave(main, fill, start=0, end=None, per=None):
    if end is None:
        end = len(main)
    n = end - start
    out = []
    fi = 0
    for i, m in enumerate(main):
        out.append(m)
        if start <= i < end:
            k = i - start + 1
            want = (len(fill) * k + n - 1) // n if per is None else min(len(fill), per * k)
            while fi < want:
                out.append(fill[fi])
                fi += 1
    while fi < len(fill):
        out.append(fill[fi])
        fi += 1
    return out


_REG = re.compile(r'(-?)(?:abs\()?\b([vas])(\d+)\b|\b([vas])\[(\d+):(\d+)\]')


def regs_of(op):
    out = []
    for m in _REG.finditer(op):
        if m.group(2):
            out.append((m.group(2), int(m.group(3))))
        else:
            for i in range(int(m.group(5)), int(m.group(6)) + 1):
                out.append((m.group(4), i))
    if re.search(r'\bvcc\b', op):
        out.append(('s', 'vcc'))
    if re.search(r'\bm0\b', op):
        out.append(('s', 'm0'))
    if re.search(r'\bexec\b', op):
        out.append(('s', 'exec'))
    return out


TRANS = ('v_exp_f32', 'v_log_f32', 'v_rcp_f32', 'v_rsq_f32', 'v_sqrt_f32', 'v_sin_f32', 'v_cos_f32')


class Ins:
    pass


def parse(line):
    line = line.split(';')[0].strip()
    if not line or line.endswith(':') or line.startswith('.'):
        return None
    parts = line.split(None, 1)
    mn = parts[0]
    rest = parts[1] if len(parts) > 1 else ''
    ops = [o.strip() for o in re.split(r',(?![^\[]*\])', rest)] if rest else []
    ins = Ins()
    ins.text = line
    ins.mn = mn
    base = re.sub(r'_(e32|e64|dpp|sdwa)$', '', mn)
    ins.base = base
    ins.is_mfma = mn.startswith('v_mfma')
    ins.is_valu = mn.startswith('v_') and not ins.is_mfma
    ins.is_ds = mn.startswith('ds_')
    ins.is_vmem = mn.startswith(('buffer_', 'global_'))
    ins.is_smem = mn.startswith(('s_load', 's_mem'))
    ins.is_salu = mn.startswith('s_') and not ins.is_smem
    ins.is_trans = base in TRANS
    ins.is_dpp = 'row_' in rest or 'quad_perm' in rest or mn.endswith('_dpp')
    ins.w = []
    ins.r = []
    ins.nop = 0
    if mn == 's_nop':
        ins.nop = int(ops[0], 0) + 1
        return ins
    last = ops[-1].split(' ')[0] if ops else ''
    opsc = [o.split(' ')[0] if not o.startswith(('s[', 'v[', 'a[')) else re.match(r'\S+', o).group(0) for o in ops]
    if ins.is_mfma:
        ins.w = regs_of(opsc[0])
        ins.a = regs_of(opsc[1])
        ins.b = regs_of(opsc[2])
        ins.c = regs_of(opsc[3])
        ins.r = ins.a + ins.b + ins.c
        ins.passes = 8 if '32x32' in mn else 4
    elif ins.is_valu:
        if base.startswith('v_cmp'):
            ins.w = regs_of(opsc[0])
            for o in opsc[1:]:
                ins.r += regs_of(o)
            if base.startswith('v_cmpx'):
                ins.w.append(('s', 'exec'))
        elif base in ('v_permlane32_swap_b32', 'v_permlane16_swap_b32'):
            ins.w = regs_of(opsc[0]) + regs_of(opsc[1])
            ins.r = list(ins.w)
        else:
            ins.w = regs_of(opsc[0])
            k = 1
            if base in ('v_add_co_u32', 'v_addc_co_u32', 'v_sub_co_u32'):
                ins.w += regs_of(opsc[1])
                k = 2
            for o in opsc[k:]:
                ins.r += regs_of(o)
            if base in ('v_fmac_f32', 'v_dot2c_f32_bf16', 'v_pk_fmac_f16', 'v_writelane_b32') or ins.is_dpp:
                ins.r += regs_of(opsc[0])
            if base == 'v_cndmask_b32' and len(opsc) == 3:
                ins.r.append(('s', 'vcc'))
    elif ins.is_ds:
        if 'read' in mn or 'bpermute' in mn or 'swizzle' in mn:
            ins.w = regs_of(opsc[0])
            for o in opsc[1:]:
                ins.r += regs_of(o)
        else:
            for o in opsc:
                ins.r += regs_of(o)
    elif ins.is_vmem:
        lds = re.search(r'\blds\b', rest) is not None
        is_load = '_load' in mn
        is_atomic = '_atomic' in mn
        if is_load and not lds:
            ins.w = regs_of(opsc[0])
            for o in opsc[1:]:
                ins.r += regs_of(o)
            if 'd16' in mn:
                ins.r += regs_of(opsc[0])
        elif is_atomic and 'sc0' in rest:
            ins.w = regs_of(opsc[0])
            for o in opsc:
                ins.r += regs_of(o)
        else:
            for o in opsc:
                ins.r += regs_of(o)
            if lds:
                ins.r.append(('s', 'm0'))
        ins.wide_store = ('_store' in mn) and ('x4' in mn or 'x3' in mn)
        ins.store_data = []
        if ins.wide_store:
            ins.store_data = regs_of(opsc[0]) if mn.startswith('buffer') else regs_of(opsc[1])
        ins.lds = lds
    elif ins.is_smem:
        ins.w = regs_of(opsc[0])
        for o in opsc[1:]:
            ins.r += regs_of(o)
    elif ins.is_salu:
        if mn.startswith(('s_cmp', 's_cbranch', 's_branch', 's_waitcnt', 's_barrier', 's_endpgm', 's_sleep', 's_setprio', 's_bitcmp')):
            for o in opsc:
                ins.r += regs_of(o)
        else:
            if opsc:
                ins.w = regs_of(opsc[0])
            for o in opsc[1:]:
                ins.r += regs_of(o)
            if 'saveexec' in mn:
                ins.w.append(('s', 'exec'))
    return ins


def check_hazards(lines, name=''):
    ins = []
    for ln in lines:
        p = parse(ln)
        if p is not None:
            ins.append(p)
    problems = []
    n = len(ins)

    def vg(rs):
        return set(r for r in rs if r[0] in 'va')

    def sg(rs):
        return set(r for r in rs if r[0] == 's')

    for i, p in enumerate(ins):
        if p.nop:
            continue
        dist = 0
        for j in range(i + 1, min(n, i + 24)):
            c = ins[j]
            need = 0
            why = ''
            if not c.nop:
                cr, cw = set(c.r), set(c.w)
                if p.is_valu:
                    pwv, pws = vg(p.w), sg(p.w)
                    if c.is_mfma and pwv & vg(cr):
                        need, why = 2, 'VALU->MFMA'
                    if c.is_valu and c.is_dpp and pwv & vg(cr):
                        need, why = max(need, 2), 'VALU->DPP'
                    if c.is_valu and c.base.startswith('v_permlane') and pwv & vg(cr):
                        need, why = max(need, 2), 'VALU->permlane'
                    if c.is_valu and c.base in ('v_readfirstlane_b32', 'v_readlane_b32') and pwv & vg(cr):
                        need, why = max(need, 1), 'VALU->readlane'
                    if p.is_trans and c.is_valu and not c.is_trans and pwv & vg(cr):
                        need, why = max(need, 1), 'trans->VALU'
                    if pws and c.is_vmem and pws & sg(cr):
                        need, why = max(need, 5), 'VALU sgpr->VMEM'
                    if pws and c.is_valu and pws & sg(cr):
                        need, why = max(need, 2), 'VALU sgpr->VALU const'
                    if pws and c.is_valu and c.base in ('v_readlane_b32', 'v_writelane_b32') and pws & sg(cr):
                        need, why = max(need, 4), 'VALU sgpr->lane select'
                    if p.base.startswith('v_dot') and (c.is_valu or c.is_vmem or c.is_ds) and (pwv & (vg(cr) | vg(cw))):
                        same_c = c.base == p.base and not (pwv & set(regs_of(c.text.split(',')[1]) + regs_of(c.text.split(',')[2])))
                        if not same_c:
                            need, why = max(need, 3), 'DLop->other'
                    if ('s', 'exec') in p.w:
                        if c.is_mfma:
                            need, why = max(need, 4), 'VALU exec->MFMA'
                        if c.is_valu and c.is_dpp:
                            need, why = max(need, 5), 'VALU exec->DPP'
                if p.is_mfma:
                    pw = set(p.w)
                    P = p.passes
                    if c.is_mfma:
                        if set(c.c) & pw and set(c.c) != pw:
                            need, why = {4: 6, 8: 10}[P], 'MFMA D->MFMA C partial overlap'
                        if (set(c.a) | set(c.b)) & pw:
                            need, why = max(need, {4: 8, 8: 12}[P]), 'MFMA D->MFMA A/B'
                    elif (c.is_valu or c.is_ds or c.is_vmem) and ((cr | cw) & pw):
                        need, why = {4: 8, 8: 12}[P], 'MFMA D->VALU/mem'
                    if c.is_valu and set(p.c) & cw:
                        need, why = max(need, {4: 3, 8: 7}[P]), 'MFMA C WAR'
                if p.is_salu and ('s', 'm0') in p.w:
                    if c.is_vmem and getattr(c, 'lds', False):
                        need, why = max(need, 1), 'M0->LDS DMA'
                if p.is_vmem and getattr(p, 'wide_store', False):
                    if c.is_valu and set(p.store_data) & cw:
                        need, why = max(need, 2), 'wide store WAR VALU'
                    elif set(p.store_data) & cw:
                        need, why = max(need, 1), 'wide store WAR'
                if need > dist:
                    problems.append('%s: %s needs %d has %d:\n    %s\n    %s' % (name, why, need, dist, p.text, c.text))
            dist += c.nop if c.nop else 1
            if dist >= 20:
                break
    return problems
```

```python
import sys
from asmlib import Asm, check_hazards

NAME = 'gated_mix__ssm_conv_s5__dense_activation_relu__prompt'

WS_HF = 0
WS_WT = 32 * 88 * 4096
WS_G = WS_WT + 8 * 88 * 5120
WS_AGG = WS_G + 8192
WS_FLAG = WS_AGG + 163840
WS_DIAG = 16 << 20
WS_SIZE = 32 << 20
OOB = 0x7f000000

X_BYTES = 2048 * 1280
B_BYTES = 640 * 1280
W1_BYTES = 640 * 3072
W2_BYTES = 1536 * 1280
OUT_BYTES = 2048 * 640 * 4

OPT = dict(diag=0, K2D=4, l2pf=0, dbgout=0,
           ssm_dma_pos=[0, 2, 4, 6, 8, 10, 12, 13], ffn_dma_pos=[0, 3, 5, 8, 10, 13, 15, 18, 20, 23, 25, 28])

sX, sLRE, sLIM, sBRE, sBIM, sCRE, sCIM, sLDT = 4, 6, 8, 10, 12, 14, 16, 18
sDSK, sBX, sW1, sW2, sGW, sOUT, sDBG, sWS = 20, 22, 24, 26, 28, 30, 32, 34
sC, sB, sW, sWT, sWC = 36, 37, 38, 39, 40
sT0, sT1, sT2, sT3, sT4, sT5 = 41, 42, 43, 44, 45, 46
sNONCE = 47
rX, rB, rWS, rT0, rT1 = 48, 52, 56, 60, 64
sK, sMA, sMB, sK2 = 68, 69, 70, 71
sTS = 72
sW2S, sW2D, sCS, sCD = 74, 76, 80, 82
sST = 84
sCD2 = 88
sGR, sGR2, sPB = 90, 91, 93
sHI = 92
sM0, sM1 = 94, 96
sFLAG = 98
sCLK = 100

SC = ' sc1'
DV = [127, 126]


def srd(a, r, ptr, size):
    a(f's_mov_b32 s{r}, s{ptr}')
    a(f's_mov_b32 s{r+1}, s{ptr+1}')
    a(f's_mov_b32 s{r+2}, {size}')
    a(f's_mov_b32 s{r+3}, 0x20000')


def stamp(a, idx):
    if OPT['diag']:
        if idx == 0:
            a(f's_memtime s[{sCLK}:{sCLK+1}]')
        a(f's_memrealtime s[{sTS}:{sTS + 1}]')
        a('s_waitcnt lgkmcnt(0)')
        a(f'v_writelane_b32 v{DV[0]}, s{sTS}, {idx}')


def stage_stamp(a, s):
    if OPT['diag']:
        if s > 0:
            a(f'v_writelane_b32 v{DV[1]}, s{sST + 2*((s-1) & 1)}, {s-1}')
        a(f's_memtime s[{sST + 2*(s & 1)}:{sST + 1 + 2*(s & 1)}]')


def stamps_out(a):
    if not OPT['diag']:
        return
    a('s_memtime s[42:43]')
    a('s_waitcnt lgkmcnt(0)')
    a(f's_sub_u32 s{sCLK}, s42, s{sCLK}')
    a(f's_lshl_b32 s{sT0}, s2, 8')
    a(f's_lshl_b32 s{sT1}, s{sW}, 6')
    a(f's_add_u32 s{sT0}, s{sT0}, s{sT1}')
    a(f's_add_u32 s{sT0}, s{sT0}, {WS_DIAG}')
    a(f'v_writelane_b32 v{DV[0]}, s{sCLK}, 15')
    a('v_and_b32 v3, 15, v0')
    a('v_lshlrev_b32 v3, 2, v3')
    a(f'v_add_u32 v2, s{sT0}, v3')
    a('s_mov_b32 exec_lo, 0xffff')
    a('s_mov_b32 exec_hi, 0')
    a(f'buffer_store_dword v{DV[0]}, v2, s[{rWS}:{rWS+3}], 0 offen')
    a(f'v_add_u32 v2, {65536}, v2')
    a(f'buffer_store_dword v{DV[1]}, v2, s[{rWS}:{rWS+3}], 0 offen')
    if OPT['dbgout']:
        a('s_or_b32 s41, s2, s38')
        a('s_cmp_lg_u32 s41, 0')
        a('s_cbranch_scc1 L_no_dbgout')
        a(f'v_readlane_b32 s41, v{DV[0]}, 0')
        a('s_nop 1')
        a(f'v_subrev_u32 v4, s41, v{DV[0]}')
        a(f'v_add_u32 v3, 64, v3')
        a(f'global_store_dword v3, v4, s[{sDBG}:{sDBG+1}]')
        a.label('L_no_dbgout')
    a('s_mov_b64 exec, -1')


def sched(mm, slots):
    out = []
    for i, m in enumerate(mm):
        out.append(m)
        out += slots.get(i, [])
    return out


def spread(groups, positions, slots):
    for g, p in zip(groups, positions):
        slots.setdefault(p, []).extend(g)


def vm_groups(items):
    out, cur = [], []
    for it in items:
        cur.append(it)
        if not isinstance(it, str) and it[0] == 'v':
            out.append(cur)
            cur = []
    if cur:
        out[-1] += cur
    return out


def emit(a, items):
    for it in items:
        if isinstance(it, str):
            a(it)
        elif it[0] == 'v':
            a.vmem(it[1], it[2])
        else:
            a(it[1])


def vreg(r, n=1):
    return f'v{r}' if n == 1 else f'v[{r}:{r+n-1}]'


def areg(r, n=1):
    return f'a{r}' if n == 1 else f'a[{r}:{r+n-1}]'


def pair(r):
    return f'v[{r}:{r+1}]'


def pk_fma(d, s0, s1, s2, b0=None, b1=None, swap1=False, neg0=None):
    osel = [0, 0, 0]
    ohi = [1, 1, 1]
    if b0 is not None:
        osel[0] = ohi[0] = b0
    if b1 is not None:
        osel[1] = ohi[1] = b1
    if swap1:
        osel[1], ohi[1] = 1, 0
    s = f'v_pk_fma_f32 {pair(d)}, {pair(s0)}, {pair(s1)}, {pair(s2)} op_sel:[{osel[0]},{osel[1]},{osel[2]}] op_sel_hi:[{ohi[0]},{ohi[1]},{ohi[2]}]'
    if neg0 == 'both':
        s += ' neg_lo:[1,0,0] neg_hi:[1,0,0]'
    elif neg0 == 'lo':
        s += ' neg_lo:[1,0,0]'
    return s


def pk_mul(d, s0, s1, b0=None):
    osel = [0, 0]
    ohi = [1, 1]
    if b0 is not None:
        osel[0] = ohi[0] = b0
    return f'v_pk_mul_f32 {pair(d)}, {pair(s0)}, {pair(s1)} op_sel:[{osel[0]},{osel[1]}] op_sel_hi:[{ohi[0]},{ohi[1]}]'


def cmul_s(a, dr, di, ar, ai, br, bi):
    a(f'v_mul_f32 v{dr}, v{ar}, v{br}')
    a(f'v_mul_f32 v{di}, v{ar}, v{bi}')
    a(f'v_fma_f32 v{dr}, -v{ai}, v{bi}, v{dr}')
    a(f'v_fma_f32 v{di}, v{ai}, v{br}, v{di}')


def csq(a, dr, di, sr, si):
    a(f'v_mul_f32 v{dr}, v{sr}, v{sr}')
    a(f'v_mul_f32 v{di}, v{sr}, v{si}')
    a(f'v_fma_f32 v{dr}, -v{si}, v{si}, v{dr}')
    a(f'v_add_f32 v{di}, v{di}, v{di}')


def div_small(a, q, n, d, tmp=None):
    m = (65536 + d - 1) // d
    a(f's_mul_i32 s{q}, s{n}, {m}')
    a(f's_lshr_b32 s{q}, s{q}, 16')


def nonce_load(a, reg):
    return [f's_cmp_lg_u32 s{sW}, 0',
            f's_cbranch_scc1 L_nl_{reg}_{len(a.lines)}',
            f'v_mov_b32 v{reg+1}, 0',
            f'global_load_dword v{reg}, v{reg+1}, s[{sDBG}:{sDBG+1}] sc0 sc1',
            f'L_nl_{reg}_{len(a.lines)}:']


def nonce_wait(a, reg, tag):
    a(f's_mov_b32 s{sT2}, 0')
    a.label(f'L_nw_{tag}')
    a('s_waitcnt vmcnt(0)')
    a(f'v_readfirstlane_b32 s{sNONCE}, v{reg}')
    a('s_nop 3')
    a(f's_cmp_lg_u32 s{sNONCE}, 0')
    a(f's_cbranch_scc1 L_nw_done_{tag}')
    a(f's_add_u32 s{sT2}, s{sT2}, 1')
    a(f's_cmp_lt_u32 s{sT2}, 0x40000')
    a(f's_cbranch_scc0 L_nw_done_{tag}')
    a(f'v_mov_b32 v{reg+1}, 0')
    a(f'global_load_dword v{reg}, v{reg+1}, s[{sDBG}:{sDBG+1}] sc0 sc1')
    a(f's_branch L_nw_{tag}')
    a.label(f'L_nw_done_{tag}')


def signal_done(a, slot16_expr_reg):
    a('s_waitcnt vmcnt(0)')
    a.vm = []
    a('s_barrier')
    a(f's_cmp_lg_u32 s{sW}, 0')
    a(f's_cbranch_scc1 L_sig_{slot16_expr_reg}')
    a(f'v_mov_b32 v2, s{sFLAG}')
    a(f'v_mov_b32 v3, s{sNONCE}')
    a('s_mov_b64 exec, 1')
    a(f'buffer_store_dword v3, v2, s[{rWS}:{rWS+3}], 0 offen sc0 sc1')
    a('s_mov_b64 exec, -1')
    a.label(f'L_sig_{slot16_expr_reg}')


def gen_ssm(a):
    R = 5
    SLOT = 32768
    NST = 10
    vL = 1
    vA, vB_ = 10, 14
    nset = 3
    vRA = [18 + 8 * s for s in range(nset)]
    vRB = [22 + 8 * s for s in range(nset)]
    LAM, L16, L128, L256, COEF = 42, 44, 46, 48, 50
    WRE, WIM = 52, 54
    SRE, SIM, TRE, TIM = 56, 58, 60, 62
    G = 64
    P = 80
    GR = 96
    ACC = 128
    TW = 192
    GX = 208
    GW = 228
    vL16, vW2A, vCA, NON = 248, 249, 250, 252
    PB, AGB, TB0 = 0, 32768, 65536

    def acc(m, part):
        return ACC + 32 * m + 16 * part

    def ure(u):
        return acc(u >> 3, 0) + 2 * (u & 7)

    def uim(u):
        return acc(u >> 3, 1) + 2 * (u & 7)

    def fA(s, m, kk):
        return 64 * s + 16 * m + 4 * kk

    def fB(s, part, kk):
        return 64 * s + 32 + 16 * part + 4 * kk

    DV[:] = [255, 254]
    if OPT['diag']:
        a('v_mov_b32 v255, v127')
    a(f's_lshr_b32 s{sWT}, s{sW}, 1')
    a(f's_and_b32 s{sWC}, s{sW}, 1')
    srd(a, rX, sX, X_BYTES)
    a(f's_cmp_eq_u32 s{sWC}, 0')
    a(f's_cselect_b32 s{rB}, s{sBRE}, s{sBIM}')
    a(f's_cselect_b32 s{rB+1}, s{sBRE+1}, s{sBIM+1}')
    a(f's_mov_b32 s{rB+2}, {B_BYTES}')
    a(f's_mov_b32 s{rB+3}, 0x20000')
    a(f'v_lshrrev_b32 v2, 4, v{vL}')
    a(f'v_and_b32 v3, 7, v{vL}')
    a('v_xor_b32 v3, v2, v3')
    a('v_lshlrev_b32 v3, 4, v3')
    a('v_xor_b32 v4, 64, v3')
    a(f'v_lshrrev_b32 v5, 5, v{vL}')
    a('v_lshlrev_b32 v5, 5, v5')
    a(f'v_bfe_u32 v6, v{vL}, 3, 1')
    a('v_lshl_add_u32 v5, v6, 4, v5')
    a(f'v_bfe_u32 v6, v{vL}, 4, 1')
    a('v_add_u32 v5, v5, v6')
    a(f's_lshl_b32 s{sT0}, s{sC}, 7')
    a(f's_lshl_b32 s{sT1}, s{sWT}, 6')
    a(f's_add_u32 s{sT0}, s{sT0}, s{sT1}')
    a(f's_lshl_b32 s{sT1}, s{sWC}, 3')
    a(f's_add_u32 s{sT0}, s{sT0}, s{sT1}')
    a(f'v_add_u32 v5, s{sT0}, v5')
    a(f's_movk_i32 s{sT2}, 1280')
    a(f'v_mul_lo_u32 v5, v5, s{sT2}')
    for i in range(4):
        a(f'v_add_u32 v{vA+i}, v5, v{3 + (i & 1)}')
        if i:
            a(f'v_add_u32 v{vA+i}, {1536*i}, v{vA+i}')
    a(f's_lshl_b32 s{sT0}, s{sB}, 6')
    a(f's_lshl_b32 s{sT1}, s{sWT}, 5')
    a(f's_add_u32 s{sT0}, s{sT0}, s{sT1}')
    a(f'v_lshrrev_b32 v5, 3, v{vL}')
    a(f'v_add_u32 v5, s{sT0}, v5')
    a(f'v_mul_lo_u32 v5, v5, s{sT2}')
    for i in range(4):
        a(f'v_add_u32 v{vB_+i}, v5, v{3 + (i & 1)}')
        if i:
            a(f'v_add_u32 v{vB_+i}, {9216*i}, v{vB_+i}')
    a(f's_lshl_b32 s{sMA}, s{sW}, 12')
    a(f's_add_u32 s{sMB}, s{sMA}, 16384')

    def dma(stage):
        slot = stage % R
        out = []
        out.append(('s', f's_add_u32 m0, s{sMA}, {slot*SLOT}'))
        out.append(('s', f's_mov_b32 s{sK}, {stage*128}'))
        for i in range(4):
            out.append(('v', f'buffer_load_dwordx4 v{vA+i}, s[{rX}:{rX+3}], s{sK} offen offset:{1024*i} lds', f'st{stage}'))
        out.append(('s', f's_add_u32 m0, s{sMB}, {slot*SLOT}'))
        out.append(('s', 's_nop 0'))
        for i in range(4):
            out.append(('v', f'buffer_load_dwordx4 v{vB_+i}, s[{rB}:{rB+3}], s{sK} offen offset:{1024*i} lds', f'st{stage}'))
        return out

    a(f's_lshl_b32 s{sT0}, s{sB}, 6')
    a(f's_lshl_b32 s{sT1}, s{sWC}, 5')
    a(f's_add_u32 s{sT0}, s{sT0}, s{sT1}')
    a(f'v_and_b32 v60, 31, v{vL}')
    a(f'v_add_u32 v60, s{sT0}, v60')
    a('v_lshlrev_b32 v60, 1, v60')
    a.vmem(f'global_load_ushort v61, v60, s[{sLRE}:{sLRE+1}]', 'lam')
    a.vmem(f'global_load_ushort v62, v60, s[{sLIM}:{sLIM+1}]', 'lam')
    a.vmem(f'global_load_ushort v63, v60, s[{sLDT}:{sLDT+1}]', 'lam')
    for st in range(R):
        emit(a, dma(st))
    stamp(a, 1)
    srd(a, rWS, sWS, WS_SIZE)

    a(f'v_and_b32 v9, 31, v{vL}')
    a(f'v_lshrrev_b32 v2, 5, v{vL}')
    a(f'v_bfe_u32 v8, v{vL}, 1, 3')
    a('v_xor_b32 v2, v2, v8')
    a('v_lshlrev_b32 v2, 4, v2')
    a('v_lshl_add_u32 v2, v9, 7, v2')
    a(f's_lshl_b32 s{sT0}, s{sWT}, 13')
    a(f's_lshl_b32 s{sT1}, s{sWC}, 13')
    a(f's_add_u32 s{sT1}, s{sT1}, 16384')
    for kk in range(4):
        if kk:
            a(f'v_xor_b32 v8, {32*kk}, v2')
        else:
            a('v_mov_b32 v8, v2')
        for s in range(nset):
            a(f'v_add_u32 v{vRA[s]+kk}, s{sT0}, v8')
            a(f'v_add_u32 v{vRB[s]+kk}, s{sT1}, v8')
            if s:
                a(f'v_add_u32 v{vRA[s]+kk}, {65536*s}, v{vRA[s]+kk}')
                a(f'v_add_u32 v{vRB[s]+kk}, {65536*s}, v{vRB[s]+kk}')

    a(f's_and_b32 s{sT0}, s{sC}, 3')
    a(f's_mul_i32 s{sT0}, s{sT0}, 10')
    a(f's_add_u32 s{sT0}, s{sT0}, s{sB}')
    a(f's_lshl_b32 s{sT0}, s{sT0}, 2')
    a(f's_add_u32 s{sT0}, s{sT0}, s{sW}')
    a(f's_lshr_b32 s{sT1}, s{sC}, 2')
    for i in range(2):
        a(f's_add_u32 s{sT2}, s{sT0}, {160*i}')
        div_small(a, sT3, sT2, 5)
        a(f's_mul_i32 s{sT4}, s{sT3}, 5')
        a(f's_sub_u32 s{sT4}, s{sT2}, s{sT4}')
        a(f's_mul_i32 s{sT5}, s{sT1}, 5')
        a(f's_add_u32 s{sT4}, s{sT4}, s{sT5}')
        a(f's_mul_i32 s{sW2S+i}, s{sT3}, 40960')
        a(f's_lshl_b32 s{sT5}, s{sT4}, 6')
        a(f's_add_u32 s{sW2S+i}, s{sW2S+i}, s{sT5}')
        a(f's_add_u32 s{sT3}, s{sT3}, 40')
        a(f's_mul_i32 s{sT3}, s{sT3}, 5')
        for jj in range(2):
            d = sW2D + 2 * i + jj
            a(f's_lshl_b32 s{sT5}, s{sT4}, 1')
            if jj:
                a(f's_add_u32 s{sT5}, s{sT5}, 1')
            div_small(a, d, sT5, 5)
            a(f's_mul_i32 s{d}, s{d}, 435')
            a(f's_add_u32 s{d}, s{d}, s{sT5}')
            a(f's_add_u32 s{d}, s{d}, s{sT3}')
            a(f's_lshl_b32 s{d}, s{d}, 10')
            a(f's_add_u32 s{d}, s{d}, {WS_WT}')
        if i == 1:
            a(f's_cmp_ge_u32 s{sT2}, 240')
            a(f's_cselect_b32 s{sW2S+1}, {OOB}, s{sW2S+1}')
            a(f's_cselect_b32 s{sW2D+2}, {OOB}, s{sW2D+2}')
            a(f's_cselect_b32 s{sW2D+3}, {OOB}, s{sW2D+3}')
    CD = [sCD, sCD + 1, sCD2, sCD2 + 1]
    for i in range(2):
        a(f's_add_u32 s{sT2}, s{sT0}, {160*i}')
        div_small(a, sT3, sT2, 10)
        a(f's_mul_i32 s{sT4}, s{sT3}, 10')
        a(f's_sub_u32 s{sT4}, s{sT2}, s{sT4}')
        a(f's_mul_i32 s{sT5}, s{sT1}, 10')
        a(f's_add_u32 s{sT4}, s{sT4}, s{sT5}')
        a(f's_mul_i32 s{sCS+i}, s{sT4}, 20480')
        a(f's_lshl_b32 s{sT5}, s{sT3}, 6')
        a(f's_add_u32 s{sCS+i}, s{sCS+i}, s{sT5}')
        d0, d1 = CD[2*i], CD[2*i+1]
        div_small(a, d0, sT4, 5)
        a(f's_mul_i32 s{d0}, s{d0}, 435')
        a(f's_add_u32 s{d0}, s{d0}, s{sT4}')
        a(f's_mul_i32 s{sT5}, s{sT3}, 10')
        a(f's_add_u32 s{d0}, s{d0}, s{sT5}')
        a(f's_lshl_b32 s{d0}, s{d0}, 10')
        a(f's_add_u32 s{d0}, s{d0}, {WS_WT}')
        a(f's_add_u32 s{d1}, s{d0}, 5120')
        if i == 1:
            a(f's_cmp_ge_u32 s{sT2}, 200')
            a(f's_cselect_b32 s{sCS+1}, {OOB}, s{sCS+1}')
            a(f's_cselect_b32 s{d0}, {OOB}, s{d0}')
            a(f's_cselect_b32 s{d1}, {OOB}, s{d1}')
    a(f'v_lshrrev_b32 v2, 2, v{vL}')
    a(f's_movk_i32 s{sT5}, 1280')
    a(f'v_mul_lo_u32 v2, v2, s{sT5}')
    a(f'v_and_b32 v3, 3, v{vL}')
    a(f'v_lshl_add_u32 v{vW2A}, v3, 4, v2')
    a(f'v_add_u32 v{vCA}, 20480, v{vW2A}')
    a(f'v_subrev_u32 v{vCA}, 1024, v{vCA}')
    a(f'v_lshlrev_b32 v{vL16}, 4, v{vL}')
    a(f's_lshl_b32 s{sPB}, s{sW}, 13')
    a(f's_lshl_b32 s{sT0}, s{sC}, 7')
    a(f's_lshl_b32 s{sT1}, s{sB}, 4')
    a(f's_add_u32 s{sT0}, s{sT0}, s{sT1}')
    a(f's_lshl_b32 s{sT1}, s{sW}, 2')
    a(f's_add_u32 s{sT0}, s{sT0}, s{sT1}')
    a(f's_mul_i32 s{sGR}, s{sT0}, 1280')
    a(f's_cmp_ge_u32 s{sB}, 8')
    a(f's_cselect_b32 s{sGR}, {OOB}, s{sGR}')
    a(f's_add_u32 s{sGR2}, s{sGR}, 4096')
    thr = [None, 16, 32, 48, None]
    add = [0, 64, 48, 32, 16]
    for i in range(5):
        r = GW + 4 * i
        a(f'v_add_u32 v{r}, {add[i]}, v{vL}') if add[i] else a(f'v_mov_b32 v{r}, v{vL}')
        if thr[i]:
            a(f'v_cmp_le_u32 vcc, {thr[i]}, v{vL}')
            a(f'v_subrev_u32 v2, 80, v{r}')
            a('s_nop 0')
            a(f'v_cndmask_b32 v{r}, v{r}, v2, vcc')
        a(f'v_lshlrev_b32 v{r}, 4, v{r}')

    a.wait_vm('lam')
    a('v_lshlrev_b32 v3, 16, v61')
    a('v_lshlrev_b32 v4, 16, v62')
    a('v_lshlrev_b32 v5, 16, v63')
    a('v_mul_f32 v5, 0x3fb8aa3b, v5')
    a('v_exp_f32 v5, v5')
    a('s_nop 0')
    a('v_cvt_pk_bf16_f32 v5, v5, v5')
    a('v_lshlrev_b32 v5, 16, v5')
    a(f'v_mul_f32 v{TRE}, v5, v3')
    a(f'v_mul_f32 v{TRE+1}, v5, v4')
    a(f'v_mul_f32 v{TRE}, 0x3fb8aa3b, v{TRE}')
    a(f'v_exp_f32 v{TRE}, v{TRE}')
    a(f'v_mul_f32 v{TRE+1}, 0.15915494, v{TRE+1}')
    a(f'v_rndne_f32 v{TIM}, v{TRE+1}')
    a(f'v_sub_f32 v{TRE+1}, v{TRE+1}, v{TIM}')
    a(f'v_cos_f32 v{TIM}, v{TRE+1}')
    a(f'v_sin_f32 v{TIM+1}, v{TRE+1}')
    a('s_nop 0')
    a(f'v_mul_f32 v{LAM}, v{TRE}, v{TIM}')
    a(f'v_mul_f32 v{LAM+1}, v{TRE}, v{TIM+1}')
    a(f'v_add_f32 v{TRE}, -1.0, v{LAM}')
    a(f'v_mul_f32 v{TIM}, v3, v3')
    a(f'v_fmac_f32 v{TIM}, v4, v4')
    a(f'v_rcp_f32 v{TIM}, v{TIM}')
    a(f'v_mul_f32 v{COEF}, v{TRE}, v3')
    a(f'v_fmac_f32 v{COEF}, v{LAM+1}, v4')
    a(f'v_mul_f32 v{COEF+1}, v{LAM+1}, v3')
    a(f'v_fma_f32 v{COEF+1}, -v{TRE}, v4, v{COEF+1}')
    a(f'v_add_f32 v{TIM}, v{TIM}, v{TIM}')
    a(f'v_mul_f32 v{COEF}, v{COEF}, v{TIM}')
    a(f'v_mul_f32 v{COEF+1}, v{COEF+1}, v{TIM}')
    t0, t1 = G, G + 2
    csq(a, t0, t0 + 1, LAM, LAM + 1)
    csq(a, t1, t1 + 1, t0, t0 + 1)
    csq(a, t0, t0 + 1, t1, t1 + 1)
    csq(a, L16, L16 + 1, t0, t0 + 1)
    L32, L64 = G + 4, G + 6
    csq(a, L32, L32 + 1, L16, L16 + 1)
    csq(a, L64, L64 + 1, L32, L32 + 1)
    csq(a, L128, L128 + 1, L64, L64 + 1)
    csq(a, L256, L256 + 1, L128, L128 + 1)
    a(f'v_cmp_lt_u32 vcc, 31, v{vL}')
    a(f's_cmp_eq_u32 s{sWT}, 1')
    a(f's_cselect_b64 s[{sM0}:{sM0+1}], -1, 0')
    a(f'v_mov_b32 v{t0}, 1.0')
    a(f'v_mov_b32 v{t0+1}, 0')
    a(f'v_cndmask_b32 v{t1}, v{t0}, v{L32}, vcc')
    a(f'v_cndmask_b32 v{t1+1}, v{t0+1}, v{L32+1}, vcc')
    a(f'v_cndmask_b32 v{t0}, v{t0}, v{L64}, s[{sM0}:{sM0+1}]')
    a(f'v_cndmask_b32 v{t0+1}, v{t0+1}, v{L64+1}, s[{sM0}:{sM0+1}]')
    cmul_s(a, WRE, WIM, t0, t0 + 1, t1, t1 + 1)
    cmul_s(a, WRE + 1, WIM + 1, WRE, WIM, L16, L16 + 1)
    a(f'v_and_b32 v2, 31, v{vL}')
    a('v_lshrrev_b32 v3, 2, v2')
    a('v_lshlrev_b32 v3, 4, v3')
    a('v_and_b32 v2, 3, v2')
    a('v_lshl_add_u32 v3, v2, 2, v3')
    a(f'v_lshrrev_b32 v2, 5, v{vL}')
    a('v_lshl_add_u32 v3, v2, 11, v3')
    a(f's_lshl_b32 s{sT0}, s{sW}, 13')
    a(f's_add_u32 s{sT0}, s{sT0}, {TB0}')
    for u in range(16):
        a(f'v_xor_b32 v{TW+u}, {(u << 7) | ((u >> 1) << 4)}, v3')
        a(f'v_add_u32 v{TW+u}, s{sT0}, v{TW+u}')
    a(f's_lshl_b32 s{sFLAG}, s{sC}, 4')
    a(f's_add_u32 s{sFLAG}, s{sFLAG}, s{sB}')
    a(f's_lshl_b32 s{sFLAG}, s{sFLAG}, 7')
    a(f's_add_u32 s{sFLAG}, s{sFLAG}, {WS_FLAG}')

    def reads(stage):
        slot = stage % R
        st_, off = slot // 2, (slot % 2) * SLOT
        rs = stage & 1
        out = []
        for kk in range(4):
            for m in range(2):
                out.append(f'ds_read_b128 {areg(fA(rs, m, kk), 4)}, v{vRA[st_]+kk} offset:{off + 4096*m}')
            for part in range(2):
                out.append(f'ds_read_b128 {areg(fB(rs, part, kk), 4)}, v{vRB[st_]+kk} offset:{off + 4096*part}')
        return out

    def mfmas(stage, order='k'):
        rs = stage & 1
        if order == 'k':
            seq = [(kk, m, part) for kk in range(4) for m in range(2) for part in range(2)]
        else:
            seq = [(kk, m, part) for m in range(2) for kk in range(4) for part in range(2)]
        out = []
        for kk, m, part in seq:
            c = '0' if (stage == 0 and kk == 0) else vreg(acc(m, part), 16)
            out.append(f'v_mfma_f32_32x32x16_bf16 {vreg(acc(m, part), 16)}, {areg(fA(rs, m, kk), 4)}, {areg(fB(rs, part, kk), 4)}, {c}')
        return out

    def side_loads(which):
        out = []
        if which == 'w2':
            out.append(('s', f's_mov_b32 s{rT0}, s{sW2}'))
            out.append(('s', f's_mov_b32 s{rT0+1}, s{sW2+1}'))
            out.append(('s', f's_mov_b32 s{rT0+2}, {W2_BYTES}'))
            out.append(('s', f's_mov_b32 s{rT0+3}, 0x20000'))
            for i in range(2):
                out.append(('s', f's_add_u32 m0, s{sPB}, {PB + 2048*i}'))
                out.append(('s', 's_nop 0'))
                out.append(('v', f'buffer_load_dwordx4 v{vW2A}, s[{rT0}:{rT0+3}], s{sW2S+i} offen lds', 'prep'))
                out.append(('v', f'buffer_load_dwordx4 v{vCA}, s[{rT0}:{rT0+3}], s{sW2S+i} offen offset:1024 lds', 'prep'))
        if which == 'c':
            for ptr, r, o in ((sCRE, rT0, 0), (sCIM, rT1, 1024)):
                out.append(('s', f's_mov_b32 s{r}, s{ptr}'))
                out.append(('s', f's_mov_b32 s{r+1}, s{ptr+1}'))
                out.append(('s', f's_mov_b32 s{r+2}, {B_BYTES}'))
                out.append(('s', f's_mov_b32 s{r+3}, 0x20000'))
                for i in range(2):
                    out.append(('s', f's_add_u32 m0, s{sPB}, {PB + 4096 + 2048*i + o}'))
                    out.append(('s', 's_nop 0'))
                    out.append(('v', f'buffer_load_dwordx4 v{vW2A}, s[{r}:{r+3}], s{sCS+i} offen lds', 'prep'))
        if which == 'gate':
            out.append(('s', f's_mov_b32 s{rT0}, s{sGW}'))
            out.append(('s', f's_mov_b32 s{rT0+1}, s{sGW+1}'))
            out.append(('s', f's_mov_b32 s{rT0+2}, 1280'))
            out.append(('s', f's_mov_b32 s{rT0+3}, 0x20000'))
            for i in range(5):
                out.append(('v', f'buffer_load_dwordx4 {vreg(GW+4*i, 4)}, v{GW+4*i}, s[{rT0}:{rT0+3}], 0 offen', 'prep'))
            for i in range(5):
                so, off = (sGR, 1024 * i) if i < 4 else (sGR2, 0)
                out.append(('v', f'buffer_load_dwordx4 {vreg(GX+4*i, 4)}, v{vL16}, s[{rX}:{rX+3}], s{so} offen offset:{off}', 'prep'))
        return out

    a.wait_vm('st0')
    a('s_barrier')
    stamp(a, 2)
    emit(a, reads(0))
    for s in range(NST):
        a.comment(f'SSM stage {s}')
        a('s_waitcnt lgkmcnt(0)')
        mm = mfmas(s, 'k' if s < NST - 1 else 'm')
        slots = {}
        if s + 1 < NST:
            a(mm[0])
            a(mm[1])
            mm = mm[2:]
            a.wait_vm(f'st{s+1}')
            a('s_barrier')
            stage_stamp(a, s)
            rd = reads(s + 1)
            spread([rd[2*i:2*i+2] for i in range(8)], range(8), slots)
            if s + R < NST:
                spread(vm_groups(dma(s + R)), OPT['ssm_dma_pos'], slots)
            if s == 5:
                spread(vm_groups(side_loads('w2') + side_loads('c')), [0, 2, 4, 6, 8, 10, 12, 13], slots)
            if s == 6:
                spread(vm_groups(side_loads('gate')), [0, 1, 3, 4, 6, 7, 9, 10, 12, 13], slots)
            if s == 7:
                spread([nonce_load(a, NON)], [2], slots)
        emit(a, sched(mm, slots))
    stamp(a, 3)

    a('s_nop 7')
    a('s_nop 3')
    for u in range(1, 16):
        pr = ure(0) if u == 1 else SRE
        pi = uim(0) if u == 1 else SIM
        a(pk_fma(TRE, LAM, pi, ure(u), b0=1, neg0='both'))
        a(pk_fma(TIM, LAM, pr, uim(u), b0=1))
        a(pk_fma(SRE, LAM, pr, TRE, b0=0))
        a(pk_fma(SIM, LAM, pi, TIM, b0=0))
    a(f'v_and_b32 v2, 31, v{vL}')
    a(f's_lshl_b32 s{sT0}, s{sWC}, 5')
    a(f'v_add_u32 v2, s{sT0}, v2')
    a('v_lshlrev_b32 v9, 4, v2')
    a('v_lshlrev_b32 v2, 3, v2')
    a(f'v_add_u32 v2, {AGB}, v2')
    a(f'v_lshrrev_b32 v3, 5, v{vL}')
    a('v_lshl_add_u32 v3, v3, 10, v2')
    a(f's_lshl_b32 s{sT0}, s{sWT}, 11')
    a(f'v_add_u32 v3, s{sT0}, v3')
    a(f'ds_write2_b32 v3, v{SRE}, v{SIM} offset0:0 offset1:1')
    a(f'ds_write2_b32 v3, v{SRE+1}, v{SIM+1} offset0:128 offset1:129')
    a(f's_cmp_lg_u32 s{sW}, 0')
    a('s_cbranch_scc1 L_ssm_no_nonce2')
    nonce_wait(a, NON, 'ssm')
    a(f'v_mov_b32 v7, {AGB + 4096}')
    a('s_mov_b64 exec, 1')
    a(f'ds_write_b32 v7, v{NON}')
    a('s_mov_b64 exec, -1')
    a.label('L_ssm_no_nonce2')
    a('s_waitcnt lgkmcnt(0)')
    a('s_barrier')
    a(f'v_mov_b32 v7, {AGB + 4096}')
    a('ds_read_b32 v8, v7')
    for s in range(8):
        a(f'ds_read_b64 {pair(G+2*s)}, v2 offset:{512*s}')
    a('s_waitcnt lgkmcnt(0)')
    a(f'v_mov_b32 v{P}, v{G}')
    a(f'v_mov_b32 v{P+1}, v{G+1}')
    for s in range(1, 8):
        a(pk_fma(TRE, L16, P + 2*(s-1), G + 2*s, b0=0))
        a(pk_fma(P + 2*s, L16, P + 2*(s-1), TRE, b0=1, swap1=True, neg0='lo'))
    a(f'v_mov_b32 v{GR}, v{P+14}')
    a(f'v_mov_b32 v{GR+1}, v8')
    a(f'v_mov_b32 v{GR+2}, v{P+15}')
    a(f'v_mov_b32 v{GR+3}, v8')
    a(f's_lshl_b32 s{sT0}, s{sB}, 4')
    a(f's_add_u32 s{sT0}, s{sT0}, s{sC}')
    a(f's_lshl_b32 s{sT0}, s{sT0}, 10')
    a(f's_add_u32 s{sT0}, s{sT0}, {WS_AGG}')
    a(f's_cmp_lg_u32 s{sWT}, 0')
    a('s_cbranch_scc1 L_ssm_no_pub')
    a('s_mov_b32 exec_hi, 0')
    a(f'buffer_store_dwordx4 {vreg(GR, 4)}, v9, s[{rWS}:{rWS+3}], s{sT0} offen sc0 sc1')
    a('s_mov_b64 exec, -1')
    a.label('L_ssm_no_pub')
    a(f'v_readfirstlane_b32 s{sNONCE}, v8')
    stamp(a, 4)

    a(f'v_cmp_lt_u32 vcc, 31, v{vL}')
    a(f'v_mov_b32 v{TRE}, 0')
    a('s_nop 0')
    PS = G
    for comp in range(2):
        a(f'v_cndmask_b32 v{TIM}, v{TRE}, v{P+2+comp}, vcc')
        a(f'v_cndmask_b32 v{TIM+1}, v{P+6+comp}, v{P+10+comp}, vcc')
        a(f'v_cndmask_b32 v{PS+comp}, v{TIM}, v{TIM+1}, s[{sM0}:{sM0+1}]')
        a(f'v_cndmask_b32 v{TIM}, v{P+comp}, v{P+4+comp}, vcc')
        a(f'v_cndmask_b32 v{TIM+1}, v{P+8+comp}, v{P+12+comp}, vcc')
        a(f'v_cndmask_b32 v{PS+2+comp}, v{TIM}, v{TIM+1}, s[{sM0}:{sM0+1}]')
    CPR, CPI, CWR, CWI = G + 4, G + 6, G + 8, G + 10
    for sg_ in range(2):
        cmul_s(a, CPR + sg_, CPI + sg_, COEF, COEF + 1, PS + 2*sg_, PS + 2*sg_ + 1)
        cmul_s(a, CWR + sg_, CWI + sg_, COEF, COEF + 1, WRE + sg_, WIM + sg_)
    a(f's_lshl_b32 s{sT0}, s{sB}, 14')
    a(f's_add_u32 s{sT0}, s{sT0}, {WS_AGG}')
    LA = P
    a(f'v_lshrrev_b32 v2, 5, v{vL}')
    a(f's_sub_u32 s{sT1}, s{sC}, 1')
    a(f'v_sub_u32 v2, s{sT1}, v2')
    a('v_lshl_add_u32 v9, v2, 10, v9')
    for i in range(8):
        a(f'v_subrev_u32 v{LA+i}, {2048*i}, v9')
    a(f'v_mov_b32 v9, v2')
    for u in range(16):
        a(pk_mul(TRE, COEF, uim(u), b0=1))
        a(pk_mul(TIM, COEF, ure(u), b0=1))
        a(f'v_pk_fma_f32 {pair(ure(u))}, {pair(COEF)}, {pair(ure(u))}, {pair(TRE)} op_sel:[0,0,0] op_sel_hi:[0,1,1] neg_lo:[0,0,1] neg_hi:[0,0,1]')
        a(pk_fma(uim(u), COEF, uim(u), TIM, b0=0))

    a.wait_vm('prep')
    T = GR
    a(f'v_lshrrev_b32 v4, 5, v{vL}')
    a('v_lshlrev_b32 v4, 4, v4')
    a(f'v_bfe_u32 v5, v{vL}, 4, 1')
    a('v_lshl_add_u32 v4, v5, 2, v4')
    a(f'v_bfe_u32 v5, v{vL}, 2, 2')
    a('v_add_u32 v4, v4, v5')
    a('v_lshlrev_b32 v4, 6, v4')
    a(f'v_and_b32 v5, 3, v{vL}')
    a('v_lshl_add_u32 v4, v5, 3, v4')
    a(f'v_add_u32 v4, s{sPB}, v4')
    for i in range(2):
        for jj in range(2):
            o = T + 8 * i + 4 * jj
            a(f'ds_read_b64_tr_b16 {vreg(o, 2)}, v4 offset:{PB + 2048*i + 32*jj}')
            a(f'ds_read_b64_tr_b16 {vreg(o+2, 2)}, v4 offset:{PB + 2048*i + 32*jj + 512}')
    a(f'v_and_b32 v5, 15, v{vL}')
    a('v_lshlrev_b32 v5, 6, v5')
    a(f'v_lshrrev_b32 v6, 4, v{vL}')
    a('v_lshl_add_u32 v5, v6, 3, v5')
    a(f'v_add_u32 v5, s{sPB}, v5')
    CR = T + 16
    for i in range(2):
        for k2 in range(2):
            o = CR + 8 * i + 4 * k2
            a(f'ds_read_b64 {vreg(o, 2)}, v5 offset:{PB + 4096 + 2048*i + 32*k2}')
            a(f'ds_read_b64 {vreg(o+2, 2)}, v5 offset:{PB + 4096 + 2048*i + 32*k2 + 1024}')
    a('s_waitcnt lgkmcnt(8)')
    for i in range(2):
        for jj in range(2):
            a.vmem(f'buffer_store_dwordx4 {vreg(T + 8*i + 4*jj, 4)}, v{vL16}, s[{rWS}:{rWS+3}], s{sW2D + 2*i + jj} offen{SC}', 'pst')
    a(f's_mov_b32 s{sT0}, 0x05040100')
    a(f's_mov_b32 s{sT1}, 0x07060302')
    a('s_waitcnt lgkmcnt(0)')
    CO = G + 12
    CO2 = 2
    for n_, (i, k2) in enumerate([(0, 0), (0, 1), (1, 0), (1, 1)]):
        o = CR + 8 * i + 4 * k2
        d = CO if n_ % 2 == 0 else CO2
        a(f'v_perm_b32 v{d}, v{o+2}, v{o}, s{sT0}')
        a(f'v_perm_b32 v{d+1}, v{o+2}, v{o}, s{sT1}')
        a(f'v_perm_b32 v{d+2}, v{o+3}, v{o+1}, s{sT0}')
        a(f'v_perm_b32 v{d+3}, v{o+3}, v{o+1}, s{sT1}')
        a.vmem(f'buffer_store_dwordx4 {vreg(d, 4)}, v{vL16}, s[{rWS}:{rWS+3}], s{CD[2*i + k2]} offen{SC}', 'pst')
    a(f's_cmp_ge_u32 s{sB}, 8')
    a('s_cbranch_scc1 L_ssm_no_gate')
    a(f's_mov_b32 s{sHI}, 0xffff0000')
    a(f's_mov_b32 s{sT0}, 0x3f803f80')
    a(f's_mov_b32 s{sT1}, 0x0000ffff')
    U = T
    for i in range(5):
        a(f'v_mov_b32 v{U+8+i}, 0')
    for i in range(5):
        for dp in range(2):
            xs = [GX + 4 * i + 2 * dp + e for e in range(2)]
            ws = [GW + 4 * i + 2 * dp + e for e in range(2)]
            for e in range(2):
                a(f'v_and_b32 v{U+2*e}, s{sT1}, v{ws[e]}')
                a(f'v_and_b32 v{U+2*e+1}, s{sHI}, v{ws[e]}')
            for e in range(2):
                a(f'v_dot2_f32_bf16 v{U+4+2*e}, v{xs[e]}, v{U+2*e}, 0')
                a(f'v_dot2_f32_bf16 v{U+4+2*e+1}, v{xs[e]}, v{U+2*e+1}, 0')
            a('s_nop 1')
            a(f'v_cvt_pk_bf16_f32 v{U}, v{U+4}, v{U+5}')
            a(f'v_cvt_pk_bf16_f32 v{U+1}, v{U+6}, v{U+7}')
            a(f'v_dot2_f32_bf16 v{U+8+i}, v{U}, s{sT0}, v{U+8+i}')
            a(f'v_dot2_f32_bf16 v{U+8+i}, v{U+1}, s{sT0}, v{U+8+i}')
    S = [U + 8 + i for i in range(5)]
    Z = [U + 16 + j for j in range(4)]
    a('s_nop 2')
    for j, th in enumerate((16, 32, 48)):
        a(f'v_cmp_gt_u32 vcc, {th}, v{vL}')
        a(f'v_mov_b32 v{U}, 0')
        a('s_nop 0')
        a(f'v_cndmask_b32 v{U+1}, v{U}, v{S[j+1]}, vcc')
        a(f'v_cndmask_b32 v{U+2}, v{S[j+1]}, v{U}, vcc')
        if j == 0:
            a(f'v_add_f32 v{Z[0]}, v{S[0]}, v{U+1}')
        else:
            a(f'v_add_f32 v{Z[j]}, v{Z[j]}, v{U+1}')
        a(f'v_mov_b32 v{Z[j+1]}, v{U+2}')
    a(f'v_add_f32 v{Z[3]}, v{Z[3]}, v{S[4]}')
    for sh in (1, 2, 4, 8):
        for z in Z:
            a(f'v_add_f32_dpp v{z}, v{z}, v{z} row_ror:{sh} row_mask:0xf bank_mask:0xf')
    for z in Z:
        a(f'v_add_f32_dpp v{z}, v{z}, v{z} row_bcast:15 row_mask:0xa bank_mask:0xf')
    for z in Z:
        a(f'v_add_f32_dpp v{z}, v{z}, v{z} row_bcast:31 row_mask:0xc bank_mask:0xf')
    a('s_nop 0')
    for j, z in enumerate(Z):
        a(f'v_readlane_b32 s{sT2+j}, v{z}, 63')
    a('s_nop 3')
    for j in range(4):
        a(f'v_writelane_b32 v{U}, s{sT2+j}, {j}')
    z = U
    a('s_nop 0')
    a(f'v_cvt_pk_bf16_f32 v{z}, v{z}, v{z}')
    a(f'v_lshlrev_b32 v{z}, 16, v{z}')
    a(f'v_mul_f32 v{z}, 0xbfb8aa3b, v{z}')
    a(f'v_exp_f32 v{z}, v{z}')
    a('s_nop 0')
    a(f'v_add_f32 v{z}, 1.0, v{z}')
    a(f'v_rcp_f32 v{z}, v{z}')
    a('s_nop 0')
    a(f'v_cvt_pk_bf16_f32 v{z}, v{z}, v{z}')
    a(f'v_lshlrev_b32 v{z}, 16, v{z}')
    a(f's_lshl_b32 s{sT0}, s{sC}, 7')
    a(f's_lshl_b32 s{sT1}, s{sB}, 4')
    a(f's_add_u32 s{sT0}, s{sT0}, s{sT1}')
    a(f's_lshl_b32 s{sT1}, s{sW}, 2')
    a(f's_add_u32 s{sT0}, s{sT0}, s{sT1}')
    a(f's_lshl_b32 s{sT0}, s{sT0}, 2')
    a(f's_add_u32 s{sT0}, s{sT0}, {WS_G}')
    a(f'v_lshlrev_b32 v4, 2, v{vL}')
    a('s_mov_b64 exec, 15')
    a(f'buffer_store_dword v{z}, v4, s[{rWS}:{rWS+3}], s{sT0} offen{SC}')
    a('s_mov_b64 exec, -1')
    a.label('L_ssm_no_gate')
    stamp(a, 5)

    a(f's_lshl_b32 s{sT0}, s{sB}, 14')
    a(f's_add_u32 s{sT0}, s{sT0}, {WS_AGG}')
    a(f's_add_u32 s{rT0}, s{sWS}, s{sT0}')
    a(f's_addc_u32 s{rT0+1}, s{sWS+1}, 0')
    a(f's_mov_b32 s{rT0+2}, 16384')
    a(f's_mov_b32 s{rT0+3}, 0x20000')
    a(f's_mov_b32 s{sT2}, 0')
    a.label('L_ssm_poll')
    for i in range(8):
        a(f'buffer_load_dwordx4 {vreg(GR+4*i, 4)}, v{LA+i}, s[{rT0}:{rT0+3}], 0 offen sc0 sc1')
    a('s_waitcnt vmcnt(0)')
    a.vm = []
    a(f's_mov_b64 s[{sM1}:{sM1+1}], -1')
    for i in range(8):
        a(f'v_cmp_eq_u32 vcc, s{sNONCE}, v{GR+4*i+1}')
        a(f'v_cmp_eq_u32 s[{sT3}:{sT4}], s{sNONCE}, v{GR+4*i+3}')
        a(f's_and_b64 vcc, vcc, s[{sT3}:{sT4}]')
        a(f'v_cmp_gt_i32 s[{sT3}:{sT4}], {2*i}, v9')
        a(f's_or_b64 vcc, vcc, s[{sT3}:{sT4}]')
        a(f's_and_b64 s[{sM1}:{sM1+1}], s[{sM1}:{sM1+1}], vcc')
    a(f's_cmp_eq_u64 s[{sM1}:{sM1+1}], -1')
    a('s_cbranch_scc1 L_ssm_poll_done')
    a(f's_add_u32 s{sT2}, s{sT2}, 1')
    a(f's_cmp_lt_u32 s{sT2}, 0x40000')
    a('s_cbranch_scc0 L_ssm_poll_done')
    a('s_sleep 1')
    a('s_branch L_ssm_poll')
    a.label('L_ssm_poll_done')
    stamp(a, 6)
    a(f'v_mov_b32 v{SRE}, v{GR+28}')
    a(f'v_mov_b32 v{SRE+1}, v{GR+30}')
    for i in range(6, -1, -1):
        a(f'v_mov_b32 v{TIM}, v{GR+4*i}')
        a(f'v_mov_b32 v{TIM+1}, v{GR+4*i+2}')
        a(pk_fma(TRE, L256, SRE, TIM, b0=0))
        a(pk_fma(SRE, L256, SRE, TRE, b0=1, swap1=True, neg0='lo'))
    cmul_s(a, TRE, TRE + 1, L128, L128 + 1, SRE, SRE + 1)
    a(f'v_cmp_lt_u32 vcc, 31, v{vL}')
    a('s_nop 1')
    a(f'v_cndmask_b32 v{SRE}, v{SRE}, v{TRE}, vcc')
    a(f'v_cndmask_b32 v{SRE+1}, v{SRE+1}, v{TRE+1}, vcc')
    a(f'v_mov_b32 v{TRE}, v{SRE}')
    a(f'v_mov_b32 v{TRE+1}, v{SRE+1}')
    a('s_nop 1')
    a(f'v_permlane32_swap_b32 v{SRE}, v{TRE}')
    a(f'v_permlane32_swap_b32 v{SRE+1}, v{TRE+1}')
    a('s_nop 1')
    a(f'v_add_f32 v{SRE}, v{SRE}, v{TRE}')
    a(f'v_add_f32 v{SRE+1}, v{SRE+1}, v{TRE+1}')
    HR, HI = TRE, TIM
    a(pk_fma(HR, CWR, SRE, CPR, b1=0))
    a(pk_fma(HI, CWR, SRE, CPI, b1=1))
    a(pk_fma(HR, CWI, SRE, HR, b1=1, neg0='both'))
    a(pk_fma(HI, CWI, SRE, HI, b1=0))
    D0 = GR

    def cv(v):
        d = D0 + 2 * v
        a(f'v_cvt_pk_bf16_f32 v{d}, v{ure(v)}, -v{uim(v)}')
        a(f'v_cvt_pk_bf16_f32 v{d+1}, v{ure(v)+1}, -v{uim(v)+1}')
        a(f'ds_write2st64_b32 v{TW+v}, v{d}, v{d+1} offset0:0 offset1:16')
    for u in range(16):
        pr = HR if u == 0 else ure(u - 1)
        pi = HI if u == 0 else uim(u - 1)
        a(pk_fma(ure(u), LAM, pi, ure(u), b0=1, neg0='both'))
        a(pk_fma(uim(u), LAM, pr, uim(u), b0=1))
        a(pk_fma(ure(u), LAM, pr, ure(u), b0=0))
        a(pk_fma(uim(u), LAM, pi, uim(u), b0=0))
        if u:
            cv(u - 1)
    cv(15)
    a(f'v_and_b32 v2, 15, v{vL}')
    a(f'v_lshrrev_b32 v3, 4, v{vL}')
    a('v_lshrrev_b32 v4, 1, v2')
    a('v_xor_b32 v3, v3, v4')
    a('v_lshlrev_b32 v3, 4, v3')
    a('v_lshl_add_u32 v3, v2, 7, v3')
    a(f's_lshl_b32 s{sT0}, s{sW}, 13')
    a(f's_add_u32 s{sT0}, s{sT0}, {TB0}')
    a(f'v_add_u32 v3, s{sT0}, v3')
    a('v_xor_b32 v4, 64, v3')
    rowoff = [0, 4096, 2048, 6144]
    for kp in range(2):
        for tb in range(4):
            a(f'ds_read_b128 {vreg(ACC + 16*kp + 4*tb, 4)}, v{3+kp} offset:{rowoff[tb]}')
    a(f's_lshl_b32 s{sT0}, s{sC}, 1')
    a(f's_add_u32 s{sT0}, s{sT0}, s{sWT}')
    a(f's_mul_i32 s{sT0}, s{sT0}, 88')
    a(f's_lshl_b32 s{sT1}, s{sB}, 2')
    a(f's_add_u32 s{sT0}, s{sT0}, s{sT1}')
    a(f's_lshl_b32 s{sT1}, s{sWC}, 1')
    a(f's_add_u32 s{sT0}, s{sT0}, s{sT1}')
    a(f's_lshl_b32 s{sT0}, s{sT0}, 12')
    a(f's_add_u32 s{sT1}, s{sT0}, 4096')
    for kp in range(2):
        for tb in range(4):
            a(f's_waitcnt lgkmcnt({7 - (4*kp + tb)})')
            a(f'buffer_store_dwordx4 {vreg(ACC + 16*kp + 4*tb, 4)}, v{vL16}, s[{rWS}:{rWS+3}], s{sT0 + kp} offen offset:{1024*tb}{SC}')
    stamp(a, 7)
    signal_done(a, 'ssm')
    if OPT['diag']:
        a('v_mov_b32 v127, v255')
        a('v_mov_b32 v126, v254')
    a('s_branch L_phase2')


def gen_ffn(a):
    R = 3
    SLOT = 49152
    NST = 10
    vL = 1
    vX, vW = 10, 14
    vRX = [22 + 4 * s for s in range(R)]
    vRW = [34 + 4 * s for s in range(R)]
    NON = 46
    ACC = 128
    PK = 64

    def acc(mf, nt):
        return ACC + 16 * (2 * mf + nt)

    def fX(s, nt, kk):
        return 96 * s + 16 * nt + 4 * kk

    def fW(s, mf, kk):
        return 96 * s + 32 + 16 * mf + 4 * kk

    DV[:] = [127, 126]
    a(f's_lshr_b32 s{sWT}, s{sW}, 1')
    a(f's_and_b32 s{sWC}, s{sW}, 1')
    srd(a, rX, sX, X_BYTES)
    srd(a, rB, sW1, W1_BYTES)
    a(f'v_lshrrev_b32 v2, 4, v{vL}')
    a(f'v_and_b32 v3, 7, v{vL}')
    a('v_xor_b32 v3, v2, v3')
    a('v_lshlrev_b32 v3, 4, v3')
    a('v_xor_b32 v4, 64, v3')
    a(f's_lshl_b32 s{sT0}, s{sC}, 7')
    a(f's_lshl_b32 s{sT1}, s{sW}, 5')
    a(f's_add_u32 s{sT0}, s{sT0}, s{sT1}')
    a(f'v_lshrrev_b32 v5, 3, v{vL}')
    a(f'v_add_u32 v5, s{sT0}, v5')
    a(f's_movk_i32 s{sT2}, 1280')
    a(f'v_mul_lo_u32 v5, v5, s{sT2}')
    for i in range(4):
        a(f'v_add_u32 v{vX+i}, v5, v{3 + (i & 1)}')
        if i:
            a(f'v_add_u32 v{vX+i}, {9216*i}, v{vX+i}')
    a(f'v_lshrrev_b32 v2, 5, v{vL}')
    a(f's_lshl_b32 s{sT0}, s{sW}, 4')
    a(f'v_add_u32 v5, s{sT0}, v2')
    a(f's_movk_i32 s{sT2}, 3072')
    a(f'v_mul_lo_u32 v5, v5, s{sT2}')
    a(f's_lshl_b32 s{sT0}, s{sB}, 9')
    a(f'v_add_u32 v5, s{sT0}, v5')
    a(f'v_and_b32 v6, 31, v{vL}')
    a('v_lshlrev_b32 v7, 2, v2')
    a('v_xor_b32 v6, v6, v7')
    a('v_lshlrev_b32 v6, 4, v6')
    a('v_xor_b32 v7, 128, v6')
    for i in range(8):
        a(f'v_add_u32 v{vW+i}, v5, v{6 + (i & 1)}')
        off = 6144 * i - 1024 * (i & 3)
        if off:
            a(f'v_add_u32 v{vW+i}, {off}, v{vW+i}')
    a(f's_lshl_b32 s{sMA}, s{sW}, 12')
    a(f's_lshl_b32 s{sMB}, s{sW}, 13')
    a(f's_add_u32 s{sMB}, s{sMB}, 16384')

    def dma(stage):
        slot = stage % R
        out = []
        out.append(('s', f's_mov_b32 s{sK}, {stage*128}'))
        out.append(('s', f's_add_u32 m0, s{sMA}, {slot*SLOT}'))
        out.append(('s', f's_mov_b32 s{sK2}, {stage*64*3072}'))
        for i in range(4):
            out.append(('v', f'buffer_load_dwordx4 v{vX+i}, s[{rX}:{rX+3}], s{sK} offen offset:{1024*i} lds', f'st{stage}'))
        for h in range(2):
            out.append(('s', f's_add_u32 m0, s{sMB}, {slot*SLOT + 4096*h}'))
            out.append(('s', 's_nop 0'))
            for i in range(4):
                out.append(('v', f'buffer_load_dwordx4 v{vW+4*h+i}, s[{rB}:{rB+3}], s{sK2} offen offset:{1024*i} lds', f'st{stage}'))
        return out

    for st in range(R):
        emit(a, dma(st))
    stamp(a, 1)
    srd(a, rWS, sWS, WS_SIZE)

    a(f'v_and_b32 v9, 31, v{vL}')
    a(f'v_lshrrev_b32 v2, 5, v{vL}')
    a(f'v_bfe_u32 v3, v{vL}, 1, 3')
    a('v_xor_b32 v2, v2, v3')
    a('v_lshlrev_b32 v2, 4, v2')
    a('v_lshl_add_u32 v2, v9, 7, v2')
    a(f's_lshl_b32 s{sT0}, s{sWT}, 13')
    a(f'v_add_u32 v2, s{sT0}, v2')
    for kk in range(4):
        for s in range(R):
            if kk:
                a(f'v_xor_b32 v{vRX[s]+kk}, {32*kk}, v2')
            else:
                a(f'v_mov_b32 v{vRX[s]+kk}, v2')
            if s:
                a(f'v_add_u32 v{vRX[s]+kk}, {SLOT*s}, v{vRX[s]+kk}')
    a(f'v_lshrrev_b32 v2, 5, v{vL}')
    a('v_lshlrev_b32 v2, 3, v2')
    a(f'v_bfe_u32 v3, v{vL}, 2, 2')
    a('v_add_u32 v2, v2, v3')
    a('v_lshlrev_b32 v2, 9, v2')
    a(f'v_bfe_u32 v4, v{vL}, 4, 1')
    a('v_lshl_add_u32 v2, v4, 5, v2')
    a(f'v_and_b32 v4, 3, v{vL}')
    a('v_lshl_add_u32 v2, v4, 3, v2')
    a('v_lshl_add_u32 v2, v3, 6, v2')
    a(f's_lshl_b32 s{sT0}, s{sWC}, 8')
    a(f's_add_u32 s{sT0}, s{sT0}, 16384')
    a(f'v_add_u32 v2, s{sT0}, v2')
    for mf in range(4):
        for s in range(R):
            if mf:
                a(f'v_xor_b32 v{vRW[s]+mf}, {64*mf}, v2')
            else:
                a(f'v_mov_b32 v{vRW[s]+mf}, v2')
            if s:
                a(f'v_add_u32 v{vRW[s]+mf}, {SLOT*s}, v{vRW[s]+mf}')
    a(f's_lshl_b32 s{sFLAG}, s{sC}, 4')
    a(f's_add_u32 s{sFLAG}, s{sFLAG}, s{sB}')
    a(f's_add_u32 s{sFLAG}, s{sFLAG}, 10')
    a(f's_lshl_b32 s{sFLAG}, s{sFLAG}, 7')
    a(f's_add_u32 s{sFLAG}, s{sFLAG}, {WS_FLAG}')

    def reads(stage):
        slot = stage % R
        rs = stage & 1
        out = []
        for kk in range(4):
            for nt in range(2):
                out.append(f'ds_read_b128 {areg(fX(rs, nt, kk), 4)}, v{vRX[slot]+kk} offset:{4096*nt}')
            for mf in range(4):
                for n in range(2):
                    out.append(f'ds_read_b64_tr_b16 {areg(fW(rs, mf, kk) + 2*n, 2)}, v{vRW[slot]+mf} offset:{8192*kk + 2048*n}')
        return out

    def mf_(rs, stage, kk, mf, nt):
        c = '0' if (stage == 0 and kk == 0) else vreg(acc(mf, nt), 16)
        return f'v_mfma_f32_32x32x16_bf16 {vreg(acc(mf, nt), 16)}, {areg(fW(rs, mf, kk), 4)}, {areg(fX(rs, nt, kk), 4)}, {c}'

    a.wait_vm('st0')
    a('s_barrier')
    stamp(a, 2)
    emit(a, reads(0))
    for s in range(NST - 1):
        a.comment(f'FFN stage {s}')
        a('s_waitcnt lgkmcnt(0)')
        rs = s & 1
        mm = [mf_(rs, s, kk, mf, nt) for kk in range(4) for mf in range(4) for nt in range(2)]
        a(mm[0])
        a(mm[1])
        mm = mm[2:]
        a.wait_vm(f'st{s+1}')
        a('s_barrier')
        stage_stamp(a, s)
        slots = {}
        rd = reads(s + 1)
        spread([rd[2*i:2*i+2] for i in range(20)], range(20), slots)
        if s + R < NST:
            spread(vm_groups(dma(s + R)), OPT['ffn_dma_pos'], slots)
        if s == 7:
            spread([nonce_load(a, NON)], [4], slots)
        emit(a, sched(mm, slots))
    s = NST - 1
    rs = s & 1
    a('s_waitcnt lgkmcnt(0)')
    stamp(a, 3)
    a(f'v_bfe_u32 v2, v{vL}, 4, 1')
    a('v_lshlrev_b32 v2, 10, v2')
    a(f'v_lshrrev_b32 v3, 5, v{vL}')
    a('v_lshl_add_u32 v2, v3, 8, v2')
    a(f'v_and_b32 v3, 15, v{vL}')
    a('v_lshl_add_u32 v2, v3, 4, v2')
    a(f's_lshl_b32 s{sT0}, s{sC}, 1')
    a(f's_add_u32 s{sT0}, s{sT0}, s{sWT}')
    a(f's_mul_i32 s{sT0}, s{sT0}, 88')
    a(f's_lshl_b32 s{sT1}, s{sB}, 3')
    a(f's_add_u32 s{sT0}, s{sT0}, s{sT1}')
    a(f's_lshl_b32 s{sT1}, s{sWC}, 2')
    a(f's_add_u32 s{sT0}, s{sT0}, s{sT1}')
    a(f's_add_u32 s{sT0}, s{sT0}, 40')
    a(f's_lshl_b32 s{sT0}, s{sT0}, 12')
    for mf in range(1, 4):
        a(f's_add_u32 s{sT0+mf}, s{sT0}, {4096*mf}')
    tiles = [(mf, nt) for mf in range(4) for nt in range(2)]

    def epi(idx):
        mf, nt = tiles[idx]
        base = PK + 8 * (idx & 3)
        out = []
        for P_ in range(2):
            for d in range(4):
                r = acc(mf, nt) + 8 * P_ + 2 * d
                out.append(f'v_cvt_pk_bf16_f32 v{base+4*P_+d}, v{r}, v{r+1}')
            for d in range(4):
                out.append(f'v_pk_max_i16 v{base+4*P_+d}, v{base+4*P_+d}, 0')
            out.append(('v', f'buffer_store_dwordx4 {vreg(base+4*P_, 4)}, v2, s[{rWS}:{rWS+3}], s{sT0+mf} offen offset:{2048*nt + 512*P_}{SC}', 'h1'))
        return out

    for idx, (mf, nt) in enumerate(tiles):
        mm = [mf_(rs, s, kk, mf, nt) for kk in range(4)]
        if idx >= 2:
            e = epi(idx - 2)
            a(mm[0])
            if idx == 2:
                a('s_nop 7')
            emit(a, e[:5])
            a(mm[1])
            emit(a, e[5:10])
            a(mm[2])
            emit(a, e[10:14])
            a(mm[3])
            emit(a, e[14:])
        else:
            emit(a, mm)
    emit(a, epi(len(tiles) - 2))
    emit(a, epi(len(tiles) - 1))
    stamp(a, 4)
    a(f's_cmp_lg_u32 s{sW}, 0')
    a('s_cbranch_scc1 L_ffn_no_nonce')
    nonce_wait(a, NON, 'ffn')
    a.label('L_ffn_no_nonce')
    signal_done(a, 'ffn')


def gen_phase2(a):
    D = OPT['K2D']
    vL = 1
    ACC = 128
    PSZ = 64 * 336
    XS, DS, GG = 16, 26, 36
    SK = 44
    OA, RA, GA = 64, 70, 76
    DV[:] = [127, 126]

    def acc(tb, nt):
        return ACC + 4 * (5 * tb + nt)

    def fH(d, tb):
        return 36 * d + 4 * tb

    def fWt(d, nt):
        return 36 * d + 16 + 4 * nt

    a.label('L_phase2')
    stamp(a, 8)
    a(f's_and_b32 s{sT0}, s2, 3')
    a(f's_lshl_b32 s{sT0}, s{sT0}, 3')
    a(f's_bfe_u32 s{sT1}, s2, 0x30003')
    a(f's_add_u32 s{sC}, s{sT0}, s{sT1}')
    a(f's_bfe_u32 s{sT0}, s2, 0x10002')
    a(f's_lshl_b32 s{sT0}, s{sT0}, 2')
    a(f's_lshr_b32 s{sT1}, s2, 6')
    a(f's_add_u32 s{sB}, s{sT0}, s{sT1}')
    srd(a, rX, sX, X_BYTES)
    srd(a, rB, sDSK, 1280)
    for i in range(5):
        a(f'v_add_u32 v4, {64*i}, v{vL}')
        a('v_mul_u32_u24 v5, 0xccd, v4')
        a('v_lshrrev_b32 v5, 16, v5')
        a('v_mul_u32_u24 v6, 20, v5')
        a('v_sub_u32 v6, v4, v6')
        a(f's_lshl_b32 s{sT2}, s{sW}, 4')
        a(f'v_add_u32 v5, s{sT2}, v5')
        a('v_mul_u32_u24 v7, 336, v5')
        a(f'v_lshl_add_u32 v{RA+i}, v6, 4, v7')
        a(f's_lshl_b32 s{sT2}, s{sC}, 6')
        a(f'v_add_u32 v5, s{sT2}, v5')
        a(f's_mul_i32 s{sT3}, s{sB}, 80')
        a('v_lshlrev_b32 v6, 2, v6')
        a(f'v_add_u32 v6, s{sT3}, v6')
        a('v_mul_u32_u24 v7, 640, v5')
        a('v_add_u32 v7, v7, v6')
        a(f'v_lshlrev_b32 v{OA+i}, 2, v7')
        a('v_lshlrev_b32 v7, 1, v7')
        a.vmem(f'buffer_load_dwordx2 {vreg(XS+2*i, 2)}, v7, s[{rX}:{rX+3}], 0 offen', 'epi')
        a('v_lshlrev_b32 v6, 1, v6')
        a.vmem(f'buffer_load_dwordx2 {vreg(DS+2*i, 2)}, v6, s[{rB}:{rB+3}], 0 offen', 'epi')
        a('v_lshlrev_b32 v5, 2, v5')
        a(f'v_add_u32 v{GA+i}, {WS_G}, v5')
    a(f's_mul_i32 s{sT0}, s{sW}, 20')
    a(f's_cmp_eq_u32 s{sW}, 3')
    a(f's_cselect_b32 s{sT1}, 4, 0')
    a(f's_add_u32 s{sT0}, s{sT0}, s{sT1}')
    a(f's_cmp_ge_u32 s{sW}, 2')
    a(f's_cselect_b32 s{sT1}, 24, 20')
    a(f's_mul_i32 s{sT2}, s{sC}, 88')
    a(f's_add_u32 s{sT2}, s{sT2}, s{sT0}')
    a(f's_lshl_b32 s{sT2}, s{sT2}, 12')
    a(f's_add_u32 s{rT0}, s{sWS}, s{sT2}')
    a(f's_addc_u32 s{rT0+1}, s{sWS+1}, 0')
    a(f's_lshl_b32 s{rT0+2}, s{sT1}, 12')
    a(f's_mov_b32 s{rT0+3}, 0x20000')
    a(f's_mul_i32 s{sT2}, s{sB}, 88')
    a(f's_add_u32 s{sT2}, s{sT2}, s{sT0}')
    a(f's_mul_i32 s{sT2}, s{sT2}, 5120')
    a(f's_add_u32 s{sT2}, s{sT2}, {WS_WT}')
    a(f's_add_u32 s{rT1}, s{sWS}, s{sT2}')
    a(f's_addc_u32 s{rT1+1}, s{sWS+1}, 0')
    a(f's_mul_i32 s{rT1+2}, s{sT1}, 5120')
    a(f's_mov_b32 s{rT1+3}, 0x20000')
    a(f'v_lshlrev_b32 v2, 4, v{vL}')
    a('v_add_u32 v3, 4096, v2')
    for r in range(80):
        a(f'v_mov_b32 v{ACC+r}, 0')
    a(f's_mov_b32 s{sHI}, 0xffff0000')
    a.wait_vm('epi')
    for i in range(5):
        for h in range(2):
            x, dd, o = XS + 2*i + h, DS + 2*i + h, SK + 4*i + 2*h
            a(f'v_lshlrev_b32 v4, 16, v{x}')
            a(f'v_and_b32 v5, s{sHI}, v{x}')
            a(f'v_lshlrev_b32 v6, 16, v{dd}')
            a(f'v_and_b32 v7, s{sHI}, v{dd}')
            a('v_mul_f32 v4, v4, v6')
            a('v_mul_f32 v5, v5, v7')
            a('v_cvt_pk_bf16_f32 v4, v4, v5')
            a(f'v_lshlrev_b32 v{o}, 16, v4')
            a(f'v_and_b32 v{o+1}, s{sHI}, v4')

    a(f's_cmp_lg_u32 s{sW}, 0')
    a('s_cbranch_scc1 L_p2_go')
    a(f'v_subrev_u32 v4, 16, v{vL}')
    a('v_mul_u32_u24 v5, 0x199a, v4')
    a('v_lshrrev_b32 v5, 16, v5')
    a('v_mul_u32_u24 v6, 10, v5')
    a('v_sub_u32 v6, v4, v6')
    a(f's_lshr_b32 s{sT0}, s{sB}, 1')
    a(f's_lshl_b32 s{sT0}, s{sT0}, 2')
    a(f'v_add_u32 v5, s{sT0}, v5')
    a('v_lshl_add_u32 v5, v5, 4, v6')
    a(f's_lshr_b32 s{sT0}, s{sC}, 1')
    a(f's_lshl_b32 s{sT0}, s{sT0}, 4')
    a(f'v_add_u32 v6, s{sT0}, v{vL}')
    a(f'v_cmp_gt_u32 vcc, 16, v{vL}')
    a('s_nop 1')
    a('v_cndmask_b32 v5, v5, v6, vcc')
    a('v_lshlrev_b32 v5, 7, v5')
    a(f'v_add_u32 v5, {WS_FLAG}, v5')
    a('s_mov_b32 exec_lo, -1')
    a('s_mov_b32 exec_hi, 0xffffff')
    a(f's_mov_b32 s{sT2}, 0')
    a.label('L_p2_poll')
    a(f'buffer_load_dword v4, v5, s[{rWS}:{rWS+3}], 0 offen sc0 sc1')
    a('s_waitcnt vmcnt(0)')
    a(f'v_cmp_ne_u32 vcc, s{sNONCE}, v4')
    a('s_nop 1')
    a('s_cmp_eq_u64 vcc, 0')
    a('s_cbranch_scc1 L_p2_poll_done')
    a(f's_add_u32 s{sT2}, s{sT2}, 1')
    a(f's_cmp_lt_u32 s{sT2}, 0x40000')
    a('s_cbranch_scc0 L_p2_poll_done')
    a('s_sleep 1')
    a('s_branch L_p2_poll')
    a.label('L_p2_poll_done')
    a('s_mov_b64 exec, -1')
    a.label('L_p2_go')
    a('s_barrier')
    stamp(a, 9)

    def loads(d):
        out = []
        for tb in range(4):
            out.append(f'buffer_load_dwordx4 {areg(fH(d, tb), 4)}, v2, s[{rT0}:{rT0+3}], s{sK} offen offset:{1024*tb}{SC}')
        for nt in range(4):
            out.append(f'buffer_load_dwordx4 {areg(fWt(d, nt), 4)}, v2, s[{rT1}:{rT1+3}], s{sK2} offen offset:{1024*nt}{SC}')
        out.append(f'buffer_load_dwordx4 {areg(fWt(d, 4), 4)}, v3, s[{rT1}:{rT1+3}], s{sK2} offen{SC}')
        return out

    a(f's_mov_b32 s{sK}, 0')
    a(f's_mov_b32 s{sK2}, 0')
    for d in range(D):
        for ld in loads(d):
            a(ld)
        if d == 0:
            for i in range(5):
                a(f'buffer_load_dword v{GG+i}, v{GA+i}, s[{rWS}:{rWS+3}], 0 offen{SC}')
        a(f's_add_u32 s{sK}, s{sK}, 4096')
        a(f's_add_u32 s{sK2}, s{sK2}, 5120')

    def step(d, with_loads, wait):
        a(f's_waitcnt vmcnt({wait})')
        ld = loads(d) if with_loads else None
        for tb in range(4):
            for nt in range(5):
                a(f'v_mfma_f32_16x16x32_bf16 {vreg(acc(tb, nt), 4)}, {areg(fWt(d, nt), 4)}, {areg(fH(d, tb), 4)}, {vreg(acc(tb, nt), 4)}')
                if tb == 3 and ld:
                    a(ld[4 + nt])
            if ld:
                a(ld[tb])
        if ld:
            a(f's_add_u32 s{sK}, s{sK}, 4096')
            a(f's_add_u32 s{sK2}, s{sK2}, 5120')
    assert 20 % D == 0 and 24 % D == 0
    a(f's_cmp_ge_u32 s{sW}, 2')
    a(f's_cselect_b32 s{sT5}, {24 // D - 1}, {20 // D - 1}')
    a.label('L_k2_loop')
    for d in range(D):
        step(d, True, 9 * (D - 1))
    a(f's_sub_u32 s{sT5}, s{sT5}, 1')
    a(f's_cmp_lg_u32 s{sT5}, 0')
    a('s_cbranch_scc1 L_k2_loop')
    for d in range(D):
        step(d, False, 9 * (D - 1 - d))
    stamp(a, 10)
    a(f'v_and_b32 v4, 15, v{vL}')
    a('v_mul_u32_u24 v4, 336, v4')
    a(f'v_lshrrev_b32 v5, 4, v{vL}')
    a('v_lshl_add_u32 v4, v5, 4, v4')
    a(f's_mul_i32 s{sT0}, s{sW}, {PSZ}')
    a(f'v_add_u32 v4, s{sT0}, v4')
    a('s_nop 4')
    for tb in range(4):
        for nt in range(5):
            a(f'ds_write_b128 v4, {vreg(acc(tb, nt), 4)} offset:{5376*tb + 64*nt}')
    a('s_waitcnt lgkmcnt(0)')
    a('s_barrier')
    srd(a, rT0, sOUT, OUT_BYTES)
    RD = 128

    def rd(i):
        for p in range(4):
            a(f'ds_read_b128 {vreg(RD + 16*i + 4*p, 4)}, v{RA+i} offset:{PSZ*p}')
    rd(0)
    rd(1)
    for i in range(5):
        b = RD + 16 * i
        if i + 2 < 5:
            rd(i + 2)
        a(f's_waitcnt lgkmcnt({4 * min(2, 4 - i)})')
        g = GG + i
        a(f'v_pk_add_f32 {pair(b)}, {pair(b)}, {pair(b+4)}')
        a(f'v_pk_add_f32 {pair(b+2)}, {pair(b+2)}, {pair(b+6)}')
        a(f'v_pk_add_f32 {pair(b+8)}, {pair(b+8)}, {pair(b+12)}')
        a(f'v_pk_add_f32 {pair(b+10)}, {pair(b+10)}, {pair(b+14)}')
        a(f'v_sub_f32 v4, 1.0, v{g}')
        a('v_cvt_pk_bf16_f32 v4, v4, v4')
        a('v_lshlrev_b32 v4, 16, v4')
        for h in range(2):
            bb = b + 8 + 2 * h
            a(f'v_cvt_pk_bf16_f32 v5, v{bb}, v{bb+1}')
            a('v_lshlrev_b32 v6, 16, v5')
            a(f'v_and_b32 v7, s{sHI}, v5')
            a('v_mul_f32 v6, v4, v6')
            a('v_mul_f32 v7, v4, v7')
            a('v_cvt_pk_bf16_f32 v5, v6, v7')
            a(f'v_lshlrev_b32 v{bb}, 16, v5')
            a(f'v_and_b32 v{bb+1}, s{sHI}, v5')
        for h in range(2):
            a(f'v_pk_add_f32 {pair(b+2*h)}, {pair(b+2*h)}, {pair(SK+4*i+2*h)}')
        for e in range(4):
            a(f'v_fma_f32 v{b+e}, v{g}, v{b+e}, v{b+8+e}')
        a(f'buffer_store_dwordx4 {vreg(b, 4)}, v{OA+i}, s[{rT0}:{rT0+3}], 0 offen')
    stamp(a, 11)
    stamps_out(a)


def gen_kernel(a):
    kn = NAME + '_kernel'
    a.label(kn)
    DV[:] = [127, 126]
    a('s_cmp_ge_u32 s2, 256')
    a('s_cbranch_scc1 L_exit')
    a('s_load_dwordx16 s[4:19], s[0:1], 0')
    a('s_load_dwordx16 s[20:35], s[0:1], 64')
    stamp(a, 0)
    a('v_and_b32 v1, 63, v0')
    a('v_lshrrev_b32 v2, 6, v0')
    a('s_nop 0')
    a(f'v_readfirstlane_b32 s{sW}, v2')
    a(f's_and_b32 s{sT0}, s2, 3')
    a(f's_lshl_b32 s{sT0}, s{sT0}, 2')
    a(f's_bfe_u32 s{sT1}, s2, 0x20003')
    a(f's_add_u32 s{sC}, s{sT0}, s{sT1}')
    a(f's_lshr_b32 s{sT1}, s2, 5')
    a(f's_bfe_u32 s{sT2}, s2, 0x10002')
    a('s_waitcnt lgkmcnt(0)')
    a(f's_lshr_b32 s{sT3}, s2, 3')
    a(f's_or_b32 s{sT3}, s{sT3}, s{sW}')
    a(f's_cmp_lg_u32 s{sT3}, 0')
    a('s_cbranch_scc1 L_no_offer')
    a(f's_memrealtime s[{sT3}:{sT4}]')
    a('s_waitcnt lgkmcnt(0)')
    a(f's_or_b32 s{sT3}, s{sT3}, 1')
    a(f'v_mov_b32 v4, s{sT3}')
    a('v_mov_b32 v5, 0')
    a('v_mov_b32 v6, 0')
    a('s_mov_b64 exec, 1')
    a(f'global_atomic_cmpswap v6, v[4:5], s[{sDBG}:{sDBG+1}] sc1')
    a('s_mov_b64 exec, -1')
    a.label('L_no_offer')
    a(f's_cmp_ge_u32 s{sT1}, 5')
    a('s_cbranch_scc1 L_ffn')
    a(f's_mul_i32 s{sT2}, s{sT2}, 5')
    a(f's_add_u32 s{sB}, s{sT2}, s{sT1}')
    sub = Asm()
    gen_ssm(sub)
    a.lines += sub.lines
    a.label('L_ffn')
    a(f's_mul_i32 s{sT2}, s{sT2}, 3')
    a(f's_add_u32 s{sB}, s{sT2}, s{sT1}')
    a(f's_sub_u32 s{sB}, s{sB}, 5')
    sub = Asm()
    gen_ffn(sub)
    a.lines += sub.lines
    sub = Asm()
    gen_phase2(sub)
    a.lines += sub.lines
    a.label('L_exit')
    a('s_endpgm')


HEADER = open('cdna_kernels/' + NAME + '.s.ref').read().split('; Override launch')[0]


def build():
    k = Asm()
    gen_kernel(k)
    probs = check_hazards(k.lines, 'k')
    kn = NAME + '_kernel'
    out = HEADER
    out += '; @launch grid=(256,1,1) block=(256,1,1) lds=163840\n'
    out += '.amdgcn_target "amdgcn-amd-amdhsa--gfx950"\n.text\n'
    out += f'.globl {kn}\n.p2align 8\n.type {kn},@function\n' + k.text()
    out += f'''.section .rodata,"a"
.p2align 6
.amdhsa_kernel {kn}
  .amdhsa_next_free_vgpr 512
  .amdhsa_next_free_sgpr 102
  .amdhsa_accum_offset 256
  .amdhsa_group_segment_fixed_size 0
  .amdhsa_kernarg_size 128
  .amdhsa_user_sgpr_count 2
  .amdhsa_user_sgpr_kernarg_segment_ptr 1
  .amdhsa_system_sgpr_workgroup_id_x 1
  .amdhsa_float_denorm_mode_32 3
.end_amdhsa_kernel
'''
    return out, probs


if __name__ == '__main__':
    dst = sys.argv[1] if len(sys.argv) > 1 else 'cdna_kernels/' + NAME + '.s'
    for kv in sys.argv[2:]:
        k_, v = kv.split('=')
        OPT[k_] = int(v)
    text, probs = build()
    for p in probs:
        print('HAZARD', p)
    open(dst, 'w').write(text)
    print('wrote', dst, len(text), 'bytes', len(probs), 'hazards')
```

```python
import sys
from asmlib import Asm, check_hazards

NAME = 'gated_mix__ssm_conv_s5__dense_activation_relu__prompt'

WS_HF = 0
WS_WT = 32 * 88 * 4096
WS_G = WS_WT + 8 * 88 * 5120
WS_AGG = WS_G + 8192
WS_FLAG = WS_AGG + 163840
WS_DIAG = 16 << 20
WS_SIZE = 32 << 20
OOB = 0x7f000000

X_BYTES = 2048 * 1280
B_BYTES = 640 * 1280
W1_BYTES = 640 * 3072
W2_BYTES = 1536 * 1280
OUT_BYTES = 2048 * 640 * 4

OPT = dict(diag=0, K2D=4, l2pf=0, dbgout=0,
           ssm_dma_pos=[0, 2, 4, 6, 8, 10, 12, 13], ffn_dma_pos=[0, 3, 5, 8, 10, 13, 15, 18, 20, 23, 25, 28])

sX, sLRE, sLIM, sBRE, sBIM, sCRE, sCIM, sLDT = 4, 6, 8, 10, 12, 14, 16, 18
sDSK, sBX, sW1, sW2, sGW, sOUT, sDBG, sWS = 20, 22, 24, 26, 28, 30, 32, 34
sC, sB, sW, sWT, sWC = 36, 37, 38, 39, 40
sT0, sT1, sT2, sT3, sT4, sT5 = 41, 42, 43, 44, 45, 46
sNONCE = 47
rX, rB, rWS, rT0, rT1 = 48, 52, 56, 60, 64
sK, sMA, sMB, sK2 = 68, 69, 70, 71
sTS = 72
sW2S, sW2D, sCS, sCD = 74, 76, 80, 82
sST = 84
sCD2 = 88
sGR, sGR2, sPB = 90, 91, 93
sHI = 92
sM0, sM1 = 94, 96
sFLAG = 98
sCLK = 100

SC = ' sc1'
DV = [127, 126]


def srd(a, r, ptr, size):
    a(f's_mov_b32 s{r}, s{ptr}')
    a(f's_mov_b32 s{r+1}, s{ptr+1}')
    a(f's_mov_b32 s{r+2}, {size}')
    a(f's_mov_b32 s{r+3}, 0x20000')


def stamp(a, idx):
    if OPT['diag']:
        if idx == 0:
            a(f's_memtime s[{sCLK}:{sCLK+1}]')
        a(f's_memrealtime s[{sTS}:{sTS + 1}]')
        a('s_waitcnt lgkmcnt(0)')
        a(f'v_writelane_b32 v{DV[0]}, s{sTS}, {idx}')


def stage_stamp(a, s):
    if OPT['diag']:
        if s > 0:
            a(f'v_writelane_b32 v{DV[1]}, s{sST + 2*((s-1) & 1)}, {s-1}')
        a(f's_memtime s[{sST + 2*(s & 1)}:{sST + 1 + 2*(s & 1)}]')


def stamps_out(a):
    if not OPT['diag']:
        return
    a('s_memtime s[42:43]')
    a('s_waitcnt lgkmcnt(0)')
    a(f's_sub_u32 s{sCLK}, s42, s{sCLK}')
    a(f's_lshl_b32 s{sT0}, s2, 8')
    a(f's_lshl_b32 s{sT1}, s{sW}, 6')
    a(f's_add_u32 s{sT0}, s{sT0}, s{sT1}')
    a(f's_add_u32 s{sT0}, s{sT0}, {WS_DIAG}')
    a(f'v_writelane_b32 v{DV[0]}, s{sCLK}, 15')
    a('v_and_b32 v3, 15, v0')
    a('v_lshlrev_b32 v3, 2, v3')
    a(f'v_add_u32 v2, s{sT0}, v3')
    a('s_mov_b32 exec_lo, 0xffff')
    a('s_mov_b32 exec_hi, 0')
    a(f'buffer_store_dword v{DV[0]}, v2, s[{rWS}:{rWS+3}], 0 offen')
    a(f'v_add_u32 v2, {65536}, v2')
    a(f'buffer_store_dword v{DV[1]}, v2, s[{rWS}:{rWS+3}], 0 offen')
    if OPT['dbgout']:
        a(f's_cmp_lg_u32 s{sW}, 0')
        a('s_cbranch_scc1 L_no_dbgout')
        a(f'v_not_b32 v4, v{DV[0]}')
        a(f'v_cmp_eq_u32 vcc, 0, v3')
        a('s_nop 1')
        a(f'v_cndmask_b32 v4, v{DV[0]}, v4, vcc')
        a('v_add_u32 v3, 4, v3')
        a('s_mov_b32 exec_lo, 0xfff')
        a(f'global_atomic_umax v3, v4, s[{sDBG}:{sDBG+1}] sc1')
        a.label('L_no_dbgout')
    a('s_mov_b64 exec, -1')


def sched(mm, slots):
    out = []
    for i, m in enumerate(mm):
        out.append(m)
        out += slots.get(i, [])
    return out


def spread(groups, positions, slots):
    for g, p in zip(groups, positions):
        slots.setdefault(p, []).extend(g)


def vm_groups(items):
    out, cur = [], []
    for it in items:
        cur.append(it)
        if not isinstance(it, str) and it[0] == 'v':
            out.append(cur)
            cur = []
    if cur:
        out[-1] += cur
    return out


def emit(a, items):
    for it in items:
        if isinstance(it, str):
            a(it)
        elif it[0] == 'v':
            a.vmem(it[1], it[2])
        else:
            a(it[1])


def vreg(r, n=1):
    return f'v{r}' if n == 1 else f'v[{r}:{r+n-1}]'


def areg(r, n=1):
    return f'a{r}' if n == 1 else f'a[{r}:{r+n-1}]'


def pair(r):
    return f'v[{r}:{r+1}]'


def pk_fma(d, s0, s1, s2, b0=None, b1=None, swap1=False, neg0=None):
    osel = [0, 0, 0]
    ohi = [1, 1, 1]
    if b0 is not None:
        osel[0] = ohi[0] = b0
    if b1 is not None:
        osel[1] = ohi[1] = b1
    if swap1:
        osel[1], ohi[1] = 1, 0
    s = f'v_pk_fma_f32 {pair(d)}, {pair(s0)}, {pair(s1)}, {pair(s2)} op_sel:[{osel[0]},{osel[1]},{osel[2]}] op_sel_hi:[{ohi[0]},{ohi[1]},{ohi[2]}]'
    if neg0 == 'both':
        s += ' neg_lo:[1,0,0] neg_hi:[1,0,0]'
    elif neg0 == 'lo':
        s += ' neg_lo:[1,0,0]'
    return s


def pk_mul(d, s0, s1, b0=None):
    osel = [0, 0]
    ohi = [1, 1]
    if b0 is not None:
        osel[0] = ohi[0] = b0
    return f'v_pk_mul_f32 {pair(d)}, {pair(s0)}, {pair(s1)} op_sel:[{osel[0]},{osel[1]}] op_sel_hi:[{ohi[0]},{ohi[1]}]'


def cmul_s(a, dr, di, ar, ai, br, bi):
    a(f'v_mul_f32 v{dr}, v{ar}, v{br}')
    a(f'v_mul_f32 v{di}, v{ar}, v{bi}')
    a(f'v_fma_f32 v{dr}, -v{ai}, v{bi}, v{dr}')
    a(f'v_fma_f32 v{di}, v{ai}, v{br}, v{di}')


def csq(a, dr, di, sr, si):
    a(f'v_mul_f32 v{dr}, v{sr}, v{sr}')
    a(f'v_mul_f32 v{di}, v{sr}, v{si}')
    a(f'v_fma_f32 v{dr}, -v{si}, v{si}, v{dr}')
    a(f'v_add_f32 v{di}, v{di}, v{di}')


def div_small(a, q, n, d, tmp=None):
    m = (65536 + d - 1) // d
    a(f's_mul_i32 s{q}, s{n}, {m}')
    a(f's_lshr_b32 s{q}, s{q}, 16')


def nonce_load(a, reg):
    return [f's_cmp_lg_u32 s{sW}, 0',
            f's_cbranch_scc1 L_nl_{reg}_{len(a.lines)}',
            f'v_mov_b32 v{reg+1}, 0',
            f'global_load_dword v{reg}, v{reg+1}, s[{sDBG}:{sDBG+1}] sc0 sc1',
            f'L_nl_{reg}_{len(a.lines)}:']


def nonce_wait(a, reg, tag):
    a(f's_mov_b32 s{sT2}, 0')
    a.label(f'L_nw_{tag}')
    a('s_waitcnt vmcnt(0)')
    a(f'v_readfirstlane_b32 s{sNONCE}, v{reg}')
    a('s_nop 3')
    a(f's_cmp_lg_u32 s{sNONCE}, 0')
    a(f's_cbranch_scc1 L_nw_done_{tag}')
    a(f's_add_u32 s{sT2}, s{sT2}, 1')
    a(f's_cmp_lt_u32 s{sT2}, 0x40000')
    a(f's_cbranch_scc0 L_nw_done_{tag}')
    a(f'v_mov_b32 v{reg+1}, 0')
    a(f'global_load_dword v{reg}, v{reg+1}, s[{sDBG}:{sDBG+1}] sc0 sc1')
    a(f's_branch L_nw_{tag}')
    a.label(f'L_nw_done_{tag}')


def signal_done(a, slot16_expr_reg):
    a('s_waitcnt vmcnt(0)')
    a.vm = []
    a('s_barrier')
    a(f's_cmp_lg_u32 s{sW}, 0')
    a(f's_cbranch_scc1 L_sig_{slot16_expr_reg}')
    a(f'v_mov_b32 v2, s{sFLAG}')
    a(f'v_mov_b32 v3, s{sNONCE}')
    a('s_mov_b64 exec, 1')
    a(f'buffer_store_dword v3, v2, s[{rWS}:{rWS+3}], 0 offen sc0 sc1')
    a('s_mov_b64 exec, -1')
    a.label(f'L_sig_{slot16_expr_reg}')


def gen_ssm(a):
    R = 5
    SLOT = 32768
    NST = 10
    vL = 1
    vA, vB_ = 10, 14
    nset = 3
    vRA = [18 + 8 * s for s in range(nset)]
    vRB = [22 + 8 * s for s in range(nset)]
    LAM, L16, L128, L256, COEF = 42, 44, 46, 48, 50
    WRE, WIM = 52, 54
    SRE, SIM, TRE, TIM = 56, 58, 60, 62
    G = 64
    P = 80
    GR = 96
    ACC = 128
    TW = 192
    GX = 208
    GW = 228
    vL16, vW2A, vCA, NON = 248, 249, 250, 252
    PB, AGB, TB0 = 0, 32768, 65536

    def acc(m, part):
        return ACC + 32 * m + 16 * part

    def ure(u):
        return acc(u >> 3, 0) + 2 * (u & 7)

    def uim(u):
        return acc(u >> 3, 1) + 2 * (u & 7)

    def fA(s, m, kk):
        return 64 * s + 16 * m + 4 * kk

    def fB(s, part, kk):
        return 64 * s + 32 + 16 * part + 4 * kk

    DV[:] = [255, 254]
    if OPT['diag']:
        a('v_mov_b32 v255, v127')
    a(f's_lshr_b32 s{sWT}, s{sW}, 1')
    a(f's_and_b32 s{sWC}, s{sW}, 1')
    srd(a, rX, sX, X_BYTES)
    a(f's_cmp_eq_u32 s{sWC}, 0')
    a(f's_cselect_b32 s{rB}, s{sBRE}, s{sBIM}')
    a(f's_cselect_b32 s{rB+1}, s{sBRE+1}, s{sBIM+1}')
    a(f's_mov_b32 s{rB+2}, {B_BYTES}')
    a(f's_mov_b32 s{rB+3}, 0x20000')
    a(f'v_lshrrev_b32 v2, 4, v{vL}')
    a(f'v_and_b32 v3, 7, v{vL}')
    a('v_xor_b32 v3, v2, v3')
    a('v_lshlrev_b32 v3, 4, v3')
    a('v_xor_b32 v4, 64, v3')
    a(f'v_lshrrev_b32 v5, 5, v{vL}')
    a('v_lshlrev_b32 v5, 5, v5')
    a(f'v_bfe_u32 v6, v{vL}, 3, 1')
    a('v_lshl_add_u32 v5, v6, 4, v5')
    a(f'v_bfe_u32 v6, v{vL}, 4, 1')
    a('v_add_u32 v5, v5, v6')
    a(f's_lshl_b32 s{sT0}, s{sC}, 7')
    a(f's_lshl_b32 s{sT1}, s{sWT}, 6')
    a(f's_add_u32 s{sT0}, s{sT0}, s{sT1}')
    a(f's_lshl_b32 s{sT1}, s{sWC}, 3')
    a(f's_add_u32 s{sT0}, s{sT0}, s{sT1}')
    a(f'v_add_u32 v5, s{sT0}, v5')
    a(f's_movk_i32 s{sT2}, 1280')
    a(f'v_mul_lo_u32 v5, v5, s{sT2}')
    for i in range(4):
        a(f'v_add_u32 v{vA+i}, v5, v{3 + (i & 1)}')
        if i:
            a(f'v_add_u32 v{vA+i}, {1536*i}, v{vA+i}')
    a(f's_lshl_b32 s{sT0}, s{sB}, 6')
    a(f's_lshl_b32 s{sT1}, s{sWT}, 5')
    a(f's_add_u32 s{sT0}, s{sT0}, s{sT1}')
    a(f'v_lshrrev_b32 v5, 3, v{vL}')
    a(f'v_add_u32 v5, s{sT0}, v5')
    a(f'v_mul_lo_u32 v5, v5, s{sT2}')
    for i in range(4):
        a(f'v_add_u32 v{vB_+i}, v5, v{3 + (i & 1)}')
        if i:
            a(f'v_add_u32 v{vB_+i}, {9216*i}, v{vB_+i}')
    a(f's_lshl_b32 s{sMA}, s{sW}, 12')
    a(f's_add_u32 s{sMB}, s{sMA}, 16384')

    def dma(stage):
        slot = stage % R
        out = []
        out.append(('s', f's_add_u32 m0, s{sMA}, {slot*SLOT}'))
        out.append(('s', f's_mov_b32 s{sK}, {stage*128}'))
        for i in range(4):
            out.append(('v', f'buffer_load_dwordx4 v{vA+i}, s[{rX}:{rX+3}], s{sK} offen offset:{1024*i} lds', f'st{stage}'))
        out.append(('s', f's_add_u32 m0, s{sMB}, {slot*SLOT}'))
        out.append(('s', 's_nop 0'))
        for i in range(4):
            out.append(('v', f'buffer_load_dwordx4 v{vB_+i}, s[{rB}:{rB+3}], s{sK} offen offset:{1024*i} lds', f'st{stage}'))
        return out

    a(f's_lshl_b32 s{sT0}, s{sB}, 6')
    a(f's_lshl_b32 s{sT1}, s{sWC}, 5')
    a(f's_add_u32 s{sT0}, s{sT0}, s{sT1}')
    a(f'v_and_b32 v60, 31, v{vL}')
    a(f'v_add_u32 v60, s{sT0}, v60')
    a('v_lshlrev_b32 v60, 1, v60')
    a.vmem(f'global_load_ushort v61, v60, s[{sLRE}:{sLRE+1}]', 'lam')
    a.vmem(f'global_load_ushort v62, v60, s[{sLIM}:{sLIM+1}]', 'lam')
    a.vmem(f'global_load_ushort v63, v60, s[{sLDT}:{sLDT+1}]', 'lam')
    for st in range(R):
        emit(a, dma(st))
    stamp(a, 1)
    srd(a, rWS, sWS, WS_SIZE)

    a(f'v_and_b32 v9, 31, v{vL}')
    a(f'v_lshrrev_b32 v2, 5, v{vL}')
    a(f'v_bfe_u32 v8, v{vL}, 1, 3')
    a('v_xor_b32 v2, v2, v8')
    a('v_lshlrev_b32 v2, 4, v2')
    a('v_lshl_add_u32 v2, v9, 7, v2')
    a(f's_lshl_b32 s{sT0}, s{sWT}, 13')
    a(f's_lshl_b32 s{sT1}, s{sWC}, 13')
    a(f's_add_u32 s{sT1}, s{sT1}, 16384')
    for kk in range(4):
        if kk:
            a(f'v_xor_b32 v8, {32*kk}, v2')
        else:
            a('v_mov_b32 v8, v2')
        for s in range(nset):
            a(f'v_add_u32 v{vRA[s]+kk}, s{sT0}, v8')
            a(f'v_add_u32 v{vRB[s]+kk}, s{sT1}, v8')
            if s:
                a(f'v_add_u32 v{vRA[s]+kk}, {65536*s}, v{vRA[s]+kk}')
                a(f'v_add_u32 v{vRB[s]+kk}, {65536*s}, v{vRB[s]+kk}')

    a(f's_and_b32 s{sT0}, s{sC}, 3')
    a(f's_mul_i32 s{sT0}, s{sT0}, 10')
    a(f's_add_u32 s{sT0}, s{sT0}, s{sB}')
    a(f's_lshl_b32 s{sT0}, s{sT0}, 2')
    a(f's_add_u32 s{sT0}, s{sT0}, s{sW}')
    a(f's_lshr_b32 s{sT1}, s{sC}, 2')
    for i in range(2):
        a(f's_add_u32 s{sT2}, s{sT0}, {160*i}')
        div_small(a, sT3, sT2, 5)
        a(f's_mul_i32 s{sT4}, s{sT3}, 5')
        a(f's_sub_u32 s{sT4}, s{sT2}, s{sT4}')
        a(f's_mul_i32 s{sT5}, s{sT1}, 5')
        a(f's_add_u32 s{sT4}, s{sT4}, s{sT5}')
        a(f's_mul_i32 s{sW2S+i}, s{sT3}, 40960')
        a(f's_lshl_b32 s{sT5}, s{sT4}, 6')
        a(f's_add_u32 s{sW2S+i}, s{sW2S+i}, s{sT5}')
        a(f's_add_u32 s{sT3}, s{sT3}, 40')
        a(f's_mul_i32 s{sT3}, s{sT3}, 5')
        for jj in range(2):
            d = sW2D + 2 * i + jj
            a(f's_lshl_b32 s{sT5}, s{sT4}, 1')
            if jj:
                a(f's_add_u32 s{sT5}, s{sT5}, 1')
            div_small(a, d, sT5, 5)
            a(f's_mul_i32 s{d}, s{d}, 435')
            a(f's_add_u32 s{d}, s{d}, s{sT5}')
            a(f's_add_u32 s{d}, s{d}, s{sT3}')
            a(f's_lshl_b32 s{d}, s{d}, 10')
            a(f's_add_u32 s{d}, s{d}, {WS_WT}')
        if i == 1:
            a(f's_cmp_ge_u32 s{sT2}, 240')
            a(f's_cselect_b32 s{sW2S+1}, {OOB}, s{sW2S+1}')
            a(f's_cselect_b32 s{sW2D+2}, {OOB}, s{sW2D+2}')
            a(f's_cselect_b32 s{sW2D+3}, {OOB}, s{sW2D+3}')
    CD = [sCD, sCD + 1, sCD2, sCD2 + 1]
    for i in range(2):
        a(f's_add_u32 s{sT2}, s{sT0}, {160*i}')
        div_small(a, sT3, sT2, 10)
        a(f's_mul_i32 s{sT4}, s{sT3}, 10')
        a(f's_sub_u32 s{sT4}, s{sT2}, s{sT4}')
        a(f's_mul_i32 s{sT5}, s{sT1}, 10')
        a(f's_add_u32 s{sT4}, s{sT4}, s{sT5}')
        a(f's_mul_i32 s{sCS+i}, s{sT4}, 20480')
        a(f's_lshl_b32 s{sT5}, s{sT3}, 6')
        a(f's_add_u32 s{sCS+i}, s{sCS+i}, s{sT5}')
        d0, d1 = CD[2*i], CD[2*i+1]
        div_small(a, d0, sT4, 5)
        a(f's_mul_i32 s{d0}, s{d0}, 435')
        a(f's_add_u32 s{d0}, s{d0}, s{sT4}')
        a(f's_mul_i32 s{sT5}, s{sT3}, 10')
        a(f's_add_u32 s{d0}, s{d0}, s{sT5}')
        a(f's_lshl_b32 s{d0}, s{d0}, 10')
        a(f's_add_u32 s{d0}, s{d0}, {WS_WT}')
        a(f's_add_u32 s{d1}, s{d0}, 5120')
        if i == 1:
            a(f's_cmp_ge_u32 s{sT2}, 200')
            a(f's_cselect_b32 s{sCS+1}, {OOB}, s{sCS+1}')
            a(f's_cselect_b32 s{d0}, {OOB}, s{d0}')
            a(f's_cselect_b32 s{d1}, {OOB}, s{d1}')
    a(f'v_lshrrev_b32 v2, 2, v{vL}')
    a(f's_movk_i32 s{sT5}, 1280')
    a(f'v_mul_lo_u32 v2, v2, s{sT5}')
    a(f'v_and_b32 v3, 3, v{vL}')
    a(f'v_lshl_add_u32 v{vW2A}, v3, 4, v2')
    a(f'v_add_u32 v{vCA}, 20480, v{vW2A}')
    a(f'v_subrev_u32 v{vCA}, 1024, v{vCA}')
    a(f'v_lshlrev_b32 v{vL16}, 4, v{vL}')
    a(f's_lshl_b32 s{sPB}, s{sW}, 13')
    a(f's_lshl_b32 s{sT0}, s{sC}, 7')
    a(f's_lshl_b32 s{sT1}, s{sB}, 4')
    a(f's_add_u32 s{sT0}, s{sT0}, s{sT1}')
    a(f's_lshl_b32 s{sT1}, s{sW}, 2')
    a(f's_add_u32 s{sT0}, s{sT0}, s{sT1}')
    a(f's_mul_i32 s{sGR}, s{sT0}, 1280')
    a(f's_cmp_ge_u32 s{sB}, 8')
    a(f's_cselect_b32 s{sGR}, {OOB}, s{sGR}')
    a(f's_add_u32 s{sGR2}, s{sGR}, 4096')
    thr = [None, 16, 32, 48, None]
    add = [0, 64, 48, 32, 16]
    for i in range(5):
        r = GW + 4 * i
        a(f'v_add_u32 v{r}, {add[i]}, v{vL}') if add[i] else a(f'v_mov_b32 v{r}, v{vL}')
        if thr[i]:
            a(f'v_cmp_le_u32 vcc, {thr[i]}, v{vL}')
            a(f'v_subrev_u32 v2, 80, v{r}')
            a('s_nop 0')
            a(f'v_cndmask_b32 v{r}, v{r}, v2, vcc')
        a(f'v_lshlrev_b32 v{r}, 4, v{r}')

    a.wait_vm('lam')
    a('v_lshlrev_b32 v3, 16, v61')
    a('v_lshlrev_b32 v4, 16, v62')
    a('v_lshlrev_b32 v5, 16, v63')
    a('v_mul_f32 v5, 0x3fb8aa3b, v5')
    a('v_exp_f32 v5, v5')
    a('s_nop 0')
    a('v_cvt_pk_bf16_f32 v5, v5, v5')
    a('v_lshlrev_b32 v5, 16, v5')
    a(f'v_mul_f32 v{TRE}, v5, v3')
    a(f'v_mul_f32 v{TRE+1}, v5, v4')
    a(f'v_mul_f32 v{TRE}, 0x3fb8aa3b, v{TRE}')
    a(f'v_exp_f32 v{TRE}, v{TRE}')
    a(f'v_mul_f32 v{TRE+1}, 0.15915494, v{TRE+1}')
    a(f'v_rndne_f32 v{TIM}, v{TRE+1}')
    a(f'v_sub_f32 v{TRE+1}, v{TRE+1}, v{TIM}')
    a(f'v_cos_f32 v{TIM}, v{TRE+1}')
    a(f'v_sin_f32 v{TIM+1}, v{TRE+1}')
    a('s_nop 0')
    a(f'v_mul_f32 v{LAM}, v{TRE}, v{TIM}')
    a(f'v_mul_f32 v{LAM+1}, v{TRE}, v{TIM+1}')
    a(f'v_add_f32 v{TRE}, -1.0, v{LAM}')
    a(f'v_mul_f32 v{TIM}, v3, v3')
    a(f'v_fmac_f32 v{TIM}, v4, v4')
    a(f'v_rcp_f32 v{TIM}, v{TIM}')
    a(f'v_mul_f32 v{COEF}, v{TRE}, v3')
    a(f'v_fmac_f32 v{COEF}, v{LAM+1}, v4')
    a(f'v_mul_f32 v{COEF+1}, v{LAM+1}, v3')
    a(f'v_fma_f32 v{COEF+1}, -v{TRE}, v4, v{COEF+1}')
    a(f'v_add_f32 v{TIM}, v{TIM}, v{TIM}')
    a(f'v_mul_f32 v{COEF}, v{COEF}, v{TIM}')
    a(f'v_mul_f32 v{COEF+1}, v{COEF+1}, v{TIM}')
    t0, t1 = G, G + 2
    csq(a, t0, t0 + 1, LAM, LAM + 1)
    csq(a, t1, t1 + 1, t0, t0 + 1)
    csq(a, t0, t0 + 1, t1, t1 + 1)
    csq(a, L16, L16 + 1, t0, t0 + 1)
    L32, L64 = G + 4, G + 6
    csq(a, L32, L32 + 1, L16, L16 + 1)
    csq(a, L64, L64 + 1, L32, L32 + 1)
    csq(a, L128, L128 + 1, L64, L64 + 1)
    csq(a, L256, L256 + 1, L128, L128 + 1)
    a(f'v_cmp_lt_u32 vcc, 31, v{vL}')
    a(f's_cmp_eq_u32 s{sWT}, 1')
    a(f's_cselect_b64 s[{sM0}:{sM0+1}], -1, 0')
    a(f'v_mov_b32 v{t0}, 1.0')
    a(f'v_mov_b32 v{t0+1}, 0')
    a(f'v_cndmask_b32 v{t1}, v{t0}, v{L32}, vcc')
    a(f'v_cndmask_b32 v{t1+1}, v{t0+1}, v{L32+1}, vcc')
    a(f'v_cndmask_b32 v{t0}, v{t0}, v{L64}, s[{sM0}:{sM0+1}]')
    a(f'v_cndmask_b32 v{t0+1}, v{t0+1}, v{L64+1}, s[{sM0}:{sM0+1}]')
    cmul_s(a, WRE, WIM, t0, t0 + 1, t1, t1 + 1)
    cmul_s(a, WRE + 1, WIM + 1, WRE, WIM, L16, L16 + 1)
    a(f'v_and_b32 v2, 31, v{vL}')
    a('v_lshrrev_b32 v3, 2, v2')
    a('v_lshlrev_b32 v3, 4, v3')
    a('v_and_b32 v2, 3, v2')
    a('v_lshl_add_u32 v3, v2, 2, v3')
    a(f'v_lshrrev_b32 v2, 5, v{vL}')
    a('v_lshl_add_u32 v3, v2, 11, v3')
    a(f's_lshl_b32 s{sT0}, s{sW}, 13')
    a(f's_add_u32 s{sT0}, s{sT0}, {TB0}')
    for u in range(16):
        a(f'v_xor_b32 v{TW+u}, {(u << 7) | ((u >> 1) << 4)}, v3')
        a(f'v_add_u32 v{TW+u}, s{sT0}, v{TW+u}')
    a(f's_lshl_b32 s{sFLAG}, s{sC}, 4')
    a(f's_add_u32 s{sFLAG}, s{sFLAG}, s{sB}')
    a(f's_lshl_b32 s{sFLAG}, s{sFLAG}, 7')
    a(f's_add_u32 s{sFLAG}, s{sFLAG}, {WS_FLAG}')

    def reads(stage):
        slot = stage % R
        st_, off = slot // 2, (slot % 2) * SLOT
        rs = stage & 1
        out = []
        for kk in range(4):
            for m in range(2):
                out.append(f'ds_read_b128 {areg(fA(rs, m, kk), 4)}, v{vRA[st_]+kk} offset:{off + 4096*m}')
            for part in range(2):
                out.append(f'ds_read_b128 {areg(fB(rs, part, kk), 4)}, v{vRB[st_]+kk} offset:{off + 4096*part}')
        return out

    def mfmas(stage, order='k'):
        rs = stage & 1
        if order == 'k':
            seq = [(kk, m, part) for kk in range(4) for m in range(2) for part in range(2)]
        else:
            seq = [(kk, m, part) for m in range(2) for kk in range(4) for part in range(2)]
        out = []
        for kk, m, part in seq:
            c = '0' if (stage == 0 and kk == 0) else vreg(acc(m, part), 16)
            out.append(f'v_mfma_f32_32x32x16_bf16 {vreg(acc(m, part), 16)}, {areg(fA(rs, m, kk), 4)}, {areg(fB(rs, part, kk), 4)}, {c}')
        return out

    def side_loads(which):
        out = []
        if which == 'w2':
            out.append(('s', f's_mov_b32 s{rT0}, s{sW2}'))
            out.append(('s', f's_mov_b32 s{rT0+1}, s{sW2+1}'))
            out.append(('s', f's_mov_b32 s{rT0+2}, {W2_BYTES}'))
            out.append(('s', f's_mov_b32 s{rT0+3}, 0x20000'))
            for i in range(2):
                out.append(('s', f's_add_u32 m0, s{sPB}, {PB + 2048*i}'))
                out.append(('s', 's_nop 0'))
                out.append(('v', f'buffer_load_dwordx4 v{vW2A}, s[{rT0}:{rT0+3}], s{sW2S+i} offen lds', 'prep'))
                out.append(('v', f'buffer_load_dwordx4 v{vCA}, s[{rT0}:{rT0+3}], s{sW2S+i} offen offset:1024 lds', 'prep'))
        if which == 'c':
            for ptr, r, o in ((sCRE, rT0, 0), (sCIM, rT1, 1024)):
                out.append(('s', f's_mov_b32 s{r}, s{ptr}'))
                out.append(('s', f's_mov_b32 s{r+1}, s{ptr+1}'))
                out.append(('s', f's_mov_b32 s{r+2}, {B_BYTES}'))
                out.append(('s', f's_mov_b32 s{r+3}, 0x20000'))
                for i in range(2):
                    out.append(('s', f's_add_u32 m0, s{sPB}, {PB + 4096 + 2048*i + o}'))
                    out.append(('s', 's_nop 0'))
                    out.append(('v', f'buffer_load_dwordx4 v{vW2A}, s[{r}:{r+3}], s{sCS+i} offen lds', 'prep'))
        if which == 'gate':
            out.append(('s', f's_mov_b32 s{rT0}, s{sGW}'))
            out.append(('s', f's_mov_b32 s{rT0+1}, s{sGW+1}'))
            out.append(('s', f's_mov_b32 s{rT0+2}, 1280'))
            out.append(('s', f's_mov_b32 s{rT0+3}, 0x20000'))
            for i in range(5):
                out.append(('v', f'buffer_load_dwordx4 {vreg(GW+4*i, 4)}, v{GW+4*i}, s[{rT0}:{rT0+3}], 0 offen', 'prep'))
            for i in range(5):
                so, off = (sGR, 1024 * i) if i < 4 else (sGR2, 0)
                out.append(('v', f'buffer_load_dwordx4 {vreg(GX+4*i, 4)}, v{vL16}, s[{rX}:{rX+3}], s{so} offen offset:{off}', 'prep'))
        return out

    a.wait_vm('st0')
    a('s_barrier')
    stamp(a, 2)
    emit(a, reads(0))
    for s in range(NST):
        a.comment(f'SSM stage {s}')
        a('s_waitcnt lgkmcnt(0)')
        mm = mfmas(s, 'k' if s < NST - 1 else 'm')
        slots = {}
        if s + 1 < NST:
            a(mm[0])
            a(mm[1])
            mm = mm[2:]
            a.wait_vm(f'st{s+1}')
            a('s_barrier')
            stage_stamp(a, s)
            rd = reads(s + 1)
            spread([rd[2*i:2*i+2] for i in range(8)], range(8), slots)
            if s + R < NST:
                spread(vm_groups(dma(s + R)), OPT['ssm_dma_pos'], slots)
            if s == 5:
                spread(vm_groups(side_loads('w2') + side_loads('c')), [0, 2, 4, 6, 8, 10, 12, 13], slots)
            if s == 6:
                spread(vm_groups(side_loads('gate')), [0, 1, 3, 4, 6, 7, 9, 10, 12, 13], slots)
            if s == 7:
                spread([nonce_load(a, NON)], [2], slots)
        emit(a, sched(mm, slots))
    stamp(a, 3)

    a('s_nop 7')
    a('s_nop 3')
    for u in range(1, 16):
        pr = ure(0) if u == 1 else SRE
        pi = uim(0) if u == 1 else SIM
        a(pk_fma(TRE, LAM, pi, ure(u), b0=1, neg0='both'))
        a(pk_fma(TIM, LAM, pr, uim(u), b0=1))
        a(pk_fma(SRE, LAM, pr, TRE, b0=0))
        a(pk_fma(SIM, LAM, pi, TIM, b0=0))
    a(f'v_and_b32 v2, 31, v{vL}')
    a(f's_lshl_b32 s{sT0}, s{sWC}, 5')
    a(f'v_add_u32 v2, s{sT0}, v2')
    a('v_lshlrev_b32 v9, 4, v2')
    a('v_lshlrev_b32 v2, 3, v2')
    a(f'v_add_u32 v2, {AGB}, v2')
    a(f'v_lshrrev_b32 v3, 5, v{vL}')
    a('v_lshl_add_u32 v3, v3, 10, v2')
    a(f's_lshl_b32 s{sT0}, s{sWT}, 11')
    a(f'v_add_u32 v3, s{sT0}, v3')
    a(f'ds_write2_b32 v3, v{SRE}, v{SIM} offset0:0 offset1:1')
    a(f'ds_write2_b32 v3, v{SRE+1}, v{SIM+1} offset0:128 offset1:129')
    a(f's_cmp_lg_u32 s{sW}, 0')
    a('s_cbranch_scc1 L_ssm_no_nonce2')
    nonce_wait(a, NON, 'ssm')
    a(f'v_mov_b32 v7, {AGB + 4096}')
    a('s_mov_b64 exec, 1')
    a(f'ds_write_b32 v7, v{NON}')
    a('s_mov_b64 exec, -1')
    a.label('L_ssm_no_nonce2')
    a('s_waitcnt lgkmcnt(0)')
    a('s_barrier')
    a(f'v_mov_b32 v7, {AGB + 4096}')
    a('ds_read_b32 v8, v7')
    for s in range(8):
        a(f'ds_read_b64 {pair(G+2*s)}, v2 offset:{512*s}')
    a('s_waitcnt lgkmcnt(0)')
    a(f'v_mov_b32 v{P}, v{G}')
    a(f'v_mov_b32 v{P+1}, v{G+1}')
    for s in range(1, 8):
        a(pk_fma(TRE, L16, P + 2*(s-1), G + 2*s, b0=0))
        a(pk_fma(P + 2*s, L16, P + 2*(s-1), TRE, b0=1, swap1=True, neg0='lo'))
    a(f'v_mov_b32 v{GR}, v{P+14}')
    a(f'v_mov_b32 v{GR+1}, v8')
    a(f'v_mov_b32 v{GR+2}, v{P+15}')
    a(f'v_mov_b32 v{GR+3}, v8')
    a(f's_lshl_b32 s{sT0}, s{sB}, 4')
    a(f's_add_u32 s{sT0}, s{sT0}, s{sC}')
    a(f's_lshl_b32 s{sT0}, s{sT0}, 10')
    a(f's_add_u32 s{sT0}, s{sT0}, {WS_AGG}')
    a(f's_cmp_lg_u32 s{sWT}, 0')
    a('s_cbranch_scc1 L_ssm_no_pub')
    a('s_mov_b32 exec_hi, 0')
    a(f'buffer_store_dwordx4 {vreg(GR, 4)}, v9, s[{rWS}:{rWS+3}], s{sT0} offen sc0 sc1')
    a('s_mov_b64 exec, -1')
    a.label('L_ssm_no_pub')
    a(f'v_readfirstlane_b32 s{sNONCE}, v8')
    stamp(a, 4)

    a(f'v_cmp_lt_u32 vcc, 31, v{vL}')
    a(f'v_mov_b32 v{TRE}, 0')
    a('s_nop 0')
    PS = G
    for comp in range(2):
        a(f'v_cndmask_b32 v{TIM}, v{TRE}, v{P+2+comp}, vcc')
        a(f'v_cndmask_b32 v{TIM+1}, v{P+6+comp}, v{P+10+comp}, vcc')
        a(f'v_cndmask_b32 v{PS+comp}, v{TIM}, v{TIM+1}, s[{sM0}:{sM0+1}]')
        a(f'v_cndmask_b32 v{TIM}, v{P+comp}, v{P+4+comp}, vcc')
        a(f'v_cndmask_b32 v{TIM+1}, v{P+8+comp}, v{P+12+comp}, vcc')
        a(f'v_cndmask_b32 v{PS+2+comp}, v{TIM}, v{TIM+1}, s[{sM0}:{sM0+1}]')
    CPR, CPI, CWR, CWI = G + 4, G + 6, G + 8, G + 10
    for sg_ in range(2):
        cmul_s(a, CPR + sg_, CPI + sg_, COEF, COEF + 1, PS + 2*sg_, PS + 2*sg_ + 1)
        cmul_s(a, CWR + sg_, CWI + sg_, COEF, COEF + 1, WRE + sg_, WIM + sg_)
    a(f's_lshl_b32 s{sT0}, s{sB}, 14')
    a(f's_add_u32 s{sT0}, s{sT0}, {WS_AGG}')
    LA = P
    a(f'v_lshrrev_b32 v2, 5, v{vL}')
    a(f's_sub_u32 s{sT1}, s{sC}, 1')
    a(f'v_sub_u32 v2, s{sT1}, v2')
    a('v_lshl_add_u32 v9, v2, 10, v9')
    for i in range(8):
        a(f'v_subrev_u32 v{LA+i}, {2048*i}, v9')
    a(f'v_mov_b32 v9, v2')
    for u in range(16):
        a(pk_mul(TRE, COEF, uim(u), b0=1))
        a(pk_mul(TIM, COEF, ure(u), b0=1))
        a(f'v_pk_fma_f32 {pair(ure(u))}, {pair(COEF)}, {pair(ure(u))}, {pair(TRE)} op_sel:[0,0,0] op_sel_hi:[0,1,1] neg_lo:[0,0,1] neg_hi:[0,0,1]')
        a(pk_fma(uim(u), COEF, uim(u), TIM, b0=0))

    a.wait_vm('prep')
    T = GR
    a(f'v_lshrrev_b32 v4, 5, v{vL}')
    a('v_lshlrev_b32 v4, 4, v4')
    a(f'v_bfe_u32 v5, v{vL}, 4, 1')
    a('v_lshl_add_u32 v4, v5, 2, v4')
    a(f'v_bfe_u32 v5, v{vL}, 2, 2')
    a('v_add_u32 v4, v4, v5')
    a('v_lshlrev_b32 v4, 6, v4')
    a(f'v_and_b32 v5, 3, v{vL}')
    a('v_lshl_add_u32 v4, v5, 3, v4')
    a(f'v_add_u32 v4, s{sPB}, v4')
    for i in range(2):
        for jj in range(2):
            o = T + 8 * i + 4 * jj
            a(f'ds_read_b64_tr_b16 {vreg(o, 2)}, v4 offset:{PB + 2048*i + 32*jj}')
            a(f'ds_read_b64_tr_b16 {vreg(o+2, 2)}, v4 offset:{PB + 2048*i + 32*jj + 512}')
    a(f'v_and_b32 v5, 15, v{vL}')
    a('v_lshlrev_b32 v5, 6, v5')
    a(f'v_lshrrev_b32 v6, 4, v{vL}')
    a('v_lshl_add_u32 v5, v6, 3, v5')
    a(f'v_add_u32 v5, s{sPB}, v5')
    CR = T + 16
    for i in range(2):
        for k2 in range(2):
            o = CR + 8 * i + 4 * k2
            a(f'ds_read_b64 {vreg(o, 2)}, v5 offset:{PB + 4096 + 2048*i + 32*k2}')
            a(f'ds_read_b64 {vreg(o+2, 2)}, v5 offset:{PB + 4096 + 2048*i + 32*k2 + 1024}')
    a('s_waitcnt lgkmcnt(8)')
    for i in range(2):
        for jj in range(2):
            a.vmem(f'buffer_store_dwordx4 {vreg(T + 8*i + 4*jj, 4)}, v{vL16}, s[{rWS}:{rWS+3}], s{sW2D + 2*i + jj} offen{SC}', 'pst')
    a(f's_mov_b32 s{sT0}, 0x05040100')
    a(f's_mov_b32 s{sT1}, 0x07060302')
    a('s_waitcnt lgkmcnt(0)')
    CO = G + 12
    CO2 = 2
    for n_, (i, k2) in enumerate([(0, 0), (0, 1), (1, 0), (1, 1)]):
        o = CR + 8 * i + 4 * k2
        d = CO if n_ % 2 == 0 else CO2
        a(f'v_perm_b32 v{d}, v{o+2}, v{o}, s{sT0}')
        a(f'v_perm_b32 v{d+1}, v{o+2}, v{o}, s{sT1}')
        a(f'v_perm_b32 v{d+2}, v{o+3}, v{o+1}, s{sT0}')
        a(f'v_perm_b32 v{d+3}, v{o+3}, v{o+1}, s{sT1}')
        a.vmem(f'buffer_store_dwordx4 {vreg(d, 4)}, v{vL16}, s[{rWS}:{rWS+3}], s{CD[2*i + k2]} offen{SC}', 'pst')
    a(f's_cmp_ge_u32 s{sB}, 8')
    a('s_cbranch_scc1 L_ssm_no_gate')
    a(f's_mov_b32 s{sHI}, 0xffff0000')
    a(f's_mov_b32 s{sT0}, 0x3f803f80')
    a(f's_mov_b32 s{sT1}, 0x0000ffff')
    U = T
    for i in range(5):
        a(f'v_mov_b32 v{U+8+i}, 0')
    for i in range(5):
        for dp in range(2):
            xs = [GX + 4 * i + 2 * dp + e for e in range(2)]
            ws = [GW + 4 * i + 2 * dp + e for e in range(2)]
            for e in range(2):
                a(f'v_and_b32 v{U+2*e}, s{sT1}, v{ws[e]}')
                a(f'v_and_b32 v{U+2*e+1}, s{sHI}, v{ws[e]}')
            for e in range(2):
                a(f'v_dot2_f32_bf16 v{U+4+2*e}, v{xs[e]}, v{U+2*e}, 0')
                a(f'v_dot2_f32_bf16 v{U+4+2*e+1}, v{xs[e]}, v{U+2*e+1}, 0')
            a('s_nop 1')
            a(f'v_cvt_pk_bf16_f32 v{U}, v{U+4}, v{U+5}')
            a(f'v_cvt_pk_bf16_f32 v{U+1}, v{U+6}, v{U+7}')
            a(f'v_dot2_f32_bf16 v{U+8+i}, v{U}, s{sT0}, v{U+8+i}')
            a(f'v_dot2_f32_bf16 v{U+8+i}, v{U+1}, s{sT0}, v{U+8+i}')
    S = [U + 8 + i for i in range(5)]
    Z = [U + 16 + j for j in range(4)]
    a('s_nop 2')
    for j, th in enumerate((16, 32, 48)):
        a(f'v_cmp_gt_u32 vcc, {th}, v{vL}')
        a(f'v_mov_b32 v{U}, 0')
        a('s_nop 0')
        a(f'v_cndmask_b32 v{U+1}, v{U}, v{S[j+1]}, vcc')
        a(f'v_cndmask_b32 v{U+2}, v{S[j+1]}, v{U}, vcc')
        if j == 0:
            a(f'v_add_f32 v{Z[0]}, v{S[0]}, v{U+1}')
        else:
            a(f'v_add_f32 v{Z[j]}, v{Z[j]}, v{U+1}')
        a(f'v_mov_b32 v{Z[j+1]}, v{U+2}')
    a(f'v_add_f32 v{Z[3]}, v{Z[3]}, v{S[4]}')
    for sh in (1, 2, 4, 8):
        for z in Z:
            a(f'v_add_f32_dpp v{z}, v{z}, v{z} row_ror:{sh} row_mask:0xf bank_mask:0xf')
    for z in Z:
        a(f'v_add_f32_dpp v{z}, v{z}, v{z} row_bcast:15 row_mask:0xa bank_mask:0xf')
    for z in Z:
        a(f'v_add_f32_dpp v{z}, v{z}, v{z} row_bcast:31 row_mask:0xc bank_mask:0xf')
    a('s_nop 0')
    for j, z in enumerate(Z):
        a(f'v_readlane_b32 s{sT2+j}, v{z}, 63')
    a('s_nop 3')
    for j in range(4):
        a(f'v_writelane_b32 v{U}, s{sT2+j}, {j}')
    z = U
    a('s_nop 0')
    a(f'v_cvt_pk_bf16_f32 v{z}, v{z}, v{z}')
    a(f'v_lshlrev_b32 v{z}, 16, v{z}')
    a(f'v_mul_f32 v{z}, 0xbfb8aa3b, v{z}')
    a(f'v_exp_f32 v{z}, v{z}')
    a('s_nop 0')
    a(f'v_add_f32 v{z}, 1.0, v{z}')
    a(f'v_rcp_f32 v{z}, v{z}')
    a('s_nop 0')
    a(f'v_cvt_pk_bf16_f32 v{z}, v{z}, v{z}')
    a(f'v_lshlrev_b32 v{z}, 16, v{z}')
    a(f's_lshl_b32 s{sT0}, s{sC}, 7')
    a(f's_lshl_b32 s{sT1}, s{sB}, 4')
    a(f's_add_u32 s{sT0}, s{sT0}, s{sT1}')
    a(f's_lshl_b32 s{sT1}, s{sW}, 2')
    a(f's_add_u32 s{sT0}, s{sT0}, s{sT1}')
    a(f's_lshl_b32 s{sT0}, s{sT0}, 2')
    a(f's_add_u32 s{sT0}, s{sT0}, {WS_G}')
    a(f'v_lshlrev_b32 v4, 2, v{vL}')
    a('s_mov_b64 exec, 15')
    a(f'buffer_store_dword v{z}, v4, s[{rWS}:{rWS+3}], s{sT0} offen{SC}')
    a('s_mov_b64 exec, -1')
    a.label('L_ssm_no_gate')
    stamp(a, 5)

    a(f's_lshl_b32 s{sT0}, s{sB}, 14')
    a(f's_add_u32 s{sT0}, s{sT0}, {WS_AGG}')
    a(f's_add_u32 s{rT0}, s{sWS}, s{sT0}')
    a(f's_addc_u32 s{rT0+1}, s{sWS+1}, 0')
    a(f's_mov_b32 s{rT0+2}, 16384')
    a(f's_mov_b32 s{rT0+3}, 0x20000')
    a(f's_mov_b32 s{sT2}, 0')
    a.label('L_ssm_poll')
    for i in range(8):
        a(f'buffer_load_dwordx4 {vreg(GR+4*i, 4)}, v{LA+i}, s[{rT0}:{rT0+3}], 0 offen sc0 sc1')
    a('s_waitcnt vmcnt(0)')
    a.vm = []
    a(f's_mov_b64 s[{sM1}:{sM1+1}], -1')
    for i in range(8):
        a(f'v_cmp_eq_u32 vcc, s{sNONCE}, v{GR+4*i+1}')
        a(f'v_cmp_eq_u32 s[{sT3}:{sT4}], s{sNONCE}, v{GR+4*i+3}')
        a(f's_and_b64 vcc, vcc, s[{sT3}:{sT4}]')
        a(f'v_cmp_gt_i32 s[{sT3}:{sT4}], {2*i}, v9')
        a(f's_or_b64 vcc, vcc, s[{sT3}:{sT4}]')
        a(f's_and_b64 s[{sM1}:{sM1+1}], s[{sM1}:{sM1+1}], vcc')
    a(f's_cmp_eq_u64 s[{sM1}:{sM1+1}], -1')
    a('s_cbranch_scc1 L_ssm_poll_done')
    a(f's_add_u32 s{sT2}, s{sT2}, 1')
    a(f's_cmp_lt_u32 s{sT2}, 0x40000')
    a('s_cbranch_scc0 L_ssm_poll_done')
    a('s_sleep 1')
    a('s_branch L_ssm_poll')
    a.label('L_ssm_poll_done')
    stamp(a, 6)
    a(f'v_mov_b32 v{SRE}, v{GR+28}')
    a(f'v_mov_b32 v{SRE+1}, v{GR+30}')
    for i in range(6, -1, -1):
        a(f'v_mov_b32 v{TIM}, v{GR+4*i}')
        a(f'v_mov_b32 v{TIM+1}, v{GR+4*i+2}')
        a(pk_fma(TRE, L256, SRE, TIM, b0=0))
        a(pk_fma(SRE, L256, SRE, TRE, b0=1, swap1=True, neg0='lo'))
    cmul_s(a, TRE, TRE + 1, L128, L128 + 1, SRE, SRE + 1)
    a(f'v_cmp_lt_u32 vcc, 31, v{vL}')
    a('s_nop 1')
    a(f'v_cndmask_b32 v{SRE}, v{SRE}, v{TRE}, vcc')
    a(f'v_cndmask_b32 v{SRE+1}, v{SRE+1}, v{TRE+1}, vcc')
    a(f'v_mov_b32 v{TRE}, v{SRE}')
    a(f'v_mov_b32 v{TRE+1}, v{SRE+1}')
    a('s_nop 1')
    a(f'v_permlane32_swap_b32 v{SRE}, v{TRE}')
    a(f'v_permlane32_swap_b32 v{SRE+1}, v{TRE+1}')
    a('s_nop 1')
    a(f'v_add_f32 v{SRE}, v{SRE}, v{TRE}')
    a(f'v_add_f32 v{SRE+1}, v{SRE+1}, v{TRE+1}')
    HR, HI = TRE, TIM
    a(pk_fma(HR, CWR, SRE, CPR, b1=0))
    a(pk_fma(HI, CWR, SRE, CPI, b1=1))
    a(pk_fma(HR, CWI, SRE, HR, b1=1, neg0='both'))
    a(pk_fma(HI, CWI, SRE, HI, b1=0))
    D0 = GR

    def cv(v):
        d = D0 + 2 * v
        a(f'v_cvt_pk_bf16_f32 v{d}, v{ure(v)}, -v{uim(v)}')
        a(f'v_cvt_pk_bf16_f32 v{d+1}, v{ure(v)+1}, -v{uim(v)+1}')
        a(f'ds_write2st64_b32 v{TW+v}, v{d}, v{d+1} offset0:0 offset1:16')
    for u in range(16):
        pr = HR if u == 0 else ure(u - 1)
        pi = HI if u == 0 else uim(u - 1)
        a(pk_fma(ure(u), LAM, pi, ure(u), b0=1, neg0='both'))
        a(pk_fma(uim(u), LAM, pr, uim(u), b0=1))
        a(pk_fma(ure(u), LAM, pr, ure(u), b0=0))
        a(pk_fma(uim(u), LAM, pi, uim(u), b0=0))
        if u:
            cv(u - 1)
    cv(15)
    a(f'v_and_b32 v2, 15, v{vL}')
    a(f'v_lshrrev_b32 v3, 4, v{vL}')
    a('v_lshrrev_b32 v4, 1, v2')
    a('v_xor_b32 v3, v3, v4')
    a('v_lshlrev_b32 v3, 4, v3')
    a('v_lshl_add_u32 v3, v2, 7, v3')
    a(f's_lshl_b32 s{sT0}, s{sW}, 13')
    a(f's_add_u32 s{sT0}, s{sT0}, {TB0}')
    a(f'v_add_u32 v3, s{sT0}, v3')
    a('v_xor_b32 v4, 64, v3')
    rowoff = [0, 4096, 2048, 6144]
    for kp in range(2):
        for tb in range(4):
            a(f'ds_read_b128 {vreg(ACC + 16*kp + 4*tb, 4)}, v{3+kp} offset:{rowoff[tb]}')
    a(f's_lshl_b32 s{sT0}, s{sC}, 1')
    a(f's_add_u32 s{sT0}, s{sT0}, s{sWT}')
    a(f's_mul_i32 s{sT0}, s{sT0}, 88')
    a(f's_lshl_b32 s{sT1}, s{sB}, 2')
    a(f's_add_u32 s{sT0}, s{sT0}, s{sT1}')
    a(f's_lshl_b32 s{sT1}, s{sWC}, 1')
    a(f's_add_u32 s{sT0}, s{sT0}, s{sT1}')
    a(f's_lshl_b32 s{sT0}, s{sT0}, 12')
    a(f's_add_u32 s{sT1}, s{sT0}, 4096')
    for kp in range(2):
        for tb in range(4):
            a(f's_waitcnt lgkmcnt({7 - (4*kp + tb)})')
            a(f'buffer_store_dwordx4 {vreg(ACC + 16*kp + 4*tb, 4)}, v{vL16}, s[{rWS}:{rWS+3}], s{sT0 + kp} offen offset:{1024*tb}{SC}')
    stamp(a, 7)
    signal_done(a, 'ssm')
    if OPT['diag']:
        a('v_mov_b32 v127, v255')
        a('v_mov_b32 v126, v254')
    a('s_branch L_phase2')


def gen_ffn(a):
    R = 3
    SLOT = 49152
    NST = 10
    vL = 1
    vX, vW = 10, 14
    vRX = [22 + 4 * s for s in range(R)]
    vRW = [34 + 4 * s for s in range(R)]
    NON = 46
    ACC = 128
    PK = 64

    def acc(mf, nt):
        return ACC + 16 * (2 * mf + nt)

    def fX(s, nt, kk):
        return 96 * s + 16 * nt + 4 * kk

    def fW(s, mf, kk):
        return 96 * s + 32 + 16 * mf + 4 * kk

    DV[:] = [127, 126]
    a(f's_lshr_b32 s{sWT}, s{sW}, 1')
    a(f's_and_b32 s{sWC}, s{sW}, 1')
    srd(a, rX, sX, X_BYTES)
    srd(a, rB, sW1, W1_BYTES)
    a(f'v_lshrrev_b32 v2, 4, v{vL}')
    a(f'v_and_b32 v3, 7, v{vL}')
    a('v_xor_b32 v3, v2, v3')
    a('v_lshlrev_b32 v3, 4, v3')
    a('v_xor_b32 v4, 64, v3')
    a(f's_lshl_b32 s{sT0}, s{sC}, 7')
    a(f's_lshl_b32 s{sT1}, s{sW}, 5')
    a(f's_add_u32 s{sT0}, s{sT0}, s{sT1}')
    a(f'v_lshrrev_b32 v5, 3, v{vL}')
    a(f'v_add_u32 v5, s{sT0}, v5')
    a(f's_movk_i32 s{sT2}, 1280')
    a(f'v_mul_lo_u32 v5, v5, s{sT2}')
    for i in range(4):
        a(f'v_add_u32 v{vX+i}, v5, v{3 + (i & 1)}')
        if i:
            a(f'v_add_u32 v{vX+i}, {9216*i}, v{vX+i}')
    a(f'v_lshrrev_b32 v2, 5, v{vL}')
    a(f's_lshl_b32 s{sT0}, s{sW}, 4')
    a(f'v_add_u32 v5, s{sT0}, v2')
    a(f's_movk_i32 s{sT2}, 3072')
    a(f'v_mul_lo_u32 v5, v5, s{sT2}')
    a(f's_lshl_b32 s{sT0}, s{sB}, 9')
    a(f'v_add_u32 v5, s{sT0}, v5')
    a(f'v_and_b32 v6, 31, v{vL}')
    a('v_lshlrev_b32 v7, 2, v2')
    a('v_xor_b32 v6, v6, v7')
    a('v_lshlrev_b32 v6, 4, v6')
    a('v_xor_b32 v7, 128, v6')
    for i in range(8):
        a(f'v_add_u32 v{vW+i}, v5, v{6 + (i & 1)}')
        off = 6144 * i - 1024 * (i & 3)
        if off:
            a(f'v_add_u32 v{vW+i}, {off}, v{vW+i}')
    a(f's_lshl_b32 s{sMA}, s{sW}, 12')
    a(f's_lshl_b32 s{sMB}, s{sW}, 13')
    a(f's_add_u32 s{sMB}, s{sMB}, 16384')

    def dma(stage):
        slot = stage % R
        out = []
        out.append(('s', f's_mov_b32 s{sK}, {stage*128}'))
        out.append(('s', f's_add_u32 m0, s{sMA}, {slot*SLOT}'))
        out.append(('s', f's_mov_b32 s{sK2}, {stage*64*3072}'))
        for i in range(4):
            out.append(('v', f'buffer_load_dwordx4 v{vX+i}, s[{rX}:{rX+3}], s{sK} offen offset:{1024*i} lds', f'st{stage}'))
        for h in range(2):
            out.append(('s', f's_add_u32 m0, s{sMB}, {slot*SLOT + 4096*h}'))
            out.append(('s', 's_nop 0'))
            for i in range(4):
                out.append(('v', f'buffer_load_dwordx4 v{vW+4*h+i}, s[{rB}:{rB+3}], s{sK2} offen offset:{1024*i} lds', f'st{stage}'))
        return out

    for st in range(R):
        emit(a, dma(st))
    stamp(a, 1)
    srd(a, rWS, sWS, WS_SIZE)

    a(f'v_and_b32 v9, 31, v{vL}')
    a(f'v_lshrrev_b32 v2, 5, v{vL}')
    a(f'v_bfe_u32 v3, v{vL}, 1, 3')
    a('v_xor_b32 v2, v2, v3')
    a('v_lshlrev_b32 v2, 4, v2')
    a('v_lshl_add_u32 v2, v9, 7, v2')
    a(f's_lshl_b32 s{sT0}, s{sWT}, 13')
    a(f'v_add_u32 v2, s{sT0}, v2')
    for kk in range(4):
        for s in range(R):
            if kk:
                a(f'v_xor_b32 v{vRX[s]+kk}, {32*kk}, v2')
            else:
                a(f'v_mov_b32 v{vRX[s]+kk}, v2')
            if s:
                a(f'v_add_u32 v{vRX[s]+kk}, {SLOT*s}, v{vRX[s]+kk}')
    a(f'v_lshrrev_b32 v2, 5, v{vL}')
    a('v_lshlrev_b32 v2, 3, v2')
    a(f'v_bfe_u32 v3, v{vL}, 2, 2')
    a('v_add_u32 v2, v2, v3')
    a('v_lshlrev_b32 v2, 9, v2')
    a(f'v_bfe_u32 v4, v{vL}, 4, 1')
    a('v_lshl_add_u32 v2, v4, 5, v2')
    a(f'v_and_b32 v4, 3, v{vL}')
    a('v_lshl_add_u32 v2, v4, 3, v2')
    a('v_lshl_add_u32 v2, v3, 6, v2')
    a(f's_lshl_b32 s{sT0}, s{sWC}, 8')
    a(f's_add_u32 s{sT0}, s{sT0}, 16384')
    a(f'v_add_u32 v2, s{sT0}, v2')
    for mf in range(4):
        for s in range(R):
            if mf:
                a(f'v_xor_b32 v{vRW[s]+mf}, {64*mf}, v2')
            else:
                a(f'v_mov_b32 v{vRW[s]+mf}, v2')
            if s:
                a(f'v_add_u32 v{vRW[s]+mf}, {SLOT*s}, v{vRW[s]+mf}')
    a(f's_lshl_b32 s{sFLAG}, s{sC}, 4')
    a(f's_add_u32 s{sFLAG}, s{sFLAG}, s{sB}')
    a(f's_add_u32 s{sFLAG}, s{sFLAG}, 10')
    a(f's_lshl_b32 s{sFLAG}, s{sFLAG}, 7')
    a(f's_add_u32 s{sFLAG}, s{sFLAG}, {WS_FLAG}')

    def reads(stage):
        slot = stage % R
        rs = stage & 1
        out = []
        for kk in range(4):
            for nt in range(2):
                out.append(f'ds_read_b128 {areg(fX(rs, nt, kk), 4)}, v{vRX[slot]+kk} offset:{4096*nt}')
            for mf in range(4):
                for n in range(2):
                    out.append(f'ds_read_b64_tr_b16 {areg(fW(rs, mf, kk) + 2*n, 2)}, v{vRW[slot]+mf} offset:{8192*kk + 2048*n}')
        return out

    def mf_(rs, stage, kk, mf, nt):
        c = '0' if (stage == 0 and kk == 0) else vreg(acc(mf, nt), 16)
        return f'v_mfma_f32_32x32x16_bf16 {vreg(acc(mf, nt), 16)}, {areg(fW(rs, mf, kk), 4)}, {areg(fX(rs, nt, kk), 4)}, {c}'

    a.wait_vm('st0')
    a('s_barrier')
    stamp(a, 2)
    emit(a, reads(0))
    for s in range(NST - 1):
        a.comment(f'FFN stage {s}')
        a('s_waitcnt lgkmcnt(0)')
        rs = s & 1
        mm = [mf_(rs, s, kk, mf, nt) for kk in range(4) for mf in range(4) for nt in range(2)]
        a(mm[0])
        a(mm[1])
        mm = mm[2:]
        a.wait_vm(f'st{s+1}')
        a('s_barrier')
        stage_stamp(a, s)
        slots = {}
        rd = reads(s + 1)
        spread([rd[2*i:2*i+2] for i in range(20)], range(20), slots)
        if s + R < NST:
            spread(vm_groups(dma(s + R)), OPT['ffn_dma_pos'], slots)
        if s == 7:
            spread([nonce_load(a, NON)], [4], slots)
        emit(a, sched(mm, slots))
    s = NST - 1
    rs = s & 1
    a('s_waitcnt lgkmcnt(0)')
    stamp(a, 3)
    a(f'v_bfe_u32 v2, v{vL}, 4, 1')
    a('v_lshlrev_b32 v2, 10, v2')
    a(f'v_lshrrev_b32 v3, 5, v{vL}')
    a('v_lshl_add_u32 v2, v3, 8, v2')
    a(f'v_and_b32 v3, 15, v{vL}')
    a('v_lshl_add_u32 v2, v3, 4, v2')
    a(f's_lshl_b32 s{sT0}, s{sC}, 1')
    a(f's_add_u32 s{sT0}, s{sT0}, s{sWT}')
    a(f's_mul_i32 s{sT0}, s{sT0}, 88')
    a(f's_lshl_b32 s{sT1}, s{sB}, 3')
    a(f's_add_u32 s{sT0}, s{sT0}, s{sT1}')
    a(f's_lshl_b32 s{sT1}, s{sWC}, 2')
    a(f's_add_u32 s{sT0}, s{sT0}, s{sT1}')
    a(f's_add_u32 s{sT0}, s{sT0}, 40')
    a(f's_lshl_b32 s{sT0}, s{sT0}, 12')
    for mf in range(1, 4):
        a(f's_add_u32 s{sT0+mf}, s{sT0}, {4096*mf}')
    tiles = [(mf, nt) for mf in range(4) for nt in range(2)]

    def epi(idx):
        mf, nt = tiles[idx]
        base = PK + 8 * (idx & 3)
        out = []
        for P_ in range(2):
            for d in range(4):
                r = acc(mf, nt) + 8 * P_ + 2 * d
                out.append(f'v_cvt_pk_bf16_f32 v{base+4*P_+d}, v{r}, v{r+1}')
            for d in range(4):
                out.append(f'v_pk_max_i16 v{base+4*P_+d}, v{base+4*P_+d}, 0')
            out.append(('v', f'buffer_store_dwordx4 {vreg(base+4*P_, 4)}, v2, s[{rWS}:{rWS+3}], s{sT0+mf} offen offset:{2048*nt + 512*P_}{SC}', 'h1'))
        return out

    for idx, (mf, nt) in enumerate(tiles):
        mm = [mf_(rs, s, kk, mf, nt) for kk in range(4)]
        if idx >= 2:
            e = epi(idx - 2)
            a(mm[0])
            if idx == 2:
                a('s_nop 7')
            emit(a, e[:5])
            a(mm[1])
            emit(a, e[5:10])
            a(mm[2])
            emit(a, e[10:14])
            a(mm[3])
            emit(a, e[14:])
        else:
            emit(a, mm)
    emit(a, epi(len(tiles) - 2))
    emit(a, epi(len(tiles) - 1))
    stamp(a, 4)
    a(f's_cmp_lg_u32 s{sW}, 0')
    a('s_cbranch_scc1 L_ffn_no_nonce')
    nonce_wait(a, NON, 'ffn')
    a.label('L_ffn_no_nonce')
    signal_done(a, 'ffn')


def gen_phase2(a):
    D = OPT['K2D']
    vL = 1
    ACC = 128
    PSZ = 64 * 336
    XS, DS, GG = 16, 26, 36
    SK = 44
    OA, RA, GA = 64, 70, 76
    DV[:] = [127, 126]

    def acc(tb, nt):
        return ACC + 4 * (5 * tb + nt)

    def fH(d, tb):
        return 36 * d + 4 * tb

    def fWt(d, nt):
        return 36 * d + 16 + 4 * nt

    a.label('L_phase2')
    stamp(a, 8)
    a(f's_and_b32 s{sT0}, s2, 3')
    a(f's_lshl_b32 s{sT0}, s{sT0}, 3')
    a(f's_bfe_u32 s{sT1}, s2, 0x30003')
    a(f's_add_u32 s{sC}, s{sT0}, s{sT1}')
    a(f's_bfe_u32 s{sT0}, s2, 0x10002')
    a(f's_lshl_b32 s{sT0}, s{sT0}, 2')
    a(f's_lshr_b32 s{sT1}, s2, 6')
    a(f's_add_u32 s{sB}, s{sT0}, s{sT1}')
    srd(a, rX, sX, X_BYTES)
    srd(a, rB, sDSK, 1280)
    for i in range(5):
        a(f'v_add_u32 v4, {64*i}, v{vL}')
        a('v_mul_u32_u24 v5, 0xccd, v4')
        a('v_lshrrev_b32 v5, 16, v5')
        a('v_mul_u32_u24 v6, 20, v5')
        a('v_sub_u32 v6, v4, v6')
        a(f's_lshl_b32 s{sT2}, s{sW}, 4')
        a(f'v_add_u32 v5, s{sT2}, v5')
        a('v_mul_u32_u24 v7, 336, v5')
        a(f'v_lshl_add_u32 v{RA+i}, v6, 4, v7')
        a(f's_lshl_b32 s{sT2}, s{sC}, 6')
        a(f'v_add_u32 v5, s{sT2}, v5')
        a(f's_mul_i32 s{sT3}, s{sB}, 80')
        a('v_lshlrev_b32 v6, 2, v6')
        a(f'v_add_u32 v6, s{sT3}, v6')
        a('v_mul_u32_u24 v7, 640, v5')
        a('v_add_u32 v7, v7, v6')
        a(f'v_lshlrev_b32 v{OA+i}, 2, v7')
        a('v_lshlrev_b32 v7, 1, v7')
        a.vmem(f'buffer_load_dwordx2 {vreg(XS+2*i, 2)}, v7, s[{rX}:{rX+3}], 0 offen', 'epi')
        a('v_lshlrev_b32 v6, 1, v6')
        a.vmem(f'buffer_load_dwordx2 {vreg(DS+2*i, 2)}, v6, s[{rB}:{rB+3}], 0 offen', 'epi')
        a('v_lshlrev_b32 v5, 2, v5')
        a(f'v_add_u32 v{GA+i}, {WS_G}, v5')
    a(f's_mul_i32 s{sT0}, s{sW}, 20')
    a(f's_cmp_eq_u32 s{sW}, 3')
    a(f's_cselect_b32 s{sT1}, 4, 0')
    a(f's_add_u32 s{sT0}, s{sT0}, s{sT1}')
    a(f's_cmp_ge_u32 s{sW}, 2')
    a(f's_cselect_b32 s{sT1}, 24, 20')
    a(f's_mul_i32 s{sT2}, s{sC}, 88')
    a(f's_add_u32 s{sT2}, s{sT2}, s{sT0}')
    a(f's_lshl_b32 s{sT2}, s{sT2}, 12')
    a(f's_add_u32 s{rT0}, s{sWS}, s{sT2}')
    a(f's_addc_u32 s{rT0+1}, s{sWS+1}, 0')
    a(f's_lshl_b32 s{rT0+2}, s{sT1}, 12')
    a(f's_mov_b32 s{rT0+3}, 0x20000')
    a(f's_mul_i32 s{sT2}, s{sB}, 88')
    a(f's_add_u32 s{sT2}, s{sT2}, s{sT0}')
    a(f's_mul_i32 s{sT2}, s{sT2}, 5120')
    a(f's_add_u32 s{sT2}, s{sT2}, {WS_WT}')
    a(f's_add_u32 s{rT1}, s{sWS}, s{sT2}')
    a(f's_addc_u32 s{rT1+1}, s{sWS+1}, 0')
    a(f's_mul_i32 s{rT1+2}, s{sT1}, 5120')
    a(f's_mov_b32 s{rT1+3}, 0x20000')
    a(f'v_lshlrev_b32 v2, 4, v{vL}')
    a('v_add_u32 v3, 4096, v2')
    for r in range(80):
        a(f'v_mov_b32 v{ACC+r}, 0')
    a(f's_mov_b32 s{sHI}, 0xffff0000')
    a.wait_vm('epi')
    for i in range(5):
        for h in range(2):
            x, dd, o = XS + 2*i + h, DS + 2*i + h, SK + 4*i + 2*h
            a(f'v_lshlrev_b32 v4, 16, v{x}')
            a(f'v_and_b32 v5, s{sHI}, v{x}')
            a(f'v_lshlrev_b32 v6, 16, v{dd}')
            a(f'v_and_b32 v7, s{sHI}, v{dd}')
            a('v_mul_f32 v4, v4, v6')
            a('v_mul_f32 v5, v5, v7')
            a('v_cvt_pk_bf16_f32 v4, v4, v5')
            a(f'v_lshlrev_b32 v{o}, 16, v4')
            a(f'v_and_b32 v{o+1}, s{sHI}, v4')

    a(f's_cmp_lg_u32 s{sW}, 0')
    a('s_cbranch_scc1 L_p2_go')
    a(f'v_subrev_u32 v4, 16, v{vL}')
    a('v_mul_u32_u24 v5, 0x199a, v4')
    a('v_lshrrev_b32 v5, 16, v5')
    a('v_mul_u32_u24 v6, 10, v5')
    a('v_sub_u32 v6, v4, v6')
    a(f's_lshr_b32 s{sT0}, s{sB}, 1')
    a(f's_lshl_b32 s{sT0}, s{sT0}, 2')
    a(f'v_add_u32 v5, s{sT0}, v5')
    a('v_lshl_add_u32 v5, v5, 4, v6')
    a(f's_lshr_b32 s{sT0}, s{sC}, 1')
    a(f's_lshl_b32 s{sT0}, s{sT0}, 4')
    a(f'v_add_u32 v6, s{sT0}, v{vL}')
    a(f'v_cmp_gt_u32 vcc, 16, v{vL}')
    a('s_nop 1')
    a('v_cndmask_b32 v5, v5, v6, vcc')
    a('v_lshlrev_b32 v5, 7, v5')
    a(f'v_add_u32 v5, {WS_FLAG}, v5')
    a('s_mov_b32 exec_lo, -1')
    a('s_mov_b32 exec_hi, 0xffffff')
    a(f's_mov_b32 s{sT2}, 0')
    a.label('L_p2_poll')
    a(f'buffer_load_dword v4, v5, s[{rWS}:{rWS+3}], 0 offen sc0 sc1')
    a('s_waitcnt vmcnt(0)')
    a(f'v_cmp_ne_u32 vcc, s{sNONCE}, v4')
    a('s_nop 1')
    a('s_cmp_eq_u64 vcc, 0')
    a('s_cbranch_scc1 L_p2_poll_done')
    a(f's_add_u32 s{sT2}, s{sT2}, 1')
    a(f's_cmp_lt_u32 s{sT2}, 0x40000')
    a('s_cbranch_scc0 L_p2_poll_done')
    a('s_sleep 1')
    a('s_branch L_p2_poll')
    a.label('L_p2_poll_done')
    a('s_mov_b64 exec, -1')
    a.label('L_p2_go')
    a('s_barrier')
    stamp(a, 9)

    def loads(d):
        out = []
        for tb in range(4):
            out.append(f'buffer_load_dwordx4 {areg(fH(d, tb), 4)}, v2, s[{rT0}:{rT0+3}], s{sK} offen offset:{1024*tb}{SC}')
        for nt in range(4):
            out.append(f'buffer_load_dwordx4 {areg(fWt(d, nt), 4)}, v2, s[{rT1}:{rT1+3}], s{sK2} offen offset:{1024*nt}{SC}')
        out.append(f'buffer_load_dwordx4 {areg(fWt(d, 4), 4)}, v3, s[{rT1}:{rT1+3}], s{sK2} offen{SC}')
        return out

    a(f's_mov_b32 s{sK}, 0')
    a(f's_mov_b32 s{sK2}, 0')
    for d in range(D):
        for ld in loads(d):
            a(ld)
        if d == 0:
            for i in range(5):
                a(f'buffer_load_dword v{GG+i}, v{GA+i}, s[{rWS}:{rWS+3}], 0 offen{SC}')
        a(f's_add_u32 s{sK}, s{sK}, 4096')
        a(f's_add_u32 s{sK2}, s{sK2}, 5120')

    def step(d, with_loads, wait):
        a(f's_waitcnt vmcnt({wait})')
        ld = loads(d) if with_loads else None
        for tb in range(4):
            for nt in range(5):
                a(f'v_mfma_f32_16x16x32_bf16 {vreg(acc(tb, nt), 4)}, {areg(fWt(d, nt), 4)}, {areg(fH(d, tb), 4)}, {vreg(acc(tb, nt), 4)}')
                if tb == 3 and ld:
                    a(ld[4 + nt])
            if ld:
                a(ld[tb])
        if ld:
            a(f's_add_u32 s{sK}, s{sK}, 4096')
            a(f's_add_u32 s{sK2}, s{sK2}, 5120')
    assert 20 % D == 0 and 24 % D == 0
    a(f's_cmp_ge_u32 s{sW}, 2')
    a(f's_cselect_b32 s{sT5}, {24 // D - 1}, {20 // D - 1}')
    a.label('L_k2_loop')
    for d in range(D):
        step(d, True, 9 * (D - 1))
    a(f's_sub_u32 s{sT5}, s{sT5}, 1')
    a(f's_cmp_lg_u32 s{sT5}, 0')
    a('s_cbranch_scc1 L_k2_loop')
    for d in range(D):
        step(d, False, 9 * (D - 1 - d))
    stamp(a, 10)
    a(f'v_and_b32 v4, 15, v{vL}')
    a('v_mul_u32_u24 v4, 336, v4')
    a(f'v_lshrrev_b32 v5, 4, v{vL}')
    a('v_lshl_add_u32 v4, v5, 4, v4')
    a(f's_mul_i32 s{sT0}, s{sW}, {PSZ}')
    a(f'v_add_u32 v4, s{sT0}, v4')
    a('s_nop 4')
    for tb in range(4):
        for nt in range(5):
            a(f'ds_write_b128 v4, {vreg(acc(tb, nt), 4)} offset:{5376*tb + 64*nt}')
    a('s_waitcnt lgkmcnt(0)')
    a('s_barrier')
    srd(a, rT0, sOUT, OUT_BYTES)
    RD = 128

    def rd(i):
        for p in range(4):
            a(f'ds_read_b128 {vreg(RD + 16*i + 4*p, 4)}, v{RA+i} offset:{PSZ*p}')
    rd(0)
    rd(1)
    for i in range(5):
        b = RD + 16 * i
        if i + 2 < 5:
            rd(i + 2)
        a(f's_waitcnt lgkmcnt({4 * min(2, 4 - i)})')
        g = GG + i
        a(f'v_pk_add_f32 {pair(b)}, {pair(b)}, {pair(b+4)}')
        a(f'v_pk_add_f32 {pair(b+2)}, {pair(b+2)}, {pair(b+6)}')
        a(f'v_pk_add_f32 {pair(b+8)}, {pair(b+8)}, {pair(b+12)}')
        a(f'v_pk_add_f32 {pair(b+10)}, {pair(b+10)}, {pair(b+14)}')
        a(f'v_sub_f32 v4, 1.0, v{g}')
        a('v_cvt_pk_bf16_f32 v4, v4, v4')
        a('v_lshlrev_b32 v4, 16, v4')
        for h in range(2):
            bb = b + 8 + 2 * h
            a(f'v_cvt_pk_bf16_f32 v5, v{bb}, v{bb+1}')
            a('v_lshlrev_b32 v6, 16, v5')
            a(f'v_and_b32 v7, s{sHI}, v5')
            a('v_mul_f32 v6, v4, v6')
            a('v_mul_f32 v7, v4, v7')
            a('v_cvt_pk_bf16_f32 v5, v6, v7')
            a(f'v_lshlrev_b32 v{bb}, 16, v5')
            a(f'v_and_b32 v{bb+1}, s{sHI}, v5')
        for h in range(2):
            a(f'v_pk_add_f32 {pair(b+2*h)}, {pair(b+2*h)}, {pair(SK+4*i+2*h)}')
        for e in range(4):
            a(f'v_fma_f32 v{b+e}, v{g}, v{b+e}, v{b+8+e}')
        a(f'buffer_store_dwordx4 {vreg(b, 4)}, v{OA+i}, s[{rT0}:{rT0+3}], 0 offen')
    stamp(a, 11)
    stamps_out(a)


def gen_kernel(a):
    kn = NAME + '_kernel'
    a.label(kn)
    DV[:] = [127, 126]
    a('s_cmp_ge_u32 s2, 256')
    a('s_cbranch_scc1 L_exit')
    a('s_load_dwordx16 s[4:19], s[0:1], 0')
    a('s_load_dwordx16 s[20:35], s[0:1], 64')
    if OPT['diag']:
        a('v_mov_b32 v127, 0')
        a('v_mov_b32 v126, 0')
    stamp(a, 0)
    a('v_and_b32 v1, 63, v0')
    a('v_lshrrev_b32 v2, 6, v0')
    a('s_nop 0')
    a(f'v_readfirstlane_b32 s{sW}, v2')
    a(f's_and_b32 s{sT0}, s2, 3')
    a(f's_lshl_b32 s{sT0}, s{sT0}, 2')
    a(f's_bfe_u32 s{sT1}, s2, 0x20003')
    a(f's_add_u32 s{sC}, s{sT0}, s{sT1}')
    a(f's_lshr_b32 s{sT1}, s2, 5')
    a(f's_bfe_u32 s{sT2}, s2, 0x10002')
    a('s_waitcnt lgkmcnt(0)')
    a(f's_lshr_b32 s{sT3}, s2, 3')
    a(f's_or_b32 s{sT3}, s{sT3}, s{sW}')
    a(f's_cmp_lg_u32 s{sT3}, 0')
    a('s_cbranch_scc1 L_no_offer')
    a(f's_memrealtime s[{sT3}:{sT4}]')
    a('s_waitcnt lgkmcnt(0)')
    a(f's_or_b32 s{sT3}, s{sT3}, 1')
    a(f'v_mov_b32 v4, s{sT3}')
    a('v_mov_b32 v5, 0')
    a('v_mov_b32 v6, 0')
    a('s_mov_b64 exec, 1')
    a(f'global_atomic_cmpswap v6, v[4:5], s[{sDBG}:{sDBG+1}] sc1')
    a('s_mov_b64 exec, -1')
    a.label('L_no_offer')
    a(f's_cmp_ge_u32 s{sT1}, 5')
    a('s_cbranch_scc1 L_ffn')
    a(f's_mul_i32 s{sT2}, s{sT2}, 5')
    a(f's_add_u32 s{sB}, s{sT2}, s{sT1}')
    sub = Asm()
    gen_ssm(sub)
    a.lines += sub.lines
    a.label('L_ffn')
    a(f's_mul_i32 s{sT2}, s{sT2}, 3')
    a(f's_add_u32 s{sB}, s{sT2}, s{sT1}')
    a(f's_sub_u32 s{sB}, s{sB}, 5')
    sub = Asm()
    gen_ffn(sub)
    a.lines += sub.lines
    sub = Asm()
    gen_phase2(sub)
    a.lines += sub.lines
    a.label('L_exit')
    a('s_endpgm')


HEADER = open('cdna_kernels/' + NAME + '.s.ref').read().split('; Override launch')[0]


def build():
    k = Asm()
    gen_kernel(k)
    probs = check_hazards(k.lines, 'k')
    kn = NAME + '_kernel'
    out = HEADER
    out += '; @launch grid=(256,1,1) block=(256,1,1) lds=163840\n'
    out += '.amdgcn_target "amdgcn-amd-amdhsa--gfx950"\n.text\n'
    out += f'.globl {kn}\n.p2align 8\n.type {kn},@function\n' + k.text()
    out += f'''.section .rodata,"a"
.p2align 6
.amdhsa_kernel {kn}
  .amdhsa_next_free_vgpr 512
  .amdhsa_next_free_sgpr 102
  .amdhsa_accum_offset 256
  .amdhsa_group_segment_fixed_size 0
  .amdhsa_kernarg_size 128
  .amdhsa_user_sgpr_count 2
  .amdhsa_user_sgpr_kernarg_segment_ptr 1
  .amdhsa_system_sgpr_workgroup_id_x 1
  .amdhsa_float_denorm_mode_32 3
.end_amdhsa_kernel
'''
    return out, probs


if __name__ == '__main__':
    dst = sys.argv[1] if len(sys.argv) > 1 else 'cdna_kernels/' + NAME + '.s'
    for kv in sys.argv[2:]:
        k_, v = kv.split('=')
        OPT[k_] = int(v)
    text, probs = build()
    for p in probs:
        print('HAZARD', p)
    open(dst, 'w').write(text)
    print('wrote', dst, len(text), 'bytes', len(probs), 'hazards')
```

```python
import sys
from asmlib import Asm, check_hazards

NAME = 'gated_mix__ssm_conv_s5__dense_activation_relu__prompt'

WS_HF = 0
WS_WT = 32 * 88 * 4096
WS_G = WS_WT + 8 * 88 * 5120
WS_AGG = WS_G + 8192
WS_FLAG = WS_AGG + 163840
WS_DIAG = 16 << 20
WS_SIZE = 32 << 20
OOB = 0x7f000000

X_BYTES = 2048 * 1280
B_BYTES = 640 * 1280
W1_BYTES = 640 * 3072
W2_BYTES = 1536 * 1280
OUT_BYTES = 2048 * 640 * 4

OPT = dict(diag=0, probe=0, K2D=4, l2pf=0, dbgout=0,
           ssm_dma_pos=[0, 2, 4, 6, 8, 10, 12, 13], ffn_dma_pos=[0, 3, 5, 8, 10, 13, 15, 18, 20, 23, 25, 28])

sX, sLRE, sLIM, sBRE, sBIM, sCRE, sCIM, sLDT = 4, 6, 8, 10, 12, 14, 16, 18
sDSK, sBX, sW1, sW2, sGW, sOUT, sDBG, sWS = 20, 22, 24, 26, 28, 30, 32, 34
sC, sB, sW, sWT, sWC = 36, 37, 38, 39, 40
sT0, sT1, sT2, sT3, sT4, sT5 = 41, 42, 43, 44, 45, 46
sNONCE = 47
rX, rB, rWS, rT0, rT1 = 48, 52, 56, 60, 64
sK, sMA, sMB, sK2 = 68, 69, 70, 71
sTS = 72
sW2S, sW2D, sCS, sCD = 74, 76, 80, 82
sST = 84
sCD2 = 88
sGR, sGR2, sPB = 90, 91, 93
sHI = 92
sM0, sM1 = 94, 96
sFLAG = 98
sCLK = 100

SC = ' sc1'
DV = [127, 126]


def srd(a, r, ptr, size):
    a(f's_mov_b32 s{r}, s{ptr}')
    a(f's_mov_b32 s{r+1}, s{ptr+1}')
    a(f's_mov_b32 s{r+2}, {size}')
    a(f's_mov_b32 s{r+3}, 0x20000')


def stamp(a, idx):
    if OPT['diag']:
        if idx == 0:
            a(f's_memtime s[{sCLK}:{sCLK+1}]')
        a(f's_memrealtime s[{sTS}:{sTS + 1}]')
        a('s_waitcnt lgkmcnt(0)')
        a(f'v_writelane_b32 v{DV[0]}, s{sTS}, {idx}')


def stage_stamp(a, s):
    if OPT['diag']:
        if s > 0:
            a(f'v_writelane_b32 v{DV[1]}, s{sST + 2*((s-1) & 1)}, {s-1}')
        a(f's_memtime s[{sST + 2*(s & 1)}:{sST + 1 + 2*(s & 1)}]')


def stamps_out(a):
    if not OPT['diag']:
        return
    a('s_memtime s[42:43]')
    a('s_waitcnt lgkmcnt(0)')
    a(f's_sub_u32 s{sCLK}, s42, s{sCLK}')
    a(f's_lshl_b32 s{sT0}, s2, 8')
    a(f's_lshl_b32 s{sT1}, s{sW}, 6')
    a(f's_add_u32 s{sT0}, s{sT0}, s{sT1}')
    a(f's_add_u32 s{sT0}, s{sT0}, {WS_DIAG}')
    a(f'v_writelane_b32 v{DV[0]}, s{sCLK}, 15')
    a('v_and_b32 v3, 15, v0')
    a('v_lshlrev_b32 v3, 2, v3')
    a(f'v_add_u32 v2, s{sT0}, v3')
    a('s_mov_b32 exec_lo, 0xffff')
    a('s_mov_b32 exec_hi, 0')
    a(f'buffer_store_dword v{DV[0]}, v2, s[{rWS}:{rWS+3}], 0 offen')
    a(f'v_add_u32 v2, {65536}, v2')
    a(f'buffer_store_dword v{DV[1]}, v2, s[{rWS}:{rWS+3}], 0 offen')
    if OPT['dbgout']:
        a(f's_cmp_lg_u32 s{sW}, 0')
        a('s_cbranch_scc1 L_no_dbgout')
        a(f'v_not_b32 v4, v{DV[0]}')
        a(f'v_cmp_eq_u32 vcc, 0, v3')
        a('s_nop 1')
        a(f'v_cndmask_b32 v4, v{DV[0]}, v4, vcc')
        a('v_add_u32 v3, 4, v3')
        a('s_mov_b32 exec_lo, 0xfff')
        a(f'global_atomic_umax v3, v4, s[{sDBG}:{sDBG+1}] sc1')
        a.label('L_no_dbgout')
    a('s_mov_b64 exec, -1')


def sched(mm, slots):
    out = []
    for i, m in enumerate(mm):
        out.append(m)
        out += slots.get(i, [])
    return out


def spread(groups, positions, slots):
    for g, p in zip(groups, positions):
        slots.setdefault(p, []).extend(g)


def vm_groups(items):
    out, cur = [], []
    for it in items:
        cur.append(it)
        if not isinstance(it, str) and it[0] == 'v':
            out.append(cur)
            cur = []
    if cur:
        out[-1] += cur
    return out


def emit(a, items):
    for it in items:
        if isinstance(it, str):
            a(it)
        elif it[0] == 'v':
            a.vmem(it[1], it[2])
        else:
            a(it[1])


def vreg(r, n=1):
    return f'v{r}' if n == 1 else f'v[{r}:{r+n-1}]'


def areg(r, n=1):
    return f'a{r}' if n == 1 else f'a[{r}:{r+n-1}]'


def pair(r):
    return f'v[{r}:{r+1}]'


def pk_fma(d, s0, s1, s2, b0=None, b1=None, swap1=False, neg0=None):
    osel = [0, 0, 0]
    ohi = [1, 1, 1]
    if b0 is not None:
        osel[0] = ohi[0] = b0
    if b1 is not None:
        osel[1] = ohi[1] = b1
    if swap1:
        osel[1], ohi[1] = 1, 0
    s = f'v_pk_fma_f32 {pair(d)}, {pair(s0)}, {pair(s1)}, {pair(s2)} op_sel:[{osel[0]},{osel[1]},{osel[2]}] op_sel_hi:[{ohi[0]},{ohi[1]},{ohi[2]}]'
    if neg0 == 'both':
        s += ' neg_lo:[1,0,0] neg_hi:[1,0,0]'
    elif neg0 == 'lo':
        s += ' neg_lo:[1,0,0]'
    return s


def pk_mul(d, s0, s1, b0=None):
    osel = [0, 0]
    ohi = [1, 1]
    if b0 is not None:
        osel[0] = ohi[0] = b0
    return f'v_pk_mul_f32 {pair(d)}, {pair(s0)}, {pair(s1)} op_sel:[{osel[0]},{osel[1]}] op_sel_hi:[{ohi[0]},{ohi[1]}]'


def cmul_s(a, dr, di, ar, ai, br, bi):
    a(f'v_mul_f32 v{dr}, v{ar}, v{br}')
    a(f'v_mul_f32 v{di}, v{ar}, v{bi}')
    a(f'v_fma_f32 v{dr}, -v{ai}, v{bi}, v{dr}')
    a(f'v_fma_f32 v{di}, v{ai}, v{br}, v{di}')


def csq(a, dr, di, sr, si):
    a(f'v_mul_f32 v{dr}, v{sr}, v{sr}')
    a(f'v_mul_f32 v{di}, v{sr}, v{si}')
    a(f'v_fma_f32 v{dr}, -v{si}, v{si}, v{dr}')
    a(f'v_add_f32 v{di}, v{di}, v{di}')


def div_small(a, q, n, d, tmp=None):
    m = (65536 + d - 1) // d
    a(f's_mul_i32 s{q}, s{n}, {m}')
    a(f's_lshr_b32 s{q}, s{q}, 16')


def nonce_load(a, reg):
    return [f's_cmp_lg_u32 s{sW}, 0',
            f's_cbranch_scc1 L_nl_{reg}_{len(a.lines)}',
            f'v_mov_b32 v{reg+1}, 0',
            f'global_load_dword v{reg}, v{reg+1}, s[{sDBG}:{sDBG+1}] sc0 sc1',
            f'L_nl_{reg}_{len(a.lines)}:']


def nonce_wait(a, reg, tag):
    a(f's_mov_b32 s{sT2}, 0')
    a.label(f'L_nw_{tag}')
    a('s_waitcnt vmcnt(0)')
    a(f'v_readfirstlane_b32 s{sNONCE}, v{reg}')
    a('s_nop 3')
    a(f's_cmp_lg_u32 s{sNONCE}, 0')
    a(f's_cbranch_scc1 L_nw_done_{tag}')
    a(f's_add_u32 s{sT2}, s{sT2}, 1')
    a(f's_cmp_lt_u32 s{sT2}, 0x40000')
    a(f's_cbranch_scc0 L_nw_done_{tag}')
    a(f'v_mov_b32 v{reg+1}, 0')
    a(f'global_load_dword v{reg}, v{reg+1}, s[{sDBG}:{sDBG+1}] sc0 sc1')
    a(f's_branch L_nw_{tag}')
    a.label(f'L_nw_done_{tag}')


def signal_done(a, slot16_expr_reg):
    a('s_waitcnt vmcnt(0)')
    a.vm = []
    a('s_barrier')
    a(f's_cmp_lg_u32 s{sW}, 0')
    a(f's_cbranch_scc1 L_sig_{slot16_expr_reg}')
    a(f'v_mov_b32 v2, s{sFLAG}')
    a(f'v_mov_b32 v3, s{sNONCE}')
    a('s_mov_b64 exec, 1')
    a(f'buffer_store_dword v3, v2, s[{rWS}:{rWS+3}], 0 offen sc0 sc1')
    a('s_mov_b64 exec, -1')
    a.label(f'L_sig_{slot16_expr_reg}')


def gen_ssm(a):
    R = 5
    SLOT = 32768
    NST = 10
    vL = 1
    vA, vB_ = 10, 14
    nset = 3
    vRA = [18 + 8 * s for s in range(nset)]
    vRB = [22 + 8 * s for s in range(nset)]
    LAM, L16, L128, L256, COEF = 42, 44, 46, 48, 50
    WRE, WIM = 52, 54
    SRE, SIM, TRE, TIM = 56, 58, 60, 62
    G = 64
    P = 80
    GR = 96
    ACC = 128
    TW = 192
    GX = 208
    GW = 228
    vL16, vW2A, vCA, NON = 248, 249, 250, 252
    PB, AGB, TB0 = 0, 32768, 65536

    def acc(m, part):
        return ACC + 32 * m + 16 * part

    def ure(u):
        return acc(u >> 3, 0) + 2 * (u & 7)

    def uim(u):
        return acc(u >> 3, 1) + 2 * (u & 7)

    def fA(s, m, kk):
        return 64 * s + 16 * m + 4 * kk

    def fB(s, part, kk):
        return 64 * s + 32 + 16 * part + 4 * kk

    DV[:] = [255, 254]
    if OPT['diag']:
        a('v_mov_b32 v255, v127')
    a(f's_lshr_b32 s{sWT}, s{sW}, 1')
    a(f's_and_b32 s{sWC}, s{sW}, 1')
    srd(a, rX, sX, X_BYTES)
    a(f's_cmp_eq_u32 s{sWC}, 0')
    a(f's_cselect_b32 s{rB}, s{sBRE}, s{sBIM}')
    a(f's_cselect_b32 s{rB+1}, s{sBRE+1}, s{sBIM+1}')
    a(f's_mov_b32 s{rB+2}, {B_BYTES}')
    a(f's_mov_b32 s{rB+3}, 0x20000')
    a(f'v_lshrrev_b32 v2, 4, v{vL}')
    a(f'v_and_b32 v3, 7, v{vL}')
    a('v_xor_b32 v3, v2, v3')
    a('v_lshlrev_b32 v3, 4, v3')
    a('v_xor_b32 v4, 64, v3')
    a(f'v_lshrrev_b32 v5, 5, v{vL}')
    a('v_lshlrev_b32 v5, 5, v5')
    a(f'v_bfe_u32 v6, v{vL}, 3, 1')
    a('v_lshl_add_u32 v5, v6, 4, v5')
    a(f'v_bfe_u32 v6, v{vL}, 4, 1')
    a('v_add_u32 v5, v5, v6')
    a(f's_lshl_b32 s{sT0}, s{sC}, 7')
    a(f's_lshl_b32 s{sT1}, s{sWT}, 6')
    a(f's_add_u32 s{sT0}, s{sT0}, s{sT1}')
    a(f's_lshl_b32 s{sT1}, s{sWC}, 3')
    a(f's_add_u32 s{sT0}, s{sT0}, s{sT1}')
    a(f'v_add_u32 v5, s{sT0}, v5')
    a(f's_movk_i32 s{sT2}, 1280')
    a(f'v_mul_lo_u32 v5, v5, s{sT2}')
    for i in range(4):
        a(f'v_add_u32 v{vA+i}, v5, v{3 + (i & 1)}')
        if i:
            a(f'v_add_u32 v{vA+i}, {1536*i}, v{vA+i}')
    a(f's_lshl_b32 s{sT0}, s{sB}, 6')
    a(f's_lshl_b32 s{sT1}, s{sWT}, 5')
    a(f's_add_u32 s{sT0}, s{sT0}, s{sT1}')
    a(f'v_lshrrev_b32 v5, 3, v{vL}')
    a(f'v_add_u32 v5, s{sT0}, v5')
    a(f'v_mul_lo_u32 v5, v5, s{sT2}')
    for i in range(4):
        a(f'v_add_u32 v{vB_+i}, v5, v{3 + (i & 1)}')
        if i:
            a(f'v_add_u32 v{vB_+i}, {9216*i}, v{vB_+i}')
    a(f's_lshl_b32 s{sMA}, s{sW}, 12')
    a(f's_add_u32 s{sMB}, s{sMA}, 16384')

    def dma(stage):
        slot = stage % R
        out = []
        out.append(('s', f's_add_u32 m0, s{sMA}, {slot*SLOT}'))
        out.append(('s', f's_mov_b32 s{sK}, {stage*128}'))
        for i in range(4):
            out.append(('v', f'buffer_load_dwordx4 v{vA+i}, s[{rX}:{rX+3}], s{sK} offen offset:{1024*i} lds', f'st{stage}'))
        out.append(('s', f's_add_u32 m0, s{sMB}, {slot*SLOT}'))
        out.append(('s', 's_nop 0'))
        for i in range(4):
            out.append(('v', f'buffer_load_dwordx4 v{vB_+i}, s[{rB}:{rB+3}], s{sK} offen offset:{1024*i} lds', f'st{stage}'))
        return out

    a(f's_lshl_b32 s{sT0}, s{sB}, 6')
    a(f's_lshl_b32 s{sT1}, s{sWC}, 5')
    a(f's_add_u32 s{sT0}, s{sT0}, s{sT1}')
    a(f'v_and_b32 v60, 31, v{vL}')
    a(f'v_add_u32 v60, s{sT0}, v60')
    a('v_lshlrev_b32 v60, 1, v60')
    a.vmem(f'global_load_ushort v61, v60, s[{sLRE}:{sLRE+1}]', 'lam')
    a.vmem(f'global_load_ushort v62, v60, s[{sLIM}:{sLIM+1}]', 'lam')
    a.vmem(f'global_load_ushort v63, v60, s[{sLDT}:{sLDT+1}]', 'lam')
    for st in range(R):
        emit(a, dma(st))
    stamp(a, 1)
    srd(a, rWS, sWS, WS_SIZE)

    a(f'v_and_b32 v9, 31, v{vL}')
    a(f'v_lshrrev_b32 v2, 5, v{vL}')
    a(f'v_bfe_u32 v8, v{vL}, 1, 3')
    a('v_xor_b32 v2, v2, v8')
    a('v_lshlrev_b32 v2, 4, v2')
    a('v_lshl_add_u32 v2, v9, 7, v2')
    a(f's_lshl_b32 s{sT0}, s{sWT}, 13')
    a(f's_lshl_b32 s{sT1}, s{sWC}, 13')
    a(f's_add_u32 s{sT1}, s{sT1}, 16384')
    for kk in range(4):
        if kk:
            a(f'v_xor_b32 v8, {32*kk}, v2')
        else:
            a('v_mov_b32 v8, v2')
        for s in range(nset):
            a(f'v_add_u32 v{vRA[s]+kk}, s{sT0}, v8')
            a(f'v_add_u32 v{vRB[s]+kk}, s{sT1}, v8')
            if s:
                a(f'v_add_u32 v{vRA[s]+kk}, {65536*s}, v{vRA[s]+kk}')
                a(f'v_add_u32 v{vRB[s]+kk}, {65536*s}, v{vRB[s]+kk}')

    a(f's_and_b32 s{sT0}, s{sC}, 3')
    a(f's_mul_i32 s{sT0}, s{sT0}, 10')
    a(f's_add_u32 s{sT0}, s{sT0}, s{sB}')
    a(f's_lshl_b32 s{sT0}, s{sT0}, 2')
    a(f's_add_u32 s{sT0}, s{sT0}, s{sW}')
    a(f's_lshr_b32 s{sT1}, s{sC}, 2')
    for i in range(2):
        a(f's_add_u32 s{sT2}, s{sT0}, {160*i}')
        div_small(a, sT3, sT2, 5)
        a(f's_mul_i32 s{sT4}, s{sT3}, 5')
        a(f's_sub_u32 s{sT4}, s{sT2}, s{sT4}')
        a(f's_mul_i32 s{sT5}, s{sT1}, 5')
        a(f's_add_u32 s{sT4}, s{sT4}, s{sT5}')
        a(f's_mul_i32 s{sW2S+i}, s{sT3}, 40960')
        a(f's_lshl_b32 s{sT5}, s{sT4}, 6')
        a(f's_add_u32 s{sW2S+i}, s{sW2S+i}, s{sT5}')
        a(f's_add_u32 s{sT3}, s{sT3}, 40')
        a(f's_mul_i32 s{sT3}, s{sT3}, 5')
        for jj in range(2):
            d = sW2D + 2 * i + jj
            a(f's_lshl_b32 s{sT5}, s{sT4}, 1')
            if jj:
                a(f's_add_u32 s{sT5}, s{sT5}, 1')
            div_small(a, d, sT5, 5)
            a(f's_mul_i32 s{d}, s{d}, 435')
            a(f's_add_u32 s{d}, s{d}, s{sT5}')
            a(f's_add_u32 s{d}, s{d}, s{sT3}')
            a(f's_lshl_b32 s{d}, s{d}, 10')
            a(f's_add_u32 s{d}, s{d}, {WS_WT}')
        if i == 1:
            a(f's_cmp_ge_u32 s{sT2}, 240')
            a(f's_cselect_b32 s{sW2S+1}, {OOB}, s{sW2S+1}')
            a(f's_cselect_b32 s{sW2D+2}, {OOB}, s{sW2D+2}')
            a(f's_cselect_b32 s{sW2D+3}, {OOB}, s{sW2D+3}')
    CD = [sCD, sCD + 1, sCD2, sCD2 + 1]
    for i in range(2):
        a(f's_add_u32 s{sT2}, s{sT0}, {160*i}')
        div_small(a, sT3, sT2, 10)
        a(f's_mul_i32 s{sT4}, s{sT3}, 10')
        a(f's_sub_u32 s{sT4}, s{sT2}, s{sT4}')
        a(f's_mul_i32 s{sT5}, s{sT1}, 10')
        a(f's_add_u32 s{sT4}, s{sT4}, s{sT5}')
        a(f's_mul_i32 s{sCS+i}, s{sT4}, 20480')
        a(f's_lshl_b32 s{sT5}, s{sT3}, 6')
        a(f's_add_u32 s{sCS+i}, s{sCS+i}, s{sT5}')
        d0, d1 = CD[2*i], CD[2*i+1]
        div_small(a, d0, sT4, 5)
        a(f's_mul_i32 s{d0}, s{d0}, 435')
        a(f's_add_u32 s{d0}, s{d0}, s{sT4}')
        a(f's_mul_i32 s{sT5}, s{sT3}, 10')
        a(f's_add_u32 s{d0}, s{d0}, s{sT5}')
        a(f's_lshl_b32 s{d0}, s{d0}, 10')
        a(f's_add_u32 s{d0}, s{d0}, {WS_WT}')
        a(f's_add_u32 s{d1}, s{d0}, 5120')
        if i == 1:
            a(f's_cmp_ge_u32 s{sT2}, 200')
            a(f's_cselect_b32 s{sCS+1}, {OOB}, s{sCS+1}')
            a(f's_cselect_b32 s{d0}, {OOB}, s{d0}')
            a(f's_cselect_b32 s{d1}, {OOB}, s{d1}')
    a(f'v_lshrrev_b32 v2, 2, v{vL}')
    a(f's_movk_i32 s{sT5}, 1280')
    a(f'v_mul_lo_u32 v2, v2, s{sT5}')
    a(f'v_and_b32 v3, 3, v{vL}')
    a(f'v_lshl_add_u32 v{vW2A}, v3, 4, v2')
    a(f'v_add_u32 v{vCA}, 20480, v{vW2A}')
    a(f'v_subrev_u32 v{vCA}, 1024, v{vCA}')
    a(f'v_lshlrev_b32 v{vL16}, 4, v{vL}')
    a(f's_lshl_b32 s{sPB}, s{sW}, 13')
    a(f's_lshl_b32 s{sT0}, s{sC}, 7')
    a(f's_lshl_b32 s{sT1}, s{sB}, 4')
    a(f's_add_u32 s{sT0}, s{sT0}, s{sT1}')
    a(f's_lshl_b32 s{sT1}, s{sW}, 2')
    a(f's_add_u32 s{sT0}, s{sT0}, s{sT1}')
    a(f's_mul_i32 s{sGR}, s{sT0}, 1280')
    a(f's_cmp_ge_u32 s{sB}, 8')
    a(f's_cselect_b32 s{sGR}, {OOB}, s{sGR}')
    a(f's_add_u32 s{sGR2}, s{sGR}, 4096')
    thr = [None, 16, 32, 48, None]
    add = [0, 64, 48, 32, 16]
    for i in range(5):
        r = GW + 4 * i
        a(f'v_add_u32 v{r}, {add[i]}, v{vL}') if add[i] else a(f'v_mov_b32 v{r}, v{vL}')
        if thr[i]:
            a(f'v_cmp_le_u32 vcc, {thr[i]}, v{vL}')
            a(f'v_subrev_u32 v2, 80, v{r}')
            a('s_nop 0')
            a(f'v_cndmask_b32 v{r}, v{r}, v2, vcc')
        a(f'v_lshlrev_b32 v{r}, 4, v{r}')

    a.wait_vm('lam')
    a('v_lshlrev_b32 v3, 16, v61')
    a('v_lshlrev_b32 v4, 16, v62')
    a('v_lshlrev_b32 v5, 16, v63')
    a('v_mul_f32 v5, 0x3fb8aa3b, v5')
    a('v_exp_f32 v5, v5')
    a('s_nop 0')
    a('v_cvt_pk_bf16_f32 v5, v5, v5')
    a('v_lshlrev_b32 v5, 16, v5')
    a(f'v_mul_f32 v{TRE}, v5, v3')
    a(f'v_mul_f32 v{TRE+1}, v5, v4')
    a(f'v_mul_f32 v{TRE}, 0x3fb8aa3b, v{TRE}')
    a(f'v_exp_f32 v{TRE}, v{TRE}')
    a(f'v_mul_f32 v{TRE+1}, 0.15915494, v{TRE+1}')
    a(f'v_rndne_f32 v{TIM}, v{TRE+1}')
    a(f'v_sub_f32 v{TRE+1}, v{TRE+1}, v{TIM}')
    a(f'v_cos_f32 v{TIM}, v{TRE+1}')
    a(f'v_sin_f32 v{TIM+1}, v{TRE+1}')
    a('s_nop 0')
    a(f'v_mul_f32 v{LAM}, v{TRE}, v{TIM}')
    a(f'v_mul_f32 v{LAM+1}, v{TRE}, v{TIM+1}')
    a(f'v_add_f32 v{TRE}, -1.0, v{LAM}')
    a(f'v_mul_f32 v{TIM}, v3, v3')
    a(f'v_fmac_f32 v{TIM}, v4, v4')
    a(f'v_rcp_f32 v{TIM}, v{TIM}')
    a(f'v_mul_f32 v{COEF}, v{TRE}, v3')
    a(f'v_fmac_f32 v{COEF}, v{LAM+1}, v4')
    a(f'v_mul_f32 v{COEF+1}, v{LAM+1}, v3')
    a(f'v_fma_f32 v{COEF+1}, -v{TRE}, v4, v{COEF+1}')
    a(f'v_add_f32 v{TIM}, v{TIM}, v{TIM}')
    a(f'v_mul_f32 v{COEF}, v{COEF}, v{TIM}')
    a(f'v_mul_f32 v{COEF+1}, v{COEF+1}, v{TIM}')
    t0, t1 = G, G + 2
    csq(a, t0, t0 + 1, LAM, LAM + 1)
    csq(a, t1, t1 + 1, t0, t0 + 1)
    csq(a, t0, t0 + 1, t1, t1 + 1)
    csq(a, L16, L16 + 1, t0, t0 + 1)
    L32, L64 = G + 4, G + 6
    csq(a, L32, L32 + 1, L16, L16 + 1)
    csq(a, L64, L64 + 1, L32, L32 + 1)
    csq(a, L128, L128 + 1, L64, L64 + 1)
    csq(a, L256, L256 + 1, L128, L128 + 1)
    a(f'v_cmp_lt_u32 vcc, 31, v{vL}')
    a(f's_cmp_eq_u32 s{sWT}, 1')
    a(f's_cselect_b64 s[{sM0}:{sM0+1}], -1, 0')
    a(f'v_mov_b32 v{t0}, 1.0')
    a(f'v_mov_b32 v{t0+1}, 0')
    a(f'v_cndmask_b32 v{t1}, v{t0}, v{L32}, vcc')
    a(f'v_cndmask_b32 v{t1+1}, v{t0+1}, v{L32+1}, vcc')
    a(f'v_cndmask_b32 v{t0}, v{t0}, v{L64}, s[{sM0}:{sM0+1}]')
    a(f'v_cndmask_b32 v{t0+1}, v{t0+1}, v{L64+1}, s[{sM0}:{sM0+1}]')
    cmul_s(a, WRE, WIM, t0, t0 + 1, t1, t1 + 1)
    cmul_s(a, WRE + 1, WIM + 1, WRE, WIM, L16, L16 + 1)
    a(f'v_and_b32 v2, 31, v{vL}')
    a('v_lshrrev_b32 v3, 2, v2')
    a('v_lshlrev_b32 v3, 4, v3')
    a('v_and_b32 v2, 3, v2')
    a('v_lshl_add_u32 v3, v2, 2, v3')
    a(f'v_lshrrev_b32 v2, 5, v{vL}')
    a('v_lshl_add_u32 v3, v2, 11, v3')
    a(f's_lshl_b32 s{sT0}, s{sW}, 13')
    a(f's_add_u32 s{sT0}, s{sT0}, {TB0}')
    for u in range(16):
        a(f'v_xor_b32 v{TW+u}, {(u << 7) | ((u >> 1) << 4)}, v3')
        a(f'v_add_u32 v{TW+u}, s{sT0}, v{TW+u}')
    a(f's_lshl_b32 s{sFLAG}, s{sC}, 4')
    a(f's_add_u32 s{sFLAG}, s{sFLAG}, s{sB}')
    a(f's_lshl_b32 s{sFLAG}, s{sFLAG}, 7')
    a(f's_add_u32 s{sFLAG}, s{sFLAG}, {WS_FLAG}')

    def reads(stage):
        slot = stage % R
        st_, off = slot // 2, (slot % 2) * SLOT
        rs = stage & 1
        out = []
        for kk in range(4):
            for m in range(2):
                out.append(f'ds_read_b128 {areg(fA(rs, m, kk), 4)}, v{vRA[st_]+kk} offset:{off + 4096*m}')
            for part in range(2):
                out.append(f'ds_read_b128 {areg(fB(rs, part, kk), 4)}, v{vRB[st_]+kk} offset:{off + 4096*part}')
        return out

    def mfmas(stage, order='k'):
        rs = stage & 1
        if order == 'k':
            seq = [(kk, m, part) for kk in range(4) for m in range(2) for part in range(2)]
        else:
            seq = [(kk, m, part) for m in range(2) for kk in range(4) for part in range(2)]
        out = []
        for kk, m, part in seq:
            c = '0' if (stage == 0 and kk == 0) else vreg(acc(m, part), 16)
            out.append(f'v_mfma_f32_32x32x16_bf16 {vreg(acc(m, part), 16)}, {areg(fA(rs, m, kk), 4)}, {areg(fB(rs, part, kk), 4)}, {c}')
        return out

    def side_loads(which):
        out = []
        if which == 'w2':
            out.append(('s', f's_mov_b32 s{rT0}, s{sW2}'))
            out.append(('s', f's_mov_b32 s{rT0+1}, s{sW2+1}'))
            out.append(('s', f's_mov_b32 s{rT0+2}, {W2_BYTES}'))
            out.append(('s', f's_mov_b32 s{rT0+3}, 0x20000'))
            for i in range(2):
                out.append(('s', f's_add_u32 m0, s{sPB}, {PB + 2048*i}'))
                out.append(('s', 's_nop 0'))
                out.append(('v', f'buffer_load_dwordx4 v{vW2A}, s[{rT0}:{rT0+3}], s{sW2S+i} offen lds', 'prep'))
                out.append(('v', f'buffer_load_dwordx4 v{vCA}, s[{rT0}:{rT0+3}], s{sW2S+i} offen offset:1024 lds', 'prep'))
        if which == 'c':
            for ptr, r, o in ((sCRE, rT0, 0), (sCIM, rT1, 1024)):
                out.append(('s', f's_mov_b32 s{r}, s{ptr}'))
                out.append(('s', f's_mov_b32 s{r+1}, s{ptr+1}'))
                out.append(('s', f's_mov_b32 s{r+2}, {B_BYTES}'))
                out.append(('s', f's_mov_b32 s{r+3}, 0x20000'))
                for i in range(2):
                    out.append(('s', f's_add_u32 m0, s{sPB}, {PB + 4096 + 2048*i + o}'))
                    out.append(('s', 's_nop 0'))
                    out.append(('v', f'buffer_load_dwordx4 v{vW2A}, s[{r}:{r+3}], s{sCS+i} offen lds', 'prep'))
        if which == 'gate':
            out.append(('s', f's_mov_b32 s{rT0}, s{sGW}'))
            out.append(('s', f's_mov_b32 s{rT0+1}, s{sGW+1}'))
            out.append(('s', f's_mov_b32 s{rT0+2}, 1280'))
            out.append(('s', f's_mov_b32 s{rT0+3}, 0x20000'))
            for i in range(5):
                out.append(('v', f'buffer_load_dwordx4 {vreg(GW+4*i, 4)}, v{GW+4*i}, s[{rT0}:{rT0+3}], 0 offen', 'prep'))
            for i in range(5):
                so, off = (sGR, 1024 * i) if i < 4 else (sGR2, 0)
                out.append(('v', f'buffer_load_dwordx4 {vreg(GX+4*i, 4)}, v{vL16}, s[{rX}:{rX+3}], s{so} offen offset:{off}', 'prep'))
        return out

    a.wait_vm('st0')
    a('s_barrier')
    stamp(a, 2)
    emit(a, reads(0))
    for s in range(NST):
        a.comment(f'SSM stage {s}')
        a('s_waitcnt lgkmcnt(0)')
        mm = mfmas(s, 'k' if s < NST - 1 else 'm')
        slots = {}
        if s + 1 < NST:
            a(mm[0])
            a(mm[1])
            mm = mm[2:]
            a.wait_vm(f'st{s+1}')
            a('s_barrier')
            stage_stamp(a, s)
            rd = reads(s + 1)
            spread([rd[2*i:2*i+2] for i in range(8)], range(8), slots)
            if s + R < NST:
                spread(vm_groups(dma(s + R)), OPT['ssm_dma_pos'], slots)
            if s == 5:
                spread(vm_groups(side_loads('w2') + side_loads('c')), [0, 2, 4, 6, 8, 10, 12, 13], slots)
            if s == 6:
                spread(vm_groups(side_loads('gate')), [0, 1, 3, 4, 6, 7, 9, 10, 12, 13], slots)
            if s == 7:
                spread([nonce_load(a, NON)], [2], slots)
        emit(a, sched(mm, slots))
    stamp(a, 3)

    a('s_nop 7')
    a('s_nop 3')
    for u in range(1, 16):
        pr = ure(0) if u == 1 else SRE
        pi = uim(0) if u == 1 else SIM
        a(pk_fma(TRE, LAM, pi, ure(u), b0=1, neg0='both'))
        a(pk_fma(TIM, LAM, pr, uim(u), b0=1))
        a(pk_fma(SRE, LAM, pr, TRE, b0=0))
        a(pk_fma(SIM, LAM, pi, TIM, b0=0))
    a(f'v_and_b32 v2, 31, v{vL}')
    a(f's_lshl_b32 s{sT0}, s{sWC}, 5')
    a(f'v_add_u32 v2, s{sT0}, v2')
    a('v_lshlrev_b32 v9, 4, v2')
    a('v_lshlrev_b32 v2, 3, v2')
    a(f'v_add_u32 v2, {AGB}, v2')
    a(f'v_lshrrev_b32 v3, 5, v{vL}')
    a('v_lshl_add_u32 v3, v3, 10, v2')
    a(f's_lshl_b32 s{sT0}, s{sWT}, 11')
    a(f'v_add_u32 v3, s{sT0}, v3')
    a(f'ds_write2_b32 v3, v{SRE}, v{SIM} offset0:0 offset1:1')
    a(f'ds_write2_b32 v3, v{SRE+1}, v{SIM+1} offset0:128 offset1:129')
    a(f's_cmp_lg_u32 s{sW}, 0')
    a('s_cbranch_scc1 L_ssm_no_nonce2')
    nonce_wait(a, NON, 'ssm')
    a(f'v_mov_b32 v7, {AGB + 4096}')
    a('s_mov_b64 exec, 1')
    a(f'ds_write_b32 v7, v{NON}')
    a('s_mov_b64 exec, -1')
    a.label('L_ssm_no_nonce2')
    a('s_waitcnt lgkmcnt(0)')
    a('s_barrier')
    a(f'v_mov_b32 v7, {AGB + 4096}')
    a('ds_read_b32 v8, v7')
    for s in range(8):
        a(f'ds_read_b64 {pair(G+2*s)}, v2 offset:{512*s}')
    a('s_waitcnt lgkmcnt(0)')
    a(f'v_mov_b32 v{P}, v{G}')
    a(f'v_mov_b32 v{P+1}, v{G+1}')
    for s in range(1, 8):
        a(pk_fma(TRE, L16, P + 2*(s-1), G + 2*s, b0=0))
        a(pk_fma(P + 2*s, L16, P + 2*(s-1), TRE, b0=1, swap1=True, neg0='lo'))
    a(f'v_mov_b32 v{GR}, v{P+14}')
    a(f'v_mov_b32 v{GR+1}, v8')
    a(f'v_mov_b32 v{GR+2}, v{P+15}')
    a(f'v_mov_b32 v{GR+3}, v8')
    a(f's_lshl_b32 s{sT0}, s{sB}, 4')
    a(f's_add_u32 s{sT0}, s{sT0}, s{sC}')
    a(f's_lshl_b32 s{sT0}, s{sT0}, 10')
    a(f's_add_u32 s{sT0}, s{sT0}, {WS_AGG}')
    a(f's_cmp_lg_u32 s{sWT}, 0')
    a('s_cbranch_scc1 L_ssm_no_pub')
    a('s_mov_b32 exec_hi, 0')
    a(f'buffer_store_dwordx4 {vreg(GR, 4)}, v9, s[{rWS}:{rWS+3}], s{sT0} offen sc0 sc1')
    a('s_mov_b64 exec, -1')
    a.label('L_ssm_no_pub')
    a(f'v_readfirstlane_b32 s{sNONCE}, v8')
    stamp(a, 4)

    a(f'v_cmp_lt_u32 vcc, 31, v{vL}')
    a(f'v_mov_b32 v{TRE}, 0')
    a('s_nop 0')
    PS = G
    for comp in range(2):
        a(f'v_cndmask_b32 v{TIM}, v{TRE}, v{P+2+comp}, vcc')
        a(f'v_cndmask_b32 v{TIM+1}, v{P+6+comp}, v{P+10+comp}, vcc')
        a(f'v_cndmask_b32 v{PS+comp}, v{TIM}, v{TIM+1}, s[{sM0}:{sM0+1}]')
        a(f'v_cndmask_b32 v{TIM}, v{P+comp}, v{P+4+comp}, vcc')
        a(f'v_cndmask_b32 v{TIM+1}, v{P+8+comp}, v{P+12+comp}, vcc')
        a(f'v_cndmask_b32 v{PS+2+comp}, v{TIM}, v{TIM+1}, s[{sM0}:{sM0+1}]')
    CPR, CPI, CWR, CWI = G + 4, G + 6, G + 8, G + 10
    for sg_ in range(2):
        cmul_s(a, CPR + sg_, CPI + sg_, COEF, COEF + 1, PS + 2*sg_, PS + 2*sg_ + 1)
        cmul_s(a, CWR + sg_, CWI + sg_, COEF, COEF + 1, WRE + sg_, WIM + sg_)
    a(f's_lshl_b32 s{sT0}, s{sB}, 14')
    a(f's_add_u32 s{sT0}, s{sT0}, {WS_AGG}')
    LA = P
    a(f'v_lshrrev_b32 v2, 5, v{vL}')
    a(f's_sub_u32 s{sT1}, s{sC}, 1')
    a(f'v_sub_u32 v2, s{sT1}, v2')
    a('v_lshl_add_u32 v9, v2, 10, v9')
    for i in range(8):
        a(f'v_subrev_u32 v{LA+i}, {2048*i}, v9')
    a(f'v_mov_b32 v9, v2')
    for u in range(16):
        a(pk_mul(TRE, COEF, uim(u), b0=1))
        a(pk_mul(TIM, COEF, ure(u), b0=1))
        a(f'v_pk_fma_f32 {pair(ure(u))}, {pair(COEF)}, {pair(ure(u))}, {pair(TRE)} op_sel:[0,0,0] op_sel_hi:[0,1,1] neg_lo:[0,0,1] neg_hi:[0,0,1]')
        a(pk_fma(uim(u), COEF, uim(u), TIM, b0=0))

    a.wait_vm('prep')
    T = GR
    a(f'v_lshrrev_b32 v4, 5, v{vL}')
    a('v_lshlrev_b32 v4, 4, v4')
    a(f'v_bfe_u32 v5, v{vL}, 4, 1')
    a('v_lshl_add_u32 v4, v5, 2, v4')
    a(f'v_bfe_u32 v5, v{vL}, 2, 2')
    a('v_add_u32 v4, v4, v5')
    a('v_lshlrev_b32 v4, 6, v4')
    a(f'v_and_b32 v5, 3, v{vL}')
    a('v_lshl_add_u32 v4, v5, 3, v4')
    a(f'v_add_u32 v4, s{sPB}, v4')
    for i in range(2):
        for jj in range(2):
            o = T + 8 * i + 4 * jj
            a(f'ds_read_b64_tr_b16 {vreg(o, 2)}, v4 offset:{PB + 2048*i + 32*jj}')
            a(f'ds_read_b64_tr_b16 {vreg(o+2, 2)}, v4 offset:{PB + 2048*i + 32*jj + 512}')
    a(f'v_and_b32 v5, 15, v{vL}')
    a('v_lshlrev_b32 v5, 6, v5')
    a(f'v_lshrrev_b32 v6, 4, v{vL}')
    a('v_lshl_add_u32 v5, v6, 3, v5')
    a(f'v_add_u32 v5, s{sPB}, v5')
    CR = T + 16
    for i in range(2):
        for k2 in range(2):
            o = CR + 8 * i + 4 * k2
            a(f'ds_read_b64 {vreg(o, 2)}, v5 offset:{PB + 4096 + 2048*i + 32*k2}')
            a(f'ds_read_b64 {vreg(o+2, 2)}, v5 offset:{PB + 4096 + 2048*i + 32*k2 + 1024}')
    a('s_waitcnt lgkmcnt(8)')
    for i in range(2):
        for jj in range(2):
            a.vmem(f'buffer_store_dwordx4 {vreg(T + 8*i + 4*jj, 4)}, v{vL16}, s[{rWS}:{rWS+3}], s{sW2D + 2*i + jj} offen{SC}', 'pst')
    a(f's_mov_b32 s{sT0}, 0x05040100')
    a(f's_mov_b32 s{sT1}, 0x07060302')
    a('s_waitcnt lgkmcnt(0)')
    CO = G + 12
    CO2 = 2
    for n_, (i, k2) in enumerate([(0, 0), (0, 1), (1, 0), (1, 1)]):
        o = CR + 8 * i + 4 * k2
        d = CO if n_ % 2 == 0 else CO2
        a(f'v_perm_b32 v{d}, v{o+2}, v{o}, s{sT0}')
        a(f'v_perm_b32 v{d+1}, v{o+2}, v{o}, s{sT1}')
        a(f'v_perm_b32 v{d+2}, v{o+3}, v{o+1}, s{sT0}')
        a(f'v_perm_b32 v{d+3}, v{o+3}, v{o+1}, s{sT1}')
        a.vmem(f'buffer_store_dwordx4 {vreg(d, 4)}, v{vL16}, s[{rWS}:{rWS+3}], s{CD[2*i + k2]} offen{SC}', 'pst')
    a(f's_cmp_ge_u32 s{sB}, 8')
    a('s_cbranch_scc1 L_ssm_no_gate')
    a(f's_mov_b32 s{sHI}, 0xffff0000')
    a(f's_mov_b32 s{sT0}, 0x3f803f80')
    a(f's_mov_b32 s{sT1}, 0x0000ffff')
    U = T
    for i in range(5):
        a(f'v_mov_b32 v{U+8+i}, 0')
    for i in range(5):
        for dp in range(2):
            xs = [GX + 4 * i + 2 * dp + e for e in range(2)]
            ws = [GW + 4 * i + 2 * dp + e for e in range(2)]
            for e in range(2):
                a(f'v_and_b32 v{U+2*e}, s{sT1}, v{ws[e]}')
                a(f'v_and_b32 v{U+2*e+1}, s{sHI}, v{ws[e]}')
            for e in range(2):
                a(f'v_dot2_f32_bf16 v{U+4+2*e}, v{xs[e]}, v{U+2*e}, 0')
                a(f'v_dot2_f32_bf16 v{U+4+2*e+1}, v{xs[e]}, v{U+2*e+1}, 0')
            a('s_nop 1')
            a(f'v_cvt_pk_bf16_f32 v{U}, v{U+4}, v{U+5}')
            a(f'v_cvt_pk_bf16_f32 v{U+1}, v{U+6}, v{U+7}')
            a(f'v_dot2_f32_bf16 v{U+8+i}, v{U}, s{sT0}, v{U+8+i}')
            a(f'v_dot2_f32_bf16 v{U+8+i}, v{U+1}, s{sT0}, v{U+8+i}')
    S = [U + 8 + i for i in range(5)]
    Z = [U + 16 + j for j in range(4)]
    a('s_nop 2')
    for j, th in enumerate((16, 32, 48)):
        a(f'v_cmp_gt_u32 vcc, {th}, v{vL}')
        a(f'v_mov_b32 v{U}, 0')
        a('s_nop 0')
        a(f'v_cndmask_b32 v{U+1}, v{U}, v{S[j+1]}, vcc')
        a(f'v_cndmask_b32 v{U+2}, v{S[j+1]}, v{U}, vcc')
        if j == 0:
            a(f'v_add_f32 v{Z[0]}, v{S[0]}, v{U+1}')
        else:
            a(f'v_add_f32 v{Z[j]}, v{Z[j]}, v{U+1}')
        a(f'v_mov_b32 v{Z[j+1]}, v{U+2}')
    a(f'v_add_f32 v{Z[3]}, v{Z[3]}, v{S[4]}')
    for sh in (1, 2, 4, 8):
        for z in Z:
            a(f'v_add_f32_dpp v{z}, v{z}, v{z} row_ror:{sh} row_mask:0xf bank_mask:0xf')
    for z in Z:
        a(f'v_add_f32_dpp v{z}, v{z}, v{z} row_bcast:15 row_mask:0xa bank_mask:0xf')
    for z in Z:
        a(f'v_add_f32_dpp v{z}, v{z}, v{z} row_bcast:31 row_mask:0xc bank_mask:0xf')
    a('s_nop 0')
    for j, z in enumerate(Z):
        a(f'v_readlane_b32 s{sT2+j}, v{z}, 63')
    a('s_nop 3')
    for j in range(4):
        a(f'v_writelane_b32 v{U}, s{sT2+j}, {j}')
    z = U
    a('s_nop 0')
    a(f'v_cvt_pk_bf16_f32 v{z}, v{z}, v{z}')
    a(f'v_lshlrev_b32 v{z}, 16, v{z}')
    a(f'v_mul_f32 v{z}, 0xbfb8aa3b, v{z}')
    a(f'v_exp_f32 v{z}, v{z}')
    a('s_nop 0')
    a(f'v_add_f32 v{z}, 1.0, v{z}')
    a(f'v_rcp_f32 v{z}, v{z}')
    a('s_nop 0')
    a(f'v_cvt_pk_bf16_f32 v{z}, v{z}, v{z}')
    a(f'v_lshlrev_b32 v{z}, 16, v{z}')
    a(f's_lshl_b32 s{sT0}, s{sC}, 7')
    a(f's_lshl_b32 s{sT1}, s{sB}, 4')
    a(f's_add_u32 s{sT0}, s{sT0}, s{sT1}')
    a(f's_lshl_b32 s{sT1}, s{sW}, 2')
    a(f's_add_u32 s{sT0}, s{sT0}, s{sT1}')
    a(f's_lshl_b32 s{sT0}, s{sT0}, 2')
    a(f's_add_u32 s{sT0}, s{sT0}, {WS_G}')
    a(f'v_lshlrev_b32 v4, 2, v{vL}')
    a('s_mov_b64 exec, 15')
    a(f'buffer_store_dword v{z}, v4, s[{rWS}:{rWS+3}], s{sT0} offen{SC}')
    a('s_mov_b64 exec, -1')
    a.label('L_ssm_no_gate')
    stamp(a, 5)

    a(f's_lshl_b32 s{sT0}, s{sB}, 14')
    a(f's_add_u32 s{sT0}, s{sT0}, {WS_AGG}')
    a(f's_add_u32 s{rT0}, s{sWS}, s{sT0}')
    a(f's_addc_u32 s{rT0+1}, s{sWS+1}, 0')
    a(f's_mov_b32 s{rT0+2}, 16384')
    a(f's_mov_b32 s{rT0+3}, 0x20000')
    a(f's_mov_b32 s{sT2}, 0')
    a.label('L_ssm_poll')
    for i in range(8):
        a(f'buffer_load_dwordx4 {vreg(GR+4*i, 4)}, v{LA+i}, s[{rT0}:{rT0+3}], 0 offen sc0 sc1')
    a('s_waitcnt vmcnt(0)')
    a.vm = []
    a(f's_mov_b64 s[{sM1}:{sM1+1}], -1')
    for i in range(8):
        a(f'v_cmp_eq_u32 vcc, s{sNONCE}, v{GR+4*i+1}')
        a(f'v_cmp_eq_u32 s[{sT3}:{sT4}], s{sNONCE}, v{GR+4*i+3}')
        a(f's_and_b64 vcc, vcc, s[{sT3}:{sT4}]')
        a(f'v_cmp_gt_i32 s[{sT3}:{sT4}], {2*i}, v9')
        a(f's_or_b64 vcc, vcc, s[{sT3}:{sT4}]')
        a(f's_and_b64 s[{sM1}:{sM1+1}], s[{sM1}:{sM1+1}], vcc')
    a(f's_cmp_eq_u64 s[{sM1}:{sM1+1}], -1')
    a('s_cbranch_scc1 L_ssm_poll_done')
    a(f's_add_u32 s{sT2}, s{sT2}, 1')
    a(f's_cmp_lt_u32 s{sT2}, 0x40000')
    a('s_cbranch_scc0 L_ssm_poll_done')
    a('s_sleep 1')
    a('s_branch L_ssm_poll')
    a.label('L_ssm_poll_done')
    stamp(a, 6)
    a(f'v_mov_b32 v{SRE}, v{GR+28}')
    a(f'v_mov_b32 v{SRE+1}, v{GR+30}')
    for i in range(6, -1, -1):
        a(f'v_mov_b32 v{TIM}, v{GR+4*i}')
        a(f'v_mov_b32 v{TIM+1}, v{GR+4*i+2}')
        a(pk_fma(TRE, L256, SRE, TIM, b0=0))
        a(pk_fma(SRE, L256, SRE, TRE, b0=1, swap1=True, neg0='lo'))
    cmul_s(a, TRE, TRE + 1, L128, L128 + 1, SRE, SRE + 1)
    a(f'v_cmp_lt_u32 vcc, 31, v{vL}')
    a('s_nop 1')
    a(f'v_cndmask_b32 v{SRE}, v{SRE}, v{TRE}, vcc')
    a(f'v_cndmask_b32 v{SRE+1}, v{SRE+1}, v{TRE+1}, vcc')
    a(f'v_mov_b32 v{TRE}, v{SRE}')
    a(f'v_mov_b32 v{TRE+1}, v{SRE+1}')
    a('s_nop 1')
    a(f'v_permlane32_swap_b32 v{SRE}, v{TRE}')
    a(f'v_permlane32_swap_b32 v{SRE+1}, v{TRE+1}')
    a('s_nop 1')
    a(f'v_add_f32 v{SRE}, v{SRE}, v{TRE}')
    a(f'v_add_f32 v{SRE+1}, v{SRE+1}, v{TRE+1}')
    HR, HI = TRE, TIM
    a(pk_fma(HR, CWR, SRE, CPR, b1=0))
    a(pk_fma(HI, CWR, SRE, CPI, b1=1))
    a(pk_fma(HR, CWI, SRE, HR, b1=1, neg0='both'))
    a(pk_fma(HI, CWI, SRE, HI, b1=0))
    D0 = GR

    def cv(v):
        d = D0 + 2 * v
        a(f'v_cvt_pk_bf16_f32 v{d}, v{ure(v)}, -v{uim(v)}')
        a(f'v_cvt_pk_bf16_f32 v{d+1}, v{ure(v)+1}, -v{uim(v)+1}')
        a(f'ds_write2st64_b32 v{TW+v}, v{d}, v{d+1} offset0:0 offset1:16')
    for u in range(16):
        pr = HR if u == 0 else ure(u - 1)
        pi = HI if u == 0 else uim(u - 1)
        a(pk_fma(ure(u), LAM, pi, ure(u), b0=1, neg0='both'))
        a(pk_fma(uim(u), LAM, pr, uim(u), b0=1))
        a(pk_fma(ure(u), LAM, pr, ure(u), b0=0))
        a(pk_fma(uim(u), LAM, pi, uim(u), b0=0))
        if u:
            cv(u - 1)
    cv(15)
    a(f'v_and_b32 v2, 15, v{vL}')
    a(f'v_lshrrev_b32 v3, 4, v{vL}')
    a('v_lshrrev_b32 v4, 1, v2')
    a('v_xor_b32 v3, v3, v4')
    a('v_lshlrev_b32 v3, 4, v3')
    a('v_lshl_add_u32 v3, v2, 7, v3')
    a(f's_lshl_b32 s{sT0}, s{sW}, 13')
    a(f's_add_u32 s{sT0}, s{sT0}, {TB0}')
    a(f'v_add_u32 v3, s{sT0}, v3')
    a('v_xor_b32 v4, 64, v3')
    rowoff = [0, 4096, 2048, 6144]
    for kp in range(2):
        for tb in range(4):
            a(f'ds_read_b128 {vreg(ACC + 16*kp + 4*tb, 4)}, v{3+kp} offset:{rowoff[tb]}')
    a(f's_lshl_b32 s{sT0}, s{sC}, 1')
    a(f's_add_u32 s{sT0}, s{sT0}, s{sWT}')
    a(f's_mul_i32 s{sT0}, s{sT0}, 88')
    a(f's_lshl_b32 s{sT1}, s{sB}, 2')
    a(f's_add_u32 s{sT0}, s{sT0}, s{sT1}')
    a(f's_lshl_b32 s{sT1}, s{sWC}, 1')
    a(f's_add_u32 s{sT0}, s{sT0}, s{sT1}')
    a(f's_lshl_b32 s{sT0}, s{sT0}, 12')
    a(f's_add_u32 s{sT1}, s{sT0}, 4096')
    for kp in range(2):
        for tb in range(4):
            a(f's_waitcnt lgkmcnt({7 - (4*kp + tb)})')
            a(f'buffer_store_dwordx4 {vreg(ACC + 16*kp + 4*tb, 4)}, v{vL16}, s[{rWS}:{rWS+3}], s{sT0 + kp} offen offset:{1024*tb}{SC}')
    stamp(a, 7)
    signal_done(a, 'ssm')
    if OPT['diag']:
        a('v_mov_b32 v127, v255')
        a('v_mov_b32 v126, v254')
    a('s_branch L_phase2')


def gen_ffn(a):
    R = 3
    SLOT = 49152
    NST = 10
    vL = 1
    vX, vW = 10, 14
    vRX = [22 + 4 * s for s in range(R)]
    vRW = [34 + 4 * s for s in range(R)]
    NON = 46
    ACC = 128
    PK = 64

    def acc(mf, nt):
        return ACC + 16 * (2 * mf + nt)

    def fX(s, nt, kk):
        return 96 * s + 16 * nt + 4 * kk

    def fW(s, mf, kk):
        return 96 * s + 32 + 16 * mf + 4 * kk

    DV[:] = [127, 126]
    a(f's_lshr_b32 s{sWT}, s{sW}, 1')
    a(f's_and_b32 s{sWC}, s{sW}, 1')
    srd(a, rX, sX, X_BYTES)
    srd(a, rB, sW1, W1_BYTES)
    a(f'v_lshrrev_b32 v2, 4, v{vL}')
    a(f'v_and_b32 v3, 7, v{vL}')
    a('v_xor_b32 v3, v2, v3')
    a('v_lshlrev_b32 v3, 4, v3')
    a('v_xor_b32 v4, 64, v3')
    a(f's_lshl_b32 s{sT0}, s{sC}, 7')
    a(f's_lshl_b32 s{sT1}, s{sW}, 5')
    a(f's_add_u32 s{sT0}, s{sT0}, s{sT1}')
    a(f'v_lshrrev_b32 v5, 3, v{vL}')
    a(f'v_add_u32 v5, s{sT0}, v5')
    a(f's_movk_i32 s{sT2}, 1280')
    a(f'v_mul_lo_u32 v5, v5, s{sT2}')
    for i in range(4):
        a(f'v_add_u32 v{vX+i}, v5, v{3 + (i & 1)}')
        if i:
            a(f'v_add_u32 v{vX+i}, {9216*i}, v{vX+i}')
    a(f'v_lshrrev_b32 v2, 5, v{vL}')
    a(f's_lshl_b32 s{sT0}, s{sW}, 4')
    a(f'v_add_u32 v5, s{sT0}, v2')
    a(f's_movk_i32 s{sT2}, 3072')
    a(f'v_mul_lo_u32 v5, v5, s{sT2}')
    a(f's_lshl_b32 s{sT0}, s{sB}, 9')
    a(f'v_add_u32 v5, s{sT0}, v5')
    a(f'v_and_b32 v6, 31, v{vL}')
    a('v_lshlrev_b32 v7, 2, v2')
    a('v_xor_b32 v6, v6, v7')
    a('v_lshlrev_b32 v6, 4, v6')
    a('v_xor_b32 v7, 128, v6')
    for i in range(8):
        a(f'v_add_u32 v{vW+i}, v5, v{6 + (i & 1)}')
        off = 6144 * i - 1024 * (i & 3)
        if off:
            a(f'v_add_u32 v{vW+i}, {off}, v{vW+i}')
    a(f's_lshl_b32 s{sMA}, s{sW}, 12')
    a(f's_lshl_b32 s{sMB}, s{sW}, 13')
    a(f's_add_u32 s{sMB}, s{sMB}, 16384')

    def dma(stage):
        slot = stage % R
        out = []
        out.append(('s', f's_mov_b32 s{sK}, {stage*128}'))
        out.append(('s', f's_add_u32 m0, s{sMA}, {slot*SLOT}'))
        out.append(('s', f's_mov_b32 s{sK2}, {stage*64*3072}'))
        for i in range(4):
            out.append(('v', f'buffer_load_dwordx4 v{vX+i}, s[{rX}:{rX+3}], s{sK} offen offset:{1024*i} lds', f'st{stage}'))
        for h in range(2):
            out.append(('s', f's_add_u32 m0, s{sMB}, {slot*SLOT + 4096*h}'))
            out.append(('s', 's_nop 0'))
            for i in range(4):
                out.append(('v', f'buffer_load_dwordx4 v{vW+4*h+i}, s[{rB}:{rB+3}], s{sK2} offen offset:{1024*i} lds', f'st{stage}'))
        return out

    for st in range(R):
        emit(a, dma(st))
    stamp(a, 1)
    srd(a, rWS, sWS, WS_SIZE)

    a(f'v_and_b32 v9, 31, v{vL}')
    a(f'v_lshrrev_b32 v2, 5, v{vL}')
    a(f'v_bfe_u32 v3, v{vL}, 1, 3')
    a('v_xor_b32 v2, v2, v3')
    a('v_lshlrev_b32 v2, 4, v2')
    a('v_lshl_add_u32 v2, v9, 7, v2')
    a(f's_lshl_b32 s{sT0}, s{sWT}, 13')
    a(f'v_add_u32 v2, s{sT0}, v2')
    for kk in range(4):
        for s in range(R):
            if kk:
                a(f'v_xor_b32 v{vRX[s]+kk}, {32*kk}, v2')
            else:
                a(f'v_mov_b32 v{vRX[s]+kk}, v2')
            if s:
                a(f'v_add_u32 v{vRX[s]+kk}, {SLOT*s}, v{vRX[s]+kk}')
    a(f'v_lshrrev_b32 v2, 5, v{vL}')
    a('v_lshlrev_b32 v2, 3, v2')
    a(f'v_bfe_u32 v3, v{vL}, 2, 2')
    a('v_add_u32 v2, v2, v3')
    a('v_lshlrev_b32 v2, 9, v2')
    a(f'v_bfe_u32 v4, v{vL}, 4, 1')
    a('v_lshl_add_u32 v2, v4, 5, v2')
    a(f'v_and_b32 v4, 3, v{vL}')
    a('v_lshl_add_u32 v2, v4, 3, v2')
    a('v_lshl_add_u32 v2, v3, 6, v2')
    a(f's_lshl_b32 s{sT0}, s{sWC}, 8')
    a(f's_add_u32 s{sT0}, s{sT0}, 16384')
    a(f'v_add_u32 v2, s{sT0}, v2')
    for mf in range(4):
        for s in range(R):
            if mf:
                a(f'v_xor_b32 v{vRW[s]+mf}, {64*mf}, v2')
            else:
                a(f'v_mov_b32 v{vRW[s]+mf}, v2')
            if s:
                a(f'v_add_u32 v{vRW[s]+mf}, {SLOT*s}, v{vRW[s]+mf}')
    a(f's_lshl_b32 s{sFLAG}, s{sC}, 4')
    a(f's_add_u32 s{sFLAG}, s{sFLAG}, s{sB}')
    a(f's_add_u32 s{sFLAG}, s{sFLAG}, 10')
    a(f's_lshl_b32 s{sFLAG}, s{sFLAG}, 7')
    a(f's_add_u32 s{sFLAG}, s{sFLAG}, {WS_FLAG}')

    def reads(stage):
        slot = stage % R
        rs = stage & 1
        out = []
        for kk in range(4):
            for nt in range(2):
                out.append(f'ds_read_b128 {areg(fX(rs, nt, kk), 4)}, v{vRX[slot]+kk} offset:{4096*nt}')
            for mf in range(4):
                for n in range(2):
                    out.append(f'ds_read_b64_tr_b16 {areg(fW(rs, mf, kk) + 2*n, 2)}, v{vRW[slot]+mf} offset:{8192*kk + 2048*n}')
        return out

    def mf_(rs, stage, kk, mf, nt):
        c = '0' if (stage == 0 and kk == 0) else vreg(acc(mf, nt), 16)
        return f'v_mfma_f32_32x32x16_bf16 {vreg(acc(mf, nt), 16)}, {areg(fW(rs, mf, kk), 4)}, {areg(fX(rs, nt, kk), 4)}, {c}'

    a.wait_vm('st0')
    a('s_barrier')
    stamp(a, 2)
    emit(a, reads(0))
    for s in range(NST - 1):
        a.comment(f'FFN stage {s}')
        a('s_waitcnt lgkmcnt(0)')
        rs = s & 1
        mm = [mf_(rs, s, kk, mf, nt) for kk in range(4) for mf in range(4) for nt in range(2)]
        a(mm[0])
        a(mm[1])
        mm = mm[2:]
        a.wait_vm(f'st{s+1}')
        a('s_barrier')
        stage_stamp(a, s)
        slots = {}
        rd = reads(s + 1)
        spread([rd[2*i:2*i+2] for i in range(20)], range(20), slots)
        if s + R < NST:
            spread(vm_groups(dma(s + R)), OPT['ffn_dma_pos'], slots)
        if s == 7:
            spread([nonce_load(a, NON)], [4], slots)
        emit(a, sched(mm, slots))
    s = NST - 1
    rs = s & 1
    a('s_waitcnt lgkmcnt(0)')
    stamp(a, 3)
    a(f'v_bfe_u32 v2, v{vL}, 4, 1')
    a('v_lshlrev_b32 v2, 10, v2')
    a(f'v_lshrrev_b32 v3, 5, v{vL}')
    a('v_lshl_add_u32 v2, v3, 8, v2')
    a(f'v_and_b32 v3, 15, v{vL}')
    a('v_lshl_add_u32 v2, v3, 4, v2')
    a(f's_lshl_b32 s{sT0}, s{sC}, 1')
    a(f's_add_u32 s{sT0}, s{sT0}, s{sWT}')
    a(f's_mul_i32 s{sT0}, s{sT0}, 88')
    a(f's_lshl_b32 s{sT1}, s{sB}, 3')
    a(f's_add_u32 s{sT0}, s{sT0}, s{sT1}')
    a(f's_lshl_b32 s{sT1}, s{sWC}, 2')
    a(f's_add_u32 s{sT0}, s{sT0}, s{sT1}')
    a(f's_add_u32 s{sT0}, s{sT0}, 40')
    a(f's_lshl_b32 s{sT0}, s{sT0}, 12')
    for mf in range(1, 4):
        a(f's_add_u32 s{sT0+mf}, s{sT0}, {4096*mf}')
    tiles = [(mf, nt) for mf in range(4) for nt in range(2)]

    def epi(idx):
        mf, nt = tiles[idx]
        base = PK + 8 * (idx & 3)
        out = []
        for P_ in range(2):
            for d in range(4):
                r = acc(mf, nt) + 8 * P_ + 2 * d
                out.append(f'v_cvt_pk_bf16_f32 v{base+4*P_+d}, v{r}, v{r+1}')
            for d in range(4):
                out.append(f'v_pk_max_i16 v{base+4*P_+d}, v{base+4*P_+d}, 0')
            out.append(('v', f'buffer_store_dwordx4 {vreg(base+4*P_, 4)}, v2, s[{rWS}:{rWS+3}], s{sT0+mf} offen offset:{2048*nt + 512*P_}{SC}', 'h1'))
        return out

    for idx, (mf, nt) in enumerate(tiles):
        mm = [mf_(rs, s, kk, mf, nt) for kk in range(4)]
        if idx >= 2:
            e = epi(idx - 2)
            a(mm[0])
            if idx == 2:
                a('s_nop 7')
            emit(a, e[:5])
            a(mm[1])
            emit(a, e[5:10])
            a(mm[2])
            emit(a, e[10:14])
            a(mm[3])
            emit(a, e[14:])
        else:
            emit(a, mm)
    emit(a, epi(len(tiles) - 2))
    emit(a, epi(len(tiles) - 1))
    stamp(a, 4)
    a(f's_cmp_lg_u32 s{sW}, 0')
    a('s_cbranch_scc1 L_ffn_no_nonce')
    nonce_wait(a, NON, 'ffn')
    a.label('L_ffn_no_nonce')
    signal_done(a, 'ffn')


def gen_phase2(a):
    D = OPT['K2D']
    vL = 1
    ACC = 128
    PSZ = 64 * 336
    XS, DS, GG = 16, 26, 36
    SK = 44
    OA, RA, GA = 64, 70, 76
    DV[:] = [127, 126]

    def acc(tb, nt):
        return ACC + 4 * (5 * tb + nt)

    def fH(d, tb):
        return 36 * d + 4 * tb

    def fWt(d, nt):
        return 36 * d + 16 + 4 * nt

    a.label('L_phase2')
    stamp(a, 8)
    a(f's_and_b32 s{sT0}, s2, 3')
    a(f's_lshl_b32 s{sT0}, s{sT0}, 3')
    a(f's_bfe_u32 s{sT1}, s2, 0x30003')
    a(f's_add_u32 s{sC}, s{sT0}, s{sT1}')
    a(f's_bfe_u32 s{sT0}, s2, 0x10002')
    a(f's_lshl_b32 s{sT0}, s{sT0}, 2')
    a(f's_lshr_b32 s{sT1}, s2, 6')
    a(f's_add_u32 s{sB}, s{sT0}, s{sT1}')
    srd(a, rX, sX, X_BYTES)
    srd(a, rB, sDSK, 1280)
    for i in range(5):
        a(f'v_add_u32 v4, {64*i}, v{vL}')
        a('v_mul_u32_u24 v5, 0xccd, v4')
        a('v_lshrrev_b32 v5, 16, v5')
        a('v_mul_u32_u24 v6, 20, v5')
        a('v_sub_u32 v6, v4, v6')
        a(f's_lshl_b32 s{sT2}, s{sW}, 4')
        a(f'v_add_u32 v5, s{sT2}, v5')
        a('v_mul_u32_u24 v7, 336, v5')
        a(f'v_lshl_add_u32 v{RA+i}, v6, 4, v7')
        a(f's_lshl_b32 s{sT2}, s{sC}, 6')
        a(f'v_add_u32 v5, s{sT2}, v5')
        a(f's_mul_i32 s{sT3}, s{sB}, 80')
        a('v_lshlrev_b32 v6, 2, v6')
        a(f'v_add_u32 v6, s{sT3}, v6')
        a('v_mul_u32_u24 v7, 640, v5')
        a('v_add_u32 v7, v7, v6')
        a(f'v_lshlrev_b32 v{OA+i}, 2, v7')
        a('v_lshlrev_b32 v7, 1, v7')
        a.vmem(f'buffer_load_dwordx2 {vreg(XS+2*i, 2)}, v7, s[{rX}:{rX+3}], 0 offen', 'epi')
        a('v_lshlrev_b32 v6, 1, v6')
        a.vmem(f'buffer_load_dwordx2 {vreg(DS+2*i, 2)}, v6, s[{rB}:{rB+3}], 0 offen', 'epi')
        a('v_lshlrev_b32 v5, 2, v5')
        a(f'v_add_u32 v{GA+i}, {WS_G}, v5')
    a(f's_mul_i32 s{sT0}, s{sW}, 20')
    a(f's_cmp_eq_u32 s{sW}, 3')
    a(f's_cselect_b32 s{sT1}, 4, 0')
    a(f's_add_u32 s{sT0}, s{sT0}, s{sT1}')
    a(f's_cmp_ge_u32 s{sW}, 2')
    a(f's_cselect_b32 s{sT1}, 24, 20')
    a(f's_mul_i32 s{sT2}, s{sC}, 88')
    a(f's_add_u32 s{sT2}, s{sT2}, s{sT0}')
    a(f's_lshl_b32 s{sT2}, s{sT2}, 12')
    a(f's_add_u32 s{rT0}, s{sWS}, s{sT2}')
    a(f's_addc_u32 s{rT0+1}, s{sWS+1}, 0')
    a(f's_lshl_b32 s{rT0+2}, s{sT1}, 12')
    a(f's_mov_b32 s{rT0+3}, 0x20000')
    a(f's_mul_i32 s{sT2}, s{sB}, 88')
    a(f's_add_u32 s{sT2}, s{sT2}, s{sT0}')
    a(f's_mul_i32 s{sT2}, s{sT2}, 5120')
    a(f's_add_u32 s{sT2}, s{sT2}, {WS_WT}')
    a(f's_add_u32 s{rT1}, s{sWS}, s{sT2}')
    a(f's_addc_u32 s{rT1+1}, s{sWS+1}, 0')
    a(f's_mul_i32 s{rT1+2}, s{sT1}, 5120')
    a(f's_mov_b32 s{rT1+3}, 0x20000')
    a(f'v_lshlrev_b32 v2, 4, v{vL}')
    a('v_add_u32 v3, 4096, v2')
    for r in range(80):
        a(f'v_mov_b32 v{ACC+r}, 0')
    a(f's_mov_b32 s{sHI}, 0xffff0000')
    a.wait_vm('epi')
    for i in range(5):
        for h in range(2):
            x, dd, o = XS + 2*i + h, DS + 2*i + h, SK + 4*i + 2*h
            a(f'v_lshlrev_b32 v4, 16, v{x}')
            a(f'v_and_b32 v5, s{sHI}, v{x}')
            a(f'v_lshlrev_b32 v6, 16, v{dd}')
            a(f'v_and_b32 v7, s{sHI}, v{dd}')
            a('v_mul_f32 v4, v4, v6')
            a('v_mul_f32 v5, v5, v7')
            a('v_cvt_pk_bf16_f32 v4, v4, v5')
            a(f'v_lshlrev_b32 v{o}, 16, v4')
            a(f'v_and_b32 v{o+1}, s{sHI}, v4')

    a(f's_cmp_lg_u32 s{sW}, 0')
    a('s_cbranch_scc1 L_p2_go')
    a(f'v_subrev_u32 v4, 16, v{vL}')
    a('v_mul_u32_u24 v5, 0x199a, v4')
    a('v_lshrrev_b32 v5, 16, v5')
    a('v_mul_u32_u24 v6, 10, v5')
    a('v_sub_u32 v6, v4, v6')
    a(f's_lshr_b32 s{sT0}, s{sB}, 1')
    a(f's_lshl_b32 s{sT0}, s{sT0}, 2')
    a(f'v_add_u32 v5, s{sT0}, v5')
    a('v_lshl_add_u32 v5, v5, 4, v6')
    a(f's_lshr_b32 s{sT0}, s{sC}, 1')
    a(f's_lshl_b32 s{sT0}, s{sT0}, 4')
    a(f'v_add_u32 v6, s{sT0}, v{vL}')
    a(f'v_cmp_gt_u32 vcc, 16, v{vL}')
    a('s_nop 1')
    a('v_cndmask_b32 v5, v5, v6, vcc')
    a('v_lshlrev_b32 v5, 7, v5')
    a(f'v_add_u32 v5, {WS_FLAG}, v5')
    a('s_mov_b32 exec_lo, -1')
    a('s_mov_b32 exec_hi, 0xffffff')
    a(f's_mov_b32 s{sT2}, 0')
    a.label('L_p2_poll')
    a(f'buffer_load_dword v4, v5, s[{rWS}:{rWS+3}], 0 offen sc0 sc1')
    a('s_waitcnt vmcnt(0)')
    a(f'v_cmp_ne_u32 vcc, s{sNONCE}, v4')
    a('s_nop 1')
    a('s_cmp_eq_u64 vcc, 0')
    a('s_cbranch_scc1 L_p2_poll_done')
    a(f's_add_u32 s{sT2}, s{sT2}, 1')
    a(f's_cmp_lt_u32 s{sT2}, 0x40000')
    a('s_cbranch_scc0 L_p2_poll_done')
    a('s_sleep 1')
    a('s_branch L_p2_poll')
    a.label('L_p2_poll_done')
    a('s_mov_b64 exec, -1')
    a.label('L_p2_go')
    a('s_barrier')
    stamp(a, 9)

    def loads(d):
        out = []
        for tb in range(4):
            out.append(f'buffer_load_dwordx4 {areg(fH(d, tb), 4)}, v2, s[{rT0}:{rT0+3}], s{sK} offen offset:{1024*tb}{SC}')
        for nt in range(4):
            out.append(f'buffer_load_dwordx4 {areg(fWt(d, nt), 4)}, v2, s[{rT1}:{rT1+3}], s{sK2} offen offset:{1024*nt}{SC}')
        out.append(f'buffer_load_dwordx4 {areg(fWt(d, 4), 4)}, v3, s[{rT1}:{rT1+3}], s{sK2} offen{SC}')
        return out

    a(f's_mov_b32 s{sK}, 0')
    a(f's_mov_b32 s{sK2}, 0')
    for d in range(D):
        for ld in loads(d):
            a(ld)
        if d == 0:
            for i in range(5):
                a(f'buffer_load_dword v{GG+i}, v{GA+i}, s[{rWS}:{rWS+3}], 0 offen{SC}')
        a(f's_add_u32 s{sK}, s{sK}, 4096')
        a(f's_add_u32 s{sK2}, s{sK2}, 5120')

    def step(d, with_loads, wait):
        a(f's_waitcnt vmcnt({wait})')
        ld = loads(d) if with_loads else None
        for tb in range(4):
            for nt in range(5):
                a(f'v_mfma_f32_16x16x32_bf16 {vreg(acc(tb, nt), 4)}, {areg(fWt(d, nt), 4)}, {areg(fH(d, tb), 4)}, {vreg(acc(tb, nt), 4)}')
                if tb == 3 and ld:
                    a(ld[4 + nt])
            if ld:
                a(ld[tb])
        if ld:
            a(f's_add_u32 s{sK}, s{sK}, 4096')
            a(f's_add_u32 s{sK2}, s{sK2}, 5120')
    assert 20 % D == 0 and 24 % D == 0
    a(f's_cmp_ge_u32 s{sW}, 2')
    a(f's_cselect_b32 s{sT5}, {24 // D - 1}, {20 // D - 1}')
    a.label('L_k2_loop')
    for d in range(D):
        step(d, True, 9 * (D - 1))
    a(f's_sub_u32 s{sT5}, s{sT5}, 1')
    a(f's_cmp_lg_u32 s{sT5}, 0')
    a('s_cbranch_scc1 L_k2_loop')
    for d in range(D):
        step(d, False, 9 * (D - 1 - d))
    stamp(a, 10)
    a(f'v_and_b32 v4, 15, v{vL}')
    a('v_mul_u32_u24 v4, 336, v4')
    a(f'v_lshrrev_b32 v5, 4, v{vL}')
    a('v_lshl_add_u32 v4, v5, 4, v4')
    a(f's_mul_i32 s{sT0}, s{sW}, {PSZ}')
    a(f'v_add_u32 v4, s{sT0}, v4')
    a('s_nop 4')
    for tb in range(4):
        for nt in range(5):
            a(f'ds_write_b128 v4, {vreg(acc(tb, nt), 4)} offset:{5376*tb + 64*nt}')
    a('s_waitcnt lgkmcnt(0)')
    a('s_barrier')
    srd(a, rT0, sOUT, OUT_BYTES)
    RD = 128

    def rd(i):
        for p in range(4):
            a(f'ds_read_b128 {vreg(RD + 16*i + 4*p, 4)}, v{RA+i} offset:{PSZ*p}')
    rd(0)
    rd(1)
    for i in range(5):
        b = RD + 16 * i
        if i + 2 < 5:
            rd(i + 2)
        a(f's_waitcnt lgkmcnt({4 * min(2, 4 - i)})')
        g = GG + i
        a(f'v_pk_add_f32 {pair(b)}, {pair(b)}, {pair(b+4)}')
        a(f'v_pk_add_f32 {pair(b+2)}, {pair(b+2)}, {pair(b+6)}')
        a(f'v_pk_add_f32 {pair(b+8)}, {pair(b+8)}, {pair(b+12)}')
        a(f'v_pk_add_f32 {pair(b+10)}, {pair(b+10)}, {pair(b+14)}')
        a(f'v_sub_f32 v4, 1.0, v{g}')
        a('v_cvt_pk_bf16_f32 v4, v4, v4')
        a('v_lshlrev_b32 v4, 16, v4')
        for h in range(2):
            bb = b + 8 + 2 * h
            a(f'v_cvt_pk_bf16_f32 v5, v{bb}, v{bb+1}')
            a('v_lshlrev_b32 v6, 16, v5')
            a(f'v_and_b32 v7, s{sHI}, v5')
            a('v_mul_f32 v6, v4, v6')
            a('v_mul_f32 v7, v4, v7')
            a('v_cvt_pk_bf16_f32 v5, v6, v7')
            a(f'v_lshlrev_b32 v{bb}, 16, v5')
            a(f'v_and_b32 v{bb+1}, s{sHI}, v5')
        for h in range(2):
            a(f'v_pk_add_f32 {pair(b+2*h)}, {pair(b+2*h)}, {pair(SK+4*i+2*h)}')
        for e in range(4):
            a(f'v_fma_f32 v{b+e}, v{g}, v{b+e}, v{b+8+e}')
        a(f'buffer_store_dwordx4 {vreg(b, 4)}, v{OA+i}, s[{rT0}:{rT0+3}], 0 offen')
    stamp(a, 11)
    stamps_out(a)
    if OPT['probe'] == 1:
        a.label('L_probe')
        a('s_memrealtime s[98:99]')
        a('s_waitcnt lgkmcnt(0)')
        a('s_sub_u32 s98, s98, s73')
        a('s_cmp_lt_u32 s98, 6000')
        a('s_cbranch_scc1 L_probe')
    if OPT['probe'] == 2:
        a('s_memtime s[100:101]')
        a('s_waitcnt lgkmcnt(0)')
        a('s_sub_u32 s100, s100, s72')
        a('s_mul_hi_u32 s100, s100, 42949673')
        a('s_add_u32 s100, s100, 6000')
        a.label('L_probe')
        a('s_memrealtime s[98:99]')
        a('s_waitcnt lgkmcnt(0)')
        a('s_sub_u32 s98, s98, s73')
        a('s_cmp_lt_u32 s98, s100')
        a('s_cbranch_scc1 L_probe')


def gen_kernel(a):
    kn = NAME + '_kernel'
    a.label(kn)
    DV[:] = [127, 126]
    a('s_cmp_ge_u32 s2, 256')
    a('s_cbranch_scc1 L_exit')
    a('s_load_dwordx16 s[4:19], s[0:1], 0')
    a('s_load_dwordx16 s[20:35], s[0:1], 64')
    if OPT['probe']:
        a('s_memrealtime s[98:99]')
        a('s_memtime s[100:101]')
        a('s_waitcnt lgkmcnt(0)')
        a('s_mov_b32 s73, s98')
        a('s_mov_b32 s72, s100')
    if OPT['diag']:
        a('v_mov_b32 v127, 0')
        a('v_mov_b32 v126, 0')
    stamp(a, 0)
    a('v_and_b32 v1, 63, v0')
    a('v_lshrrev_b32 v2, 6, v0')
    a('s_nop 0')
    a(f'v_readfirstlane_b32 s{sW}, v2')
    a(f's_and_b32 s{sT0}, s2, 3')
    a(f's_lshl_b32 s{sT0}, s{sT0}, 2')
    a(f's_bfe_u32 s{sT1}, s2, 0x20003')
    a(f's_add_u32 s{sC}, s{sT0}, s{sT1}')
    a(f's_lshr_b32 s{sT1}, s2, 5')
    a(f's_bfe_u32 s{sT2}, s2, 0x10002')
    a('s_waitcnt lgkmcnt(0)')
    a(f's_lshr_b32 s{sT3}, s2, 3')
    a(f's_or_b32 s{sT3}, s{sT3}, s{sW}')
    a(f's_cmp_lg_u32 s{sT3}, 0')
    a('s_cbranch_scc1 L_no_offer')
    a(f's_memrealtime s[{sT3}:{sT4}]')
    a('s_waitcnt lgkmcnt(0)')
    a(f's_or_b32 s{sT3}, s{sT3}, 1')
    a(f'v_mov_b32 v4, s{sT3}')
    a('v_mov_b32 v5, 0')
    a('v_mov_b32 v6, 0')
    a('s_mov_b64 exec, 1')
    a(f'global_atomic_cmpswap v6, v[4:5], s[{sDBG}:{sDBG+1}] sc1')
    a('s_mov_b64 exec, -1')
    a.label('L_no_offer')
    a(f's_cmp_ge_u32 s{sT1}, 5')
    a('s_cbranch_scc1 L_ffn')
    a(f's_mul_i32 s{sT2}, s{sT2}, 5')
    a(f's_add_u32 s{sB}, s{sT2}, s{sT1}')
    sub = Asm()
    gen_ssm(sub)
    a.lines += sub.lines
    a.label('L_ffn')
    a(f's_mul_i32 s{sT2}, s{sT2}, 3')
    a(f's_add_u32 s{sB}, s{sT2}, s{sT1}')
    a(f's_sub_u32 s{sB}, s{sB}, 5')
    sub = Asm()
    gen_ffn(sub)
    a.lines += sub.lines
    sub = Asm()
    gen_phase2(sub)
    a.lines += sub.lines
    a.label('L_exit')
    a('s_endpgm')


HEADER = open('cdna_kernels/' + NAME + '.s.ref').read().split('; Override launch')[0]


def build():
    k = Asm()
    gen_kernel(k)
    probs = check_hazards(k.lines, 'k')
    kn = NAME + '_kernel'
    out = HEADER
    out += '; @launch grid=(256,1,1) block=(256,1,1) lds=163840\n'
    out += '.amdgcn_target "amdgcn-amd-amdhsa--gfx950"\n.text\n'
    out += f'.globl {kn}\n.p2align 8\n.type {kn},@function\n' + k.text()
    out += f'''.section .rodata,"a"
.p2align 6
.amdhsa_kernel {kn}
  .amdhsa_next_free_vgpr 512
  .amdhsa_next_free_sgpr 102
  .amdhsa_accum_offset 256
  .amdhsa_group_segment_fixed_size 0
  .amdhsa_kernarg_size 128
  .amdhsa_user_sgpr_count 2
  .amdhsa_user_sgpr_kernarg_segment_ptr 1
  .amdhsa_system_sgpr_workgroup_id_x 1
  .amdhsa_float_denorm_mode_32 3
.end_amdhsa_kernel
'''
    return out, probs


if __name__ == '__main__':
    dst = sys.argv[1] if len(sys.argv) > 1 else 'cdna_kernels/' + NAME + '.s'
    for kv in sys.argv[2:]:
        k_, v = kv.split('=')
        OPT[k_] = int(v)
    text, probs = build()
    for p in probs:
        print('HAZARD', p)
    open(dst, 'w').write(text)
    print('wrote', dst, len(text), 'bytes', len(probs), 'hazards')
```

```python
import sys
from asmlib import Asm, check_hazards

NAME = 'gated_mix__ssm_conv_s5__dense_activation_relu__prompt'

WS_HF = 0
WS_WT = 32 * 88 * 4096
WS_G = WS_WT + 8 * 88 * 5120
WS_AGG = WS_G + 8192
WS_FLAG = WS_AGG + 163840
WS_DIAG = 16 << 20
WS_SIZE = 32 << 20
OOB = 0x7f000000

X_BYTES = 2048 * 1280
B_BYTES = 640 * 1280
W1_BYTES = 640 * 3072
W2_BYTES = 1536 * 1280
OUT_BYTES = 2048 * 640 * 4

OPT = dict(diag=0, probe=0, out_sc=0, K2D=4, l2pf=0, dbgout=0,
           ssm_dma_pos=[0, 2, 4, 6, 8, 10, 12, 13], ffn_dma_pos=[0, 3, 5, 8, 10, 13, 15, 18, 20, 23, 25, 28])

sX, sLRE, sLIM, sBRE, sBIM, sCRE, sCIM, sLDT = 4, 6, 8, 10, 12, 14, 16, 18
sDSK, sBX, sW1, sW2, sGW, sOUT, sDBG, sWS = 20, 22, 24, 26, 28, 30, 32, 34
sC, sB, sW, sWT, sWC = 36, 37, 38, 39, 40
sT0, sT1, sT2, sT3, sT4, sT5 = 41, 42, 43, 44, 45, 46
sNONCE = 47
rX, rB, rWS, rT0, rT1 = 48, 52, 56, 60, 64
sK, sMA, sMB, sK2 = 68, 69, 70, 71
sTS = 72
sW2S, sW2D, sCS, sCD = 74, 76, 80, 82
sST = 84
sCD2 = 88
sGR, sGR2, sPB = 90, 91, 93
sHI = 92
sM0, sM1 = 94, 96
sFLAG = 98
sCLK = 100

SC = ' sc1'
DV = [127, 126]


def srd(a, r, ptr, size):
    a(f's_mov_b32 s{r}, s{ptr}')
    a(f's_mov_b32 s{r+1}, s{ptr+1}')
    a(f's_mov_b32 s{r+2}, {size}')
    a(f's_mov_b32 s{r+3}, 0x20000')


def stamp(a, idx):
    if OPT['probe'] == 10 + idx:
        a('s_memrealtime s[100:101]')
        a('s_waitcnt lgkmcnt(0)')
        a('s_mov_b32 s72, s100')
    if OPT['diag']:
        if idx == 0:
            a(f's_memtime s[{sCLK}:{sCLK+1}]')
        a(f's_memrealtime s[{sTS}:{sTS + 1}]')
        a('s_waitcnt lgkmcnt(0)')
        a(f'v_writelane_b32 v{DV[0]}, s{sTS}, {idx}')


def stage_stamp(a, s):
    if OPT['diag']:
        if s > 0:
            a(f'v_writelane_b32 v{DV[1]}, s{sST + 2*((s-1) & 1)}, {s-1}')
        a(f's_memtime s[{sST + 2*(s & 1)}:{sST + 1 + 2*(s & 1)}]')


def stamps_out(a):
    if not OPT['diag']:
        return
    a('s_memtime s[42:43]')
    a('s_waitcnt lgkmcnt(0)')
    a(f's_sub_u32 s{sCLK}, s42, s{sCLK}')
    a(f's_lshl_b32 s{sT0}, s2, 8')
    a(f's_lshl_b32 s{sT1}, s{sW}, 6')
    a(f's_add_u32 s{sT0}, s{sT0}, s{sT1}')
    a(f's_add_u32 s{sT0}, s{sT0}, {WS_DIAG}')
    a(f'v_writelane_b32 v{DV[0]}, s{sCLK}, 15')
    a('v_and_b32 v3, 15, v0')
    a('v_lshlrev_b32 v3, 2, v3')
    a(f'v_add_u32 v2, s{sT0}, v3')
    a('s_mov_b32 exec_lo, 0xffff')
    a('s_mov_b32 exec_hi, 0')
    a(f'buffer_store_dword v{DV[0]}, v2, s[{rWS}:{rWS+3}], 0 offen')
    a(f'v_add_u32 v2, {65536}, v2')
    a(f'buffer_store_dword v{DV[1]}, v2, s[{rWS}:{rWS+3}], 0 offen')
    if OPT['dbgout']:
        a(f's_cmp_lg_u32 s{sW}, 0')
        a('s_cbranch_scc1 L_no_dbgout')
        a(f'v_not_b32 v4, v{DV[0]}')
        a(f'v_cmp_eq_u32 vcc, 0, v3')
        a('s_nop 1')
        a(f'v_cndmask_b32 v4, v{DV[0]}, v4, vcc')
        a('v_add_u32 v3, 4, v3')
        a('s_mov_b32 exec_lo, 0xfff')
        a(f'global_atomic_umax v3, v4, s[{sDBG}:{sDBG+1}] sc1')
        a.label('L_no_dbgout')
    a('s_mov_b64 exec, -1')


def sched(mm, slots):
    out = []
    for i, m in enumerate(mm):
        out.append(m)
        out += slots.get(i, [])
    return out


def spread(groups, positions, slots):
    for g, p in zip(groups, positions):
        slots.setdefault(p, []).extend(g)


def vm_groups(items):
    out, cur = [], []
    for it in items:
        cur.append(it)
        if not isinstance(it, str) and it[0] == 'v':
            out.append(cur)
            cur = []
    if cur:
        out[-1] += cur
    return out


def emit(a, items):
    for it in items:
        if isinstance(it, str):
            a(it)
        elif it[0] == 'v':
            a.vmem(it[1], it[2])
        else:
            a(it[1])


def vreg(r, n=1):
    return f'v{r}' if n == 1 else f'v[{r}:{r+n-1}]'


def areg(r, n=1):
    return f'a{r}' if n == 1 else f'a[{r}:{r+n-1}]'


def pair(r):
    return f'v[{r}:{r+1}]'


def pk_fma(d, s0, s1, s2, b0=None, b1=None, swap1=False, neg0=None):
    osel = [0, 0, 0]
    ohi = [1, 1, 1]
    if b0 is not None:
        osel[0] = ohi[0] = b0
    if b1 is not None:
        osel[1] = ohi[1] = b1
    if swap1:
        osel[1], ohi[1] = 1, 0
    s = f'v_pk_fma_f32 {pair(d)}, {pair(s0)}, {pair(s1)}, {pair(s2)} op_sel:[{osel[0]},{osel[1]},{osel[2]}] op_sel_hi:[{ohi[0]},{ohi[1]},{ohi[2]}]'
    if neg0 == 'both':
        s += ' neg_lo:[1,0,0] neg_hi:[1,0,0]'
    elif neg0 == 'lo':
        s += ' neg_lo:[1,0,0]'
    return s


def pk_mul(d, s0, s1, b0=None):
    osel = [0, 0]
    ohi = [1, 1]
    if b0 is not None:
        osel[0] = ohi[0] = b0
    return f'v_pk_mul_f32 {pair(d)}, {pair(s0)}, {pair(s1)} op_sel:[{osel[0]},{osel[1]}] op_sel_hi:[{ohi[0]},{ohi[1]}]'


def cmul_s(a, dr, di, ar, ai, br, bi):
    a(f'v_mul_f32 v{dr}, v{ar}, v{br}')
    a(f'v_mul_f32 v{di}, v{ar}, v{bi}')
    a(f'v_fma_f32 v{dr}, -v{ai}, v{bi}, v{dr}')
    a(f'v_fma_f32 v{di}, v{ai}, v{br}, v{di}')


def csq(a, dr, di, sr, si):
    a(f'v_mul_f32 v{dr}, v{sr}, v{sr}')
    a(f'v_mul_f32 v{di}, v{sr}, v{si}')
    a(f'v_fma_f32 v{dr}, -v{si}, v{si}, v{dr}')
    a(f'v_add_f32 v{di}, v{di}, v{di}')


def div_small(a, q, n, d, tmp=None):
    m = (65536 + d - 1) // d
    a(f's_mul_i32 s{q}, s{n}, {m}')
    a(f's_lshr_b32 s{q}, s{q}, 16')


def nonce_load(a, reg):
    return [f's_cmp_lg_u32 s{sW}, 0',
            f's_cbranch_scc1 L_nl_{reg}_{len(a.lines)}',
            f'v_mov_b32 v{reg+1}, 0',
            f'global_load_dword v{reg}, v{reg+1}, s[{sDBG}:{sDBG+1}] sc0 sc1',
            f'L_nl_{reg}_{len(a.lines)}:']


def nonce_wait(a, reg, tag):
    a(f's_mov_b32 s{sT2}, 0')
    a.label(f'L_nw_{tag}')
    a('s_waitcnt vmcnt(0)')
    a(f'v_readfirstlane_b32 s{sNONCE}, v{reg}')
    a('s_nop 3')
    a(f's_cmp_lg_u32 s{sNONCE}, 0')
    a(f's_cbranch_scc1 L_nw_done_{tag}')
    a(f's_add_u32 s{sT2}, s{sT2}, 1')
    a(f's_cmp_lt_u32 s{sT2}, 0x40000')
    a(f's_cbranch_scc0 L_nw_done_{tag}')
    a(f'v_mov_b32 v{reg+1}, 0')
    a(f'global_load_dword v{reg}, v{reg+1}, s[{sDBG}:{sDBG+1}] sc0 sc1')
    a(f's_branch L_nw_{tag}')
    a.label(f'L_nw_done_{tag}')


def signal_done(a, slot16_expr_reg):
    a('s_waitcnt vmcnt(0)')
    a.vm = []
    a('s_barrier')
    a(f's_cmp_lg_u32 s{sW}, 0')
    a(f's_cbranch_scc1 L_sig_{slot16_expr_reg}')
    a(f'v_mov_b32 v2, s{sFLAG}')
    a(f'v_mov_b32 v3, s{sNONCE}')
    a('s_mov_b64 exec, 1')
    a(f'buffer_store_dword v3, v2, s[{rWS}:{rWS+3}], 0 offen sc0 sc1')
    a('s_mov_b64 exec, -1')
    a.label(f'L_sig_{slot16_expr_reg}')


def gen_ssm(a):
    R = 5
    SLOT = 32768
    NST = 10
    vL = 1
    vA, vB_ = 10, 14
    nset = 3
    vRA = [18 + 8 * s for s in range(nset)]
    vRB = [22 + 8 * s for s in range(nset)]
    LAM, L16, L128, L256, COEF = 42, 44, 46, 48, 50
    WRE, WIM = 52, 54
    SRE, SIM, TRE, TIM = 56, 58, 60, 62
    G = 64
    P = 80
    GR = 96
    ACC = 128
    TW = 192
    GX = 208
    GW = 228
    vL16, vW2A, vCA, NON = 248, 249, 250, 252
    PB, AGB, TB0 = 0, 32768, 65536

    def acc(m, part):
        return ACC + 32 * m + 16 * part

    def ure(u):
        return acc(u >> 3, 0) + 2 * (u & 7)

    def uim(u):
        return acc(u >> 3, 1) + 2 * (u & 7)

    def fA(s, m, kk):
        return 64 * s + 16 * m + 4 * kk

    def fB(s, part, kk):
        return 64 * s + 32 + 16 * part + 4 * kk

    DV[:] = [255, 254]
    if OPT['diag']:
        a('v_mov_b32 v255, v127')
    a(f's_lshr_b32 s{sWT}, s{sW}, 1')
    a(f's_and_b32 s{sWC}, s{sW}, 1')
    srd(a, rX, sX, X_BYTES)
    a(f's_cmp_eq_u32 s{sWC}, 0')
    a(f's_cselect_b32 s{rB}, s{sBRE}, s{sBIM}')
    a(f's_cselect_b32 s{rB+1}, s{sBRE+1}, s{sBIM+1}')
    a(f's_mov_b32 s{rB+2}, {B_BYTES}')
    a(f's_mov_b32 s{rB+3}, 0x20000')
    a(f'v_lshrrev_b32 v2, 4, v{vL}')
    a(f'v_and_b32 v3, 7, v{vL}')
    a('v_xor_b32 v3, v2, v3')
    a('v_lshlrev_b32 v3, 4, v3')
    a('v_xor_b32 v4, 64, v3')
    a(f'v_lshrrev_b32 v5, 5, v{vL}')
    a('v_lshlrev_b32 v5, 5, v5')
    a(f'v_bfe_u32 v6, v{vL}, 3, 1')
    a('v_lshl_add_u32 v5, v6, 4, v5')
    a(f'v_bfe_u32 v6, v{vL}, 4, 1')
    a('v_add_u32 v5, v5, v6')
    a(f's_lshl_b32 s{sT0}, s{sC}, 7')
    a(f's_lshl_b32 s{sT1}, s{sWT}, 6')
    a(f's_add_u32 s{sT0}, s{sT0}, s{sT1}')
    a(f's_lshl_b32 s{sT1}, s{sWC}, 3')
    a(f's_add_u32 s{sT0}, s{sT0}, s{sT1}')
    a(f'v_add_u32 v5, s{sT0}, v5')
    a(f's_movk_i32 s{sT2}, 1280')
    a(f'v_mul_lo_u32 v5, v5, s{sT2}')
    for i in range(4):
        a(f'v_add_u32 v{vA+i}, v5, v{3 + (i & 1)}')
        if i:
            a(f'v_add_u32 v{vA+i}, {1536*i}, v{vA+i}')
    a(f's_lshl_b32 s{sT0}, s{sB}, 6')
    a(f's_lshl_b32 s{sT1}, s{sWT}, 5')
    a(f's_add_u32 s{sT0}, s{sT0}, s{sT1}')
    a(f'v_lshrrev_b32 v5, 3, v{vL}')
    a(f'v_add_u32 v5, s{sT0}, v5')
    a(f'v_mul_lo_u32 v5, v5, s{sT2}')
    for i in range(4):
        a(f'v_add_u32 v{vB_+i}, v5, v{3 + (i & 1)}')
        if i:
            a(f'v_add_u32 v{vB_+i}, {9216*i}, v{vB_+i}')
    a(f's_lshl_b32 s{sMA}, s{sW}, 12')
    a(f's_add_u32 s{sMB}, s{sMA}, 16384')

    def dma(stage):
        slot = stage % R
        out = []
        out.append(('s', f's_add_u32 m0, s{sMA}, {slot*SLOT}'))
        out.append(('s', f's_mov_b32 s{sK}, {stage*128}'))
        for i in range(4):
            out.append(('v', f'buffer_load_dwordx4 v{vA+i}, s[{rX}:{rX+3}], s{sK} offen offset:{1024*i} lds', f'st{stage}'))
        out.append(('s', f's_add_u32 m0, s{sMB}, {slot*SLOT}'))
        out.append(('s', 's_nop 0'))
        for i in range(4):
            out.append(('v', f'buffer_load_dwordx4 v{vB_+i}, s[{rB}:{rB+3}], s{sK} offen offset:{1024*i} lds', f'st{stage}'))
        return out

    a(f's_lshl_b32 s{sT0}, s{sB}, 6')
    a(f's_lshl_b32 s{sT1}, s{sWC}, 5')
    a(f's_add_u32 s{sT0}, s{sT0}, s{sT1}')
    a(f'v_and_b32 v60, 31, v{vL}')
    a(f'v_add_u32 v60, s{sT0}, v60')
    a('v_lshlrev_b32 v60, 1, v60')
    a.vmem(f'global_load_ushort v61, v60, s[{sLRE}:{sLRE+1}]', 'lam')
    a.vmem(f'global_load_ushort v62, v60, s[{sLIM}:{sLIM+1}]', 'lam')
    a.vmem(f'global_load_ushort v63, v60, s[{sLDT}:{sLDT+1}]', 'lam')
    for st in range(R):
        emit(a, dma(st))
    stamp(a, 1)
    srd(a, rWS, sWS, WS_SIZE)
    if OPT['l2pf']:
        jj = sT3
        a(f's_lshr_b32 s{jj}, s2, 5')
        a(f's_lshl_b32 s{sT0}, s{sC}, 7')
        a(f's_lshl_b32 s{sT1}, s{jj}, 4')
        a(f's_add_u32 s{sT0}, s{sT0}, s{sT1}')
        a(f's_lshl_b32 s{sT1}, s{sW}, 2')
        a(f's_add_u32 s{sT0}, s{sT0}, s{sT1}')
        a(f'v_lshrrev_b32 v2, 4, v{vL}')
        a(f'v_add_u32 v2, s{sT0}, v2')
        a(f's_movk_i32 s{sT2}, 1280')
        a(f'v_mul_lo_u32 v2, v2, s{sT2}')
        a(f'v_and_b32 v3, 15, v{vL}')
        a('v_min_u32 v3, 9, v3')
        a('v_lshl_add_u32 v2, v3, 7, v2')
        a.vmem(f'buffer_load_dword v7, v2, s[{rX}:{rX+3}], 0 offen', 'pf')
        a(f's_lshl_b32 s{sT0}, s{sB}, 6')
        a(f's_and_b32 s{sT1}, s{sC}, 3')
        a(f's_lshl_b32 s{sT1}, s{sT1}, 4')
        a(f's_add_u32 s{sT0}, s{sT0}, s{sT1}')
        a(f's_lshl_b32 s{sT1}, s{sWT}, 3')
        a(f's_add_u32 s{sT0}, s{sT0}, s{sT1}')
        a(f'v_lshrrev_b32 v2, 3, v{vL}')
        a(f'v_add_u32 v2, s{sT0}, v2')
        a(f'v_mul_lo_u32 v2, v2, s{sT2}')
        a(f'v_and_b32 v3, 7, v{vL}')
        a('v_lshl_add_u32 v2, v3, 7, v2')
        a.vmem(f'buffer_load_dword v7, v2, s[{rB}:{rB+3}], 0 offen offset:256', 'pf')

    a(f'v_and_b32 v9, 31, v{vL}')
    a(f'v_lshrrev_b32 v2, 5, v{vL}')
    a(f'v_bfe_u32 v8, v{vL}, 1, 3')
    a('v_xor_b32 v2, v2, v8')
    a('v_lshlrev_b32 v2, 4, v2')
    a('v_lshl_add_u32 v2, v9, 7, v2')
    a(f's_lshl_b32 s{sT0}, s{sWT}, 13')
    a(f's_lshl_b32 s{sT1}, s{sWC}, 13')
    a(f's_add_u32 s{sT1}, s{sT1}, 16384')
    for kk in range(4):
        if kk:
            a(f'v_xor_b32 v8, {32*kk}, v2')
        else:
            a('v_mov_b32 v8, v2')
        a(f'v_add_u32 v{vRA[0]+kk}, s{sT0}, v8')
        a(f'v_add_u32 v{vRB[0]+kk}, s{sT1}, v8')
    fg = a
    a = Asm()
    for kk in range(4):
        for s in range(1, nset):
            a(f'v_add_u32 v{vRA[s]+kk}, {65536*s}, v{vRA[0]+kk}')
            a(f'v_add_u32 v{vRB[s]+kk}, {65536*s}, v{vRB[0]+kk}')

    a(f's_and_b32 s{sT0}, s{sC}, 3')
    a(f's_mul_i32 s{sT0}, s{sT0}, 10')
    a(f's_add_u32 s{sT0}, s{sT0}, s{sB}')
    a(f's_lshl_b32 s{sT0}, s{sT0}, 2')
    a(f's_add_u32 s{sT0}, s{sT0}, s{sW}')
    a(f's_lshr_b32 s{sT1}, s{sC}, 2')
    for i in range(2):
        a(f's_add_u32 s{sT2}, s{sT0}, {160*i}')
        div_small(a, sT3, sT2, 5)
        a(f's_mul_i32 s{sT4}, s{sT3}, 5')
        a(f's_sub_u32 s{sT4}, s{sT2}, s{sT4}')
        a(f's_mul_i32 s{sT5}, s{sT1}, 5')
        a(f's_add_u32 s{sT4}, s{sT4}, s{sT5}')
        a(f's_mul_i32 s{sW2S+i}, s{sT3}, 40960')
        a(f's_lshl_b32 s{sT5}, s{sT4}, 6')
        a(f's_add_u32 s{sW2S+i}, s{sW2S+i}, s{sT5}')
        a(f's_add_u32 s{sT3}, s{sT3}, 40')
        a(f's_mul_i32 s{sT3}, s{sT3}, 5')
        for jj in range(2):
            d = sW2D + 2 * i + jj
            a(f's_lshl_b32 s{sT5}, s{sT4}, 1')
            if jj:
                a(f's_add_u32 s{sT5}, s{sT5}, 1')
            div_small(a, d, sT5, 5)
            a(f's_mul_i32 s{d}, s{d}, 435')
            a(f's_add_u32 s{d}, s{d}, s{sT5}')
            a(f's_add_u32 s{d}, s{d}, s{sT3}')
            a(f's_lshl_b32 s{d}, s{d}, 10')
            a(f's_add_u32 s{d}, s{d}, {WS_WT}')
        if i == 1:
            a(f's_cmp_ge_u32 s{sT2}, 240')
            a(f's_cselect_b32 s{sW2S+1}, {OOB}, s{sW2S+1}')
            a(f's_cselect_b32 s{sW2D+2}, {OOB}, s{sW2D+2}')
            a(f's_cselect_b32 s{sW2D+3}, {OOB}, s{sW2D+3}')
    CD = [sCD, sCD + 1, sCD2, sCD2 + 1]
    for i in range(2):
        a(f's_add_u32 s{sT2}, s{sT0}, {160*i}')
        div_small(a, sT3, sT2, 10)
        a(f's_mul_i32 s{sT4}, s{sT3}, 10')
        a(f's_sub_u32 s{sT4}, s{sT2}, s{sT4}')
        a(f's_mul_i32 s{sT5}, s{sT1}, 10')
        a(f's_add_u32 s{sT4}, s{sT4}, s{sT5}')
        a(f's_mul_i32 s{sCS+i}, s{sT4}, 20480')
        a(f's_lshl_b32 s{sT5}, s{sT3}, 6')
        a(f's_add_u32 s{sCS+i}, s{sCS+i}, s{sT5}')
        d0, d1 = CD[2*i], CD[2*i+1]
        div_small(a, d0, sT4, 5)
        a(f's_mul_i32 s{d0}, s{d0}, 435')
        a(f's_add_u32 s{d0}, s{d0}, s{sT4}')
        a(f's_mul_i32 s{sT5}, s{sT3}, 10')
        a(f's_add_u32 s{d0}, s{d0}, s{sT5}')
        a(f's_lshl_b32 s{d0}, s{d0}, 10')
        a(f's_add_u32 s{d0}, s{d0}, {WS_WT}')
        a(f's_add_u32 s{d1}, s{d0}, 5120')
        if i == 1:
            a(f's_cmp_ge_u32 s{sT2}, 200')
            a(f's_cselect_b32 s{sCS+1}, {OOB}, s{sCS+1}')
            a(f's_cselect_b32 s{d0}, {OOB}, s{d0}')
            a(f's_cselect_b32 s{d1}, {OOB}, s{d1}')
    a(f'v_lshrrev_b32 v2, 2, v{vL}')
    a(f's_movk_i32 s{sT5}, 1280')
    a(f'v_mul_lo_u32 v2, v2, s{sT5}')
    a(f'v_and_b32 v3, 3, v{vL}')
    a(f'v_lshl_add_u32 v{vW2A}, v3, 4, v2')
    a(f'v_add_u32 v{vCA}, 20480, v{vW2A}')
    a(f'v_subrev_u32 v{vCA}, 1024, v{vCA}')
    a(f'v_lshlrev_b32 v{vL16}, 4, v{vL}')
    a(f's_lshl_b32 s{sPB}, s{sW}, 13')
    a(f's_lshl_b32 s{sT0}, s{sC}, 7')
    a(f's_lshl_b32 s{sT1}, s{sB}, 4')
    a(f's_add_u32 s{sT0}, s{sT0}, s{sT1}')
    a(f's_lshl_b32 s{sT1}, s{sW}, 2')
    a(f's_add_u32 s{sT0}, s{sT0}, s{sT1}')
    a(f's_mul_i32 s{sGR}, s{sT0}, 1280')
    a(f's_cmp_ge_u32 s{sB}, 8')
    a(f's_cselect_b32 s{sGR}, {OOB}, s{sGR}')
    a(f's_add_u32 s{sGR2}, s{sGR}, 4096')
    thr = [None, 16, 32, 48, None]
    add = [0, 64, 48, 32, 16]
    for i in range(5):
        r = GW + 4 * i
        a(f'v_add_u32 v{r}, {add[i]}, v{vL}') if add[i] else a(f'v_mov_b32 v{r}, v{vL}')
        if thr[i]:
            a(f'v_cmp_le_u32 vcc, {thr[i]}, v{vL}')
            a(f'v_subrev_u32 v2, 80, v{r}')
            a('s_nop 0')
            a(f'v_cndmask_b32 v{r}, v{r}, v2, vcc')
        a(f'v_lshlrev_b32 v{r}, 4, v{r}')

    bgA = a.lines
    a = Asm()
    a('v_lshlrev_b32 v3, 16, v61')
    a('v_lshlrev_b32 v4, 16, v62')
    a('v_lshlrev_b32 v5, 16, v63')
    a('v_mul_f32 v5, 0x3fb8aa3b, v5')
    a('v_exp_f32 v5, v5')
    a('s_nop 0')
    a('v_cvt_pk_bf16_f32 v5, v5, v5')
    a('v_lshlrev_b32 v5, 16, v5')
    a(f'v_mul_f32 v{TRE}, v5, v3')
    a(f'v_mul_f32 v{TRE+1}, v5, v4')
    a(f'v_mul_f32 v{TRE}, 0x3fb8aa3b, v{TRE}')
    a(f'v_exp_f32 v{TRE}, v{TRE}')
    a(f'v_mul_f32 v{TRE+1}, 0.15915494, v{TRE+1}')
    a(f'v_rndne_f32 v{TIM}, v{TRE+1}')
    a(f'v_sub_f32 v{TRE+1}, v{TRE+1}, v{TIM}')
    a(f'v_cos_f32 v{TIM}, v{TRE+1}')
    a(f'v_sin_f32 v{TIM+1}, v{TRE+1}')
    a('s_nop 0')
    a(f'v_mul_f32 v{LAM}, v{TRE}, v{TIM}')
    a(f'v_mul_f32 v{LAM+1}, v{TRE}, v{TIM+1}')
    a(f'v_add_f32 v{TRE}, -1.0, v{LAM}')
    a(f'v_mul_f32 v{TIM}, v3, v3')
    a(f'v_fmac_f32 v{TIM}, v4, v4')
    a(f'v_rcp_f32 v{TIM}, v{TIM}')
    a(f'v_mul_f32 v{COEF}, v{TRE}, v3')
    a(f'v_fmac_f32 v{COEF}, v{LAM+1}, v4')
    a(f'v_mul_f32 v{COEF+1}, v{LAM+1}, v3')
    a(f'v_fma_f32 v{COEF+1}, -v{TRE}, v4, v{COEF+1}')
    a(f'v_add_f32 v{TIM}, v{TIM}, v{TIM}')
    a(f'v_mul_f32 v{COEF}, v{COEF}, v{TIM}')
    a(f'v_mul_f32 v{COEF+1}, v{COEF+1}, v{TIM}')
    t0, t1 = G, G + 2
    csq(a, t0, t0 + 1, LAM, LAM + 1)
    csq(a, t1, t1 + 1, t0, t0 + 1)
    csq(a, t0, t0 + 1, t1, t1 + 1)
    csq(a, L16, L16 + 1, t0, t0 + 1)
    L32, L64 = G + 4, G + 6
    csq(a, L32, L32 + 1, L16, L16 + 1)
    csq(a, L64, L64 + 1, L32, L32 + 1)
    csq(a, L128, L128 + 1, L64, L64 + 1)
    csq(a, L256, L256 + 1, L128, L128 + 1)
    a(f'v_cmp_lt_u32 vcc, 31, v{vL}')
    a(f's_cmp_eq_u32 s{sWT}, 1')
    a(f's_cselect_b64 s[{sM0}:{sM0+1}], -1, 0')
    a(f'v_mov_b32 v{t0}, 1.0')
    a(f'v_mov_b32 v{t0+1}, 0')
    a(f'v_cndmask_b32 v{t1}, v{t0}, v{L32}, vcc')
    a(f'v_cndmask_b32 v{t1+1}, v{t0+1}, v{L32+1}, vcc')
    a(f'v_cndmask_b32 v{t0}, v{t0}, v{L64}, s[{sM0}:{sM0+1}]')
    a(f'v_cndmask_b32 v{t0+1}, v{t0+1}, v{L64+1}, s[{sM0}:{sM0+1}]')
    cmul_s(a, WRE, WIM, t0, t0 + 1, t1, t1 + 1)
    cmul_s(a, WRE + 1, WIM + 1, WRE, WIM, L16, L16 + 1)
    a(f'v_and_b32 v2, 31, v{vL}')
    a('v_lshrrev_b32 v3, 2, v2')
    a('v_lshlrev_b32 v3, 4, v3')
    a('v_and_b32 v2, 3, v2')
    a('v_lshl_add_u32 v3, v2, 2, v3')
    a(f'v_lshrrev_b32 v2, 5, v{vL}')
    a('v_lshl_add_u32 v3, v2, 11, v3')
    a(f's_lshl_b32 s{sT0}, s{sW}, 13')
    a(f's_add_u32 s{sT0}, s{sT0}, {TB0}')
    for u in range(16):
        a(f'v_xor_b32 v{TW+u}, {(u << 7) | ((u >> 1) << 4)}, v3')
        a(f'v_add_u32 v{TW+u}, s{sT0}, v{TW+u}')
    a(f's_lshl_b32 s{sFLAG}, s{sC}, 4')
    a(f's_add_u32 s{sFLAG}, s{sFLAG}, s{sB}')
    a(f's_lshl_b32 s{sFLAG}, s{sFLAG}, 7')
    a(f's_add_u32 s{sFLAG}, s{sFLAG}, {WS_FLAG}')
    bgB = a.lines
    a = fg

    def reads(stage):
        slot = stage % R
        st_, off = slot // 2, (slot % 2) * SLOT
        rs = stage & 1
        out = []
        for kk in range(4):
            for m in range(2):
                out.append(f'ds_read_b128 {areg(fA(rs, m, kk), 4)}, v{vRA[st_]+kk} offset:{off + 4096*m}')
            for part in range(2):
                out.append(f'ds_read_b128 {areg(fB(rs, part, kk), 4)}, v{vRB[st_]+kk} offset:{off + 4096*part}')
        return out

    def mfmas(stage, order='k'):
        rs = stage & 1
        if order == 'k':
            seq = [(kk, m, part) for kk in range(4) for m in range(2) for part in range(2)]
        else:
            seq = [(kk, m, part) for m in range(2) for kk in range(4) for part in range(2)]
        out = []
        for kk, m, part in seq:
            c = '0' if (stage == 0 and kk == 0) else vreg(acc(m, part), 16)
            out.append(f'v_mfma_f32_32x32x16_bf16 {vreg(acc(m, part), 16)}, {areg(fA(rs, m, kk), 4)}, {areg(fB(rs, part, kk), 4)}, {c}')
        return out

    def side_loads(which):
        out = []
        if which == 'w2':
            out.append(('s', f's_mov_b32 s{rT0}, s{sW2}'))
            out.append(('s', f's_mov_b32 s{rT0+1}, s{sW2+1}'))
            out.append(('s', f's_mov_b32 s{rT0+2}, {W2_BYTES}'))
            out.append(('s', f's_mov_b32 s{rT0+3}, 0x20000'))
            for i in range(2):
                out.append(('s', f's_add_u32 m0, s{sPB}, {PB + 2048*i}'))
                out.append(('s', 's_nop 0'))
                out.append(('v', f'buffer_load_dwordx4 v{vW2A}, s[{rT0}:{rT0+3}], s{sW2S+i} offen lds', 'prep'))
                out.append(('v', f'buffer_load_dwordx4 v{vCA}, s[{rT0}:{rT0+3}], s{sW2S+i} offen offset:1024 lds', 'prep'))
        if which == 'c':
            for ptr, r, o in ((sCRE, rT0, 0), (sCIM, rT1, 1024)):
                out.append(('s', f's_mov_b32 s{r}, s{ptr}'))
                out.append(('s', f's_mov_b32 s{r+1}, s{ptr+1}'))
                out.append(('s', f's_mov_b32 s{r+2}, {B_BYTES}'))
                out.append(('s', f's_mov_b32 s{r+3}, 0x20000'))
                for i in range(2):
                    out.append(('s', f's_add_u32 m0, s{sPB}, {PB + 4096 + 2048*i + o}'))
                    out.append(('s', 's_nop 0'))
                    out.append(('v', f'buffer_load_dwordx4 v{vW2A}, s[{r}:{r+3}], s{sCS+i} offen lds', 'prep'))
        if which == 'gate':
            out.append(('s', f's_mov_b32 s{rT0}, s{sGW}'))
            out.append(('s', f's_mov_b32 s{rT0+1}, s{sGW+1}'))
            out.append(('s', f's_mov_b32 s{rT0+2}, 1280'))
            out.append(('s', f's_mov_b32 s{rT0+3}, 0x20000'))
            for i in range(5):
                out.append(('v', f'buffer_load_dwordx4 {vreg(GW+4*i, 4)}, v{GW+4*i}, s[{rT0}:{rT0+3}], 0 offen', 'prep'))
            for i in range(5):
                so, off = (sGR, 1024 * i) if i < 4 else (sGR2, 0)
                out.append(('v', f'buffer_load_dwordx4 {vreg(GX+4*i, 4)}, v{vL16}, s[{rX}:{rX+3}], s{so} offen offset:{off}', 'prep'))
        return out

    a.wait_vm('st0')
    a('s_barrier')
    stamp(a, 2)
    emit(a, reads(0))
    def glue(lines):
        out = []
        for ln in lines:
            if out and ln.startswith('s_cselect'):
                out[-1].append(ln)
            else:
                out.append([ln])
        return out

    def deal(groups, nslots):
        res = [[] for _ in range(nslots)]
        for k, g in enumerate(groups):
            res[k * nslots // len(groups)].extend(g)
        return res
    bgslots = deal(glue(bgA), 14 * 5) + deal(glue(bgB), 14 * 4)
    for s in range(NST):
        a.comment(f'SSM stage {s}')
        a('s_waitcnt lgkmcnt(0)')
        mm = mfmas(s, 'k' if s < NST - 1 else 'm')
        slots = {}
        if s < 9:
            for i in range(14):
                slots.setdefault(i, []).extend(bgslots[14 * s + i])
        if s + 1 < NST:
            a(mm[0])
            a(mm[1])
            mm = mm[2:]
            a.wait_vm(f'st{s+1}')
            a('s_barrier')
            stage_stamp(a, s)
            rd = reads(s + 1)
            spread([rd[2*i:2*i+2] for i in range(8)], range(8), slots)
            if s + R < NST:
                spread(vm_groups(dma(s + R)), OPT['ssm_dma_pos'], slots)
            if s == 5:
                spread(vm_groups(side_loads('w2') + side_loads('c')), [0, 2, 4, 6, 8, 10, 12, 13], slots)
            if s == 6:
                spread(vm_groups(side_loads('gate')), [0, 1, 3, 4, 6, 7, 9, 10, 12, 13], slots)
            if s == 7:
                spread([nonce_load(a, NON)], [2], slots)
        emit(a, sched(mm, slots))
    stamp(a, 3)

    a('s_nop 7')
    a('s_nop 3')
    for u in range(1, 16):
        pr = ure(0) if u == 1 else SRE
        pi = uim(0) if u == 1 else SIM
        a(pk_fma(TRE, LAM, pi, ure(u), b0=1, neg0='both'))
        a(pk_fma(TIM, LAM, pr, uim(u), b0=1))
        a(pk_fma(SRE, LAM, pr, TRE, b0=0))
        a(pk_fma(SIM, LAM, pi, TIM, b0=0))
    a(f'v_and_b32 v2, 31, v{vL}')
    a(f's_lshl_b32 s{sT0}, s{sWC}, 5')
    a(f'v_add_u32 v2, s{sT0}, v2')
    a('v_lshlrev_b32 v9, 4, v2')
    a('v_lshlrev_b32 v2, 3, v2')
    a(f'v_add_u32 v2, {AGB}, v2')
    a(f'v_lshrrev_b32 v3, 5, v{vL}')
    a('v_lshl_add_u32 v3, v3, 10, v2')
    a(f's_lshl_b32 s{sT0}, s{sWT}, 11')
    a(f'v_add_u32 v3, s{sT0}, v3')
    a(f'ds_write2_b32 v3, v{SRE}, v{SIM} offset0:0 offset1:1')
    a(f'ds_write2_b32 v3, v{SRE+1}, v{SIM+1} offset0:128 offset1:129')
    a(f's_cmp_lg_u32 s{sW}, 0')
    a('s_cbranch_scc1 L_ssm_no_nonce2')
    nonce_wait(a, NON, 'ssm')
    a(f'v_mov_b32 v7, {AGB + 4096}')
    a('s_mov_b64 exec, 1')
    a(f'ds_write_b32 v7, v{NON}')
    a('s_mov_b64 exec, -1')
    a.label('L_ssm_no_nonce2')
    a('s_waitcnt lgkmcnt(0)')
    a('s_barrier')
    a(f'v_mov_b32 v7, {AGB + 4096}')
    a('ds_read_b32 v8, v7')
    for s in range(8):
        a(f'ds_read_b64 {pair(G+2*s)}, v2 offset:{512*s}')
    a('s_waitcnt lgkmcnt(0)')
    a(f'v_mov_b32 v{P}, v{G}')
    a(f'v_mov_b32 v{P+1}, v{G+1}')
    for s in range(1, 8):
        a(pk_fma(TRE, L16, P + 2*(s-1), G + 2*s, b0=0))
        a(pk_fma(P + 2*s, L16, P + 2*(s-1), TRE, b0=1, swap1=True, neg0='lo'))
    a(f'v_mov_b32 v20, v{P+14}')
    a('v_mov_b32 v21, v8')
    a(f'v_mov_b32 v22, v{P+15}')
    a('v_mov_b32 v23, v8')
    a(f's_lshl_b32 s{sT0}, s{sB}, 4')
    a(f's_add_u32 s{sT0}, s{sT0}, s{sC}')
    a(f's_lshl_b32 s{sT0}, s{sT0}, 10')
    a(f's_add_u32 s{sT0}, s{sT0}, {WS_AGG}')
    a(f's_cmp_lg_u32 s{sWT}, 0')
    a('s_cbranch_scc1 L_ssm_no_pub')
    a('s_mov_b32 exec_hi, 0')
    a(f'buffer_store_dwordx4 v[20:23], v9, s[{rWS}:{rWS+3}], s{sT0} offen sc0 sc1')
    a('s_mov_b64 exec, -1')
    a.label('L_ssm_no_pub')
    a(f'v_readfirstlane_b32 s{sNONCE}, v8')
    stamp(a, 4)

    a(f's_lshl_b32 s{sT0}, s{sB}, 14')
    a(f's_add_u32 s{sT0}, s{sT0}, {WS_AGG}')
    a(f's_add_u32 s{rT1}, s{sWS}, s{sT0}')
    a(f's_addc_u32 s{rT1+1}, s{sWS+1}, 0')
    a(f's_mov_b32 s{rT1+2}, 16384')
    a(f's_mov_b32 s{rT1+3}, 0x20000')
    LA = 10
    a(f'v_lshrrev_b32 v2, 5, v{vL}')
    a(f's_sub_u32 s{sT1}, s{sC}, 1')
    a(f'v_sub_u32 v2, s{sT1}, v2')
    a('v_lshl_add_u32 v9, v2, 10, v9')
    for i in range(8):
        a(f'v_subrev_u32 v{LA+i}, {2048*i}, v9')
    a(f'v_mov_b32 v9, v2')
    for i in range(8):
        a.vmem(f'buffer_load_dwordx4 {vreg(GR+4*i, 4)}, v{LA+i}, s[{rT1}:{rT1+3}], 0 offen sc0 sc1', 'poll')
    a(f'v_cmp_lt_u32 vcc, 31, v{vL}')
    a(f'v_mov_b32 v{TRE}, 0')
    a('s_nop 0')
    PS = G
    for comp in range(2):
        a(f'v_cndmask_b32 v{TIM}, v{TRE}, v{P+2+comp}, vcc')
        a(f'v_cndmask_b32 v{TIM+1}, v{P+6+comp}, v{P+10+comp}, vcc')
        a(f'v_cndmask_b32 v{PS+comp}, v{TIM}, v{TIM+1}, s[{sM0}:{sM0+1}]')
        a(f'v_cndmask_b32 v{TIM}, v{P+comp}, v{P+4+comp}, vcc')
        a(f'v_cndmask_b32 v{TIM+1}, v{P+8+comp}, v{P+12+comp}, vcc')
        a(f'v_cndmask_b32 v{PS+2+comp}, v{TIM}, v{TIM+1}, s[{sM0}:{sM0+1}]')
    CPR, CPI, CWR, CWI = G + 4, G + 6, G + 8, G + 10
    for sg_ in range(2):
        cmul_s(a, CPR + sg_, CPI + sg_, COEF, COEF + 1, PS + 2*sg_, PS + 2*sg_ + 1)
        cmul_s(a, CWR + sg_, CWI + sg_, COEF, COEF + 1, WRE + sg_, WIM + sg_)
    for u in range(16):
        a(pk_mul(TRE, COEF, uim(u), b0=1))
        a(pk_mul(TIM, COEF, ure(u), b0=1))
        a(f'v_pk_fma_f32 {pair(ure(u))}, {pair(COEF)}, {pair(ure(u))}, {pair(TRE)} op_sel:[0,0,0] op_sel_hi:[0,1,1] neg_lo:[0,0,1] neg_hi:[0,0,1]')
        a(pk_fma(uim(u), COEF, uim(u), TIM, b0=0))

    a.wait_vm('prep')
    T = P
    a(f'v_lshrrev_b32 v4, 5, v{vL}')
    a('v_lshlrev_b32 v4, 4, v4')
    a(f'v_bfe_u32 v5, v{vL}, 4, 1')
    a('v_lshl_add_u32 v4, v5, 2, v4')
    a(f'v_bfe_u32 v5, v{vL}, 2, 2')
    a('v_add_u32 v4, v4, v5')
    a('v_lshlrev_b32 v4, 6, v4')
    a(f'v_and_b32 v5, 3, v{vL}')
    a('v_lshl_add_u32 v4, v5, 3, v4')
    a(f'v_add_u32 v4, s{sPB}, v4')
    for i in range(2):
        for jj in range(2):
            o = T + 8 * i + 4 * jj
            a(f'ds_read_b64_tr_b16 {vreg(o, 2)}, v4 offset:{PB + 2048*i + 32*jj}')
            a(f'ds_read_b64_tr_b16 {vreg(o+2, 2)}, v4 offset:{PB + 2048*i + 32*jj + 512}')
    a(f'v_and_b32 v5, 15, v{vL}')
    a('v_lshlrev_b32 v5, 6, v5')
    a(f'v_lshrrev_b32 v6, 4, v{vL}')
    a('v_lshl_add_u32 v5, v6, 3, v5')
    a(f'v_add_u32 v5, s{sPB}, v5')
    CR = 24
    for i in range(2):
        for k2 in range(2):
            o = CR + 8 * i + 4 * k2
            a(f'ds_read_b64 {vreg(o, 2)}, v5 offset:{PB + 4096 + 2048*i + 32*k2}')
            a(f'ds_read_b64 {vreg(o+2, 2)}, v5 offset:{PB + 4096 + 2048*i + 32*k2 + 1024}')
    a('s_waitcnt lgkmcnt(8)')
    for i in range(2):
        for jj in range(2):
            a.vmem(f'buffer_store_dwordx4 {vreg(T + 8*i + 4*jj, 4)}, v{vL16}, s[{rWS}:{rWS+3}], s{sW2D + 2*i + jj} offen{SC}', 'pst')
    a(f's_mov_b32 s{sT0}, 0x05040100')
    a(f's_mov_b32 s{sT1}, 0x07060302')
    a('s_waitcnt lgkmcnt(0)')
    CO = G + 12
    CO2 = 2
    for n_, (i, k2) in enumerate([(0, 0), (0, 1), (1, 0), (1, 1)]):
        o = CR + 8 * i + 4 * k2
        d = CO if n_ % 2 == 0 else CO2
        a(f'v_perm_b32 v{d}, v{o+2}, v{o}, s{sT0}')
        a(f'v_perm_b32 v{d+1}, v{o+2}, v{o}, s{sT1}')
        a(f'v_perm_b32 v{d+2}, v{o+3}, v{o+1}, s{sT0}')
        a(f'v_perm_b32 v{d+3}, v{o+3}, v{o+1}, s{sT1}')
        a.vmem(f'buffer_store_dwordx4 {vreg(d, 4)}, v{vL16}, s[{rWS}:{rWS+3}], s{CD[2*i + k2]} offen{SC}', 'pst')
    a(f's_cmp_ge_u32 s{sB}, 8')
    a('s_cbranch_scc1 L_ssm_no_gate')
    a(f's_mov_b32 s{sHI}, 0xffff0000')
    a(f's_mov_b32 s{sT0}, 0x3f803f80')
    a(f's_mov_b32 s{sT1}, 0x0000ffff')
    U = 18
    for i in range(5):
        a(f'v_mov_b32 v{U+8+i}, 0')
    for i in range(5):
        for dp in range(2):
            xs = [GX + 4 * i + 2 * dp + e for e in range(2)]
            ws = [GW + 4 * i + 2 * dp + e for e in range(2)]
            for e in range(2):
                a(f'v_and_b32 v{U+2*e}, s{sT1}, v{ws[e]}')
                a(f'v_and_b32 v{U+2*e+1}, s{sHI}, v{ws[e]}')
            for e in range(2):
                a(f'v_dot2_f32_bf16 v{U+4+2*e}, v{xs[e]}, v{U+2*e}, 0')
                a(f'v_dot2_f32_bf16 v{U+4+2*e+1}, v{xs[e]}, v{U+2*e+1}, 0')
            a('s_nop 1')
            a(f'v_cvt_pk_bf16_f32 v{U}, v{U+4}, v{U+5}')
            a(f'v_cvt_pk_bf16_f32 v{U+1}, v{U+6}, v{U+7}')
            a(f'v_dot2_f32_bf16 v{U+8+i}, v{U}, s{sT0}, v{U+8+i}')
            a(f'v_dot2_f32_bf16 v{U+8+i}, v{U+1}, s{sT0}, v{U+8+i}')
    S = [U + 8 + i for i in range(5)]
    Z = [U + 16 + j for j in range(4)]
    a('s_nop 2')
    for j, th in enumerate((16, 32, 48)):
        a(f'v_cmp_gt_u32 vcc, {th}, v{vL}')
        a(f'v_mov_b32 v{U}, 0')
        a('s_nop 0')
        a(f'v_cndmask_b32 v{U+1}, v{U}, v{S[j+1]}, vcc')
        a(f'v_cndmask_b32 v{U+2}, v{S[j+1]}, v{U}, vcc')
        if j == 0:
            a(f'v_add_f32 v{Z[0]}, v{S[0]}, v{U+1}')
        else:
            a(f'v_add_f32 v{Z[j]}, v{Z[j]}, v{U+1}')
        a(f'v_mov_b32 v{Z[j+1]}, v{U+2}')
    a(f'v_add_f32 v{Z[3]}, v{Z[3]}, v{S[4]}')
    for sh in (1, 2, 4, 8):
        for z in Z:
            a(f'v_add_f32_dpp v{z}, v{z}, v{z} row_ror:{sh} row_mask:0xf bank_mask:0xf')
    for z in Z:
        a(f'v_add_f32_dpp v{z}, v{z}, v{z} row_bcast:15 row_mask:0xa bank_mask:0xf')
    for z in Z:
        a(f'v_add_f32_dpp v{z}, v{z}, v{z} row_bcast:31 row_mask:0xc bank_mask:0xf')
    a('s_nop 0')
    for j, z in enumerate(Z):
        a(f'v_readlane_b32 s{sT2+j}, v{z}, 63')
    a('s_nop 3')
    for j in range(4):
        a(f'v_writelane_b32 v{U}, s{sT2+j}, {j}')
    z = U
    a('s_nop 0')
    a(f'v_cvt_pk_bf16_f32 v{z}, v{z}, v{z}')
    a(f'v_lshlrev_b32 v{z}, 16, v{z}')
    a(f'v_mul_f32 v{z}, 0xbfb8aa3b, v{z}')
    a(f'v_exp_f32 v{z}, v{z}')
    a('s_nop 0')
    a(f'v_add_f32 v{z}, 1.0, v{z}')
    a(f'v_rcp_f32 v{z}, v{z}')
    a('s_nop 0')
    a(f'v_cvt_pk_bf16_f32 v{z}, v{z}, v{z}')
    a(f'v_lshlrev_b32 v{z}, 16, v{z}')
    a(f's_lshl_b32 s{sT0}, s{sC}, 7')
    a(f's_lshl_b32 s{sT1}, s{sB}, 4')
    a(f's_add_u32 s{sT0}, s{sT0}, s{sT1}')
    a(f's_lshl_b32 s{sT1}, s{sW}, 2')
    a(f's_add_u32 s{sT0}, s{sT0}, s{sT1}')
    a(f's_lshl_b32 s{sT0}, s{sT0}, 2')
    a(f's_add_u32 s{sT0}, s{sT0}, {WS_G}')
    a(f'v_lshlrev_b32 v4, 2, v{vL}')
    a('s_mov_b64 exec, 15')
    a(f'buffer_store_dword v{z}, v4, s[{rWS}:{rWS+3}], s{sT0} offen{SC}')
    a('s_mov_b64 exec, -1')
    a.label('L_ssm_no_gate')
    stamp(a, 5)

    a(f's_mov_b32 s{sT2}, 0')
    a.wait_vm('poll')
    a('s_branch L_ssm_check')
    a.label('L_ssm_poll')
    for i in range(8):
        a(f'buffer_load_dwordx4 {vreg(GR+4*i, 4)}, v{LA+i}, s[{rT1}:{rT1+3}], 0 offen sc0 sc1')
    a('s_waitcnt vmcnt(0)')
    a.label('L_ssm_check')
    a.vm = []
    a(f's_mov_b64 s[{sM1}:{sM1+1}], -1')
    for i in range(8):
        a(f'v_cmp_eq_u32 vcc, s{sNONCE}, v{GR+4*i+1}')
        a(f'v_cmp_eq_u32 s[{sT3}:{sT4}], s{sNONCE}, v{GR+4*i+3}')
        a(f's_and_b64 vcc, vcc, s[{sT3}:{sT4}]')
        a(f'v_cmp_gt_i32 s[{sT3}:{sT4}], {2*i}, v9')
        a(f's_or_b64 vcc, vcc, s[{sT3}:{sT4}]')
        a(f's_and_b64 s[{sM1}:{sM1+1}], s[{sM1}:{sM1+1}], vcc')
    a(f's_cmp_eq_u64 s[{sM1}:{sM1+1}], -1')
    a('s_cbranch_scc1 L_ssm_poll_done')
    a(f's_add_u32 s{sT2}, s{sT2}, 1')
    a(f's_cmp_lt_u32 s{sT2}, 0x40000')
    a('s_cbranch_scc0 L_ssm_poll_done')
    a('s_sleep 1')
    a('s_branch L_ssm_poll')
    a.label('L_ssm_poll_done')
    stamp(a, 6)
    a(f'v_mov_b32 v{SRE}, v{GR+28}')
    a(f'v_mov_b32 v{SRE+1}, v{GR+30}')
    for i in range(6, -1, -1):
        a(f'v_mov_b32 v{TIM}, v{GR+4*i}')
        a(f'v_mov_b32 v{TIM+1}, v{GR+4*i+2}')
        a(pk_fma(TRE, L256, SRE, TIM, b0=0))
        a(pk_fma(SRE, L256, SRE, TRE, b0=1, swap1=True, neg0='lo'))
    cmul_s(a, TRE, TRE + 1, L128, L128 + 1, SRE, SRE + 1)
    a(f'v_cmp_lt_u32 vcc, 31, v{vL}')
    a('s_nop 1')
    a(f'v_cndmask_b32 v{SRE}, v{SRE}, v{TRE}, vcc')
    a(f'v_cndmask_b32 v{SRE+1}, v{SRE+1}, v{TRE+1}, vcc')
    a(f'v_mov_b32 v{TRE}, v{SRE}')
    a(f'v_mov_b32 v{TRE+1}, v{SRE+1}')
    a('s_nop 1')
    a(f'v_permlane32_swap_b32 v{SRE}, v{TRE}')
    a(f'v_permlane32_swap_b32 v{SRE+1}, v{TRE+1}')
    a('s_nop 1')
    a(f'v_add_f32 v{SRE}, v{SRE}, v{TRE}')
    a(f'v_add_f32 v{SRE+1}, v{SRE+1}, v{TRE+1}')
    HR, HI = TRE, TIM
    a(pk_fma(HR, CWR, SRE, CPR, b1=0))
    a(pk_fma(HI, CWR, SRE, CPI, b1=1))
    a(pk_fma(HR, CWI, SRE, HR, b1=1, neg0='both'))
    a(pk_fma(HI, CWI, SRE, HI, b1=0))
    D0 = GR

    def cv(v):
        d = D0 + 2 * v
        a(f'v_cvt_pk_bf16_f32 v{d}, v{ure(v)}, -v{uim(v)}')
        a(f'v_cvt_pk_bf16_f32 v{d+1}, v{ure(v)+1}, -v{uim(v)+1}')
        a(f'ds_write2st64_b32 v{TW+v}, v{d}, v{d+1} offset0:0 offset1:16')
    for u in range(16):
        pr = HR if u == 0 else ure(u - 1)
        pi = HI if u == 0 else uim(u - 1)
        a(pk_fma(ure(u), LAM, pi, ure(u), b0=1, neg0='both'))
        a(pk_fma(uim(u), LAM, pr, uim(u), b0=1))
        a(pk_fma(ure(u), LAM, pr, ure(u), b0=0))
        a(pk_fma(uim(u), LAM, pi, uim(u), b0=0))
        if u:
            cv(u - 1)
    cv(15)
    a(f'v_and_b32 v2, 15, v{vL}')
    a(f'v_lshrrev_b32 v3, 4, v{vL}')
    a('v_lshrrev_b32 v4, 1, v2')
    a('v_xor_b32 v3, v3, v4')
    a('v_lshlrev_b32 v3, 4, v3')
    a('v_lshl_add_u32 v3, v2, 7, v3')
    a(f's_lshl_b32 s{sT0}, s{sW}, 13')
    a(f's_add_u32 s{sT0}, s{sT0}, {TB0}')
    a(f'v_add_u32 v3, s{sT0}, v3')
    a('v_xor_b32 v4, 64, v3')
    rowoff = [0, 4096, 2048, 6144]
    for kp in range(2):
        for tb in range(4):
            a(f'ds_read_b128 {vreg(ACC + 16*kp + 4*tb, 4)}, v{3+kp} offset:{rowoff[tb]}')
    a(f's_lshl_b32 s{sT0}, s{sC}, 1')
    a(f's_add_u32 s{sT0}, s{sT0}, s{sWT}')
    a(f's_mul_i32 s{sT0}, s{sT0}, 88')
    a(f's_lshl_b32 s{sT1}, s{sB}, 2')
    a(f's_add_u32 s{sT0}, s{sT0}, s{sT1}')
    a(f's_lshl_b32 s{sT1}, s{sWC}, 1')
    a(f's_add_u32 s{sT0}, s{sT0}, s{sT1}')
    a(f's_lshl_b32 s{sT0}, s{sT0}, 12')
    a(f's_add_u32 s{sT1}, s{sT0}, 4096')
    for kp in range(2):
        for tb in range(4):
            a(f's_waitcnt lgkmcnt({7 - (4*kp + tb)})')
            a(f'buffer_store_dwordx4 {vreg(ACC + 16*kp + 4*tb, 4)}, v{vL16}, s[{rWS}:{rWS+3}], s{sT0 + kp} offen offset:{1024*tb}{SC}')
    stamp(a, 7)
    signal_done(a, 'ssm')
    if OPT['diag']:
        a('v_mov_b32 v127, v255')
        a('v_mov_b32 v126, v254')
    a('s_branch L_phase2')


def gen_ffn(a):
    R = 3
    SLOT = 49152
    NST = 10
    vL = 1
    vX, vW = 10, 14
    vRX = [22 + 4 * s for s in range(R)]
    vRW = [34 + 4 * s for s in range(R)]
    NON = 46
    ACC = 128
    PK = 64

    def acc(mf, nt):
        return ACC + 16 * (2 * mf + nt)

    def fX(s, nt, kk):
        return 96 * s + 16 * nt + 4 * kk

    def fW(s, mf, kk):
        return 96 * s + 32 + 16 * mf + 4 * kk

    DV[:] = [127, 126]
    a(f's_lshr_b32 s{sWT}, s{sW}, 1')
    a(f's_and_b32 s{sWC}, s{sW}, 1')
    srd(a, rX, sX, X_BYTES)
    srd(a, rB, sW1, W1_BYTES)
    a(f'v_lshrrev_b32 v2, 4, v{vL}')
    a(f'v_and_b32 v3, 7, v{vL}')
    a('v_xor_b32 v3, v2, v3')
    a('v_lshlrev_b32 v3, 4, v3')
    a('v_xor_b32 v4, 64, v3')
    a(f's_lshl_b32 s{sT0}, s{sC}, 7')
    a(f's_lshl_b32 s{sT1}, s{sW}, 5')
    a(f's_add_u32 s{sT0}, s{sT0}, s{sT1}')
    a(f'v_lshrrev_b32 v5, 3, v{vL}')
    a(f'v_add_u32 v5, s{sT0}, v5')
    a(f's_movk_i32 s{sT2}, 1280')
    a(f'v_mul_lo_u32 v5, v5, s{sT2}')
    for i in range(4):
        a(f'v_add_u32 v{vX+i}, v5, v{3 + (i & 1)}')
        if i:
            a(f'v_add_u32 v{vX+i}, {9216*i}, v{vX+i}')
    a(f'v_lshrrev_b32 v2, 5, v{vL}')
    a(f's_lshl_b32 s{sT0}, s{sW}, 4')
    a(f'v_add_u32 v5, s{sT0}, v2')
    a(f's_movk_i32 s{sT2}, 3072')
    a(f'v_mul_lo_u32 v5, v5, s{sT2}')
    a(f's_lshl_b32 s{sT0}, s{sB}, 9')
    a(f'v_add_u32 v5, s{sT0}, v5')
    a(f'v_and_b32 v6, 31, v{vL}')
    a('v_lshlrev_b32 v7, 2, v2')
    a('v_xor_b32 v6, v6, v7')
    a('v_lshlrev_b32 v6, 4, v6')
    a('v_xor_b32 v7, 128, v6')
    for i in range(8):
        a(f'v_add_u32 v{vW+i}, v5, v{6 + (i & 1)}')
        off = 6144 * i - 1024 * (i & 3)
        if off:
            a(f'v_add_u32 v{vW+i}, {off}, v{vW+i}')
    a(f's_lshl_b32 s{sMA}, s{sW}, 12')
    a(f's_lshl_b32 s{sMB}, s{sW}, 13')
    a(f's_add_u32 s{sMB}, s{sMB}, 16384')

    def dma(stage):
        slot = stage % R
        out = []
        out.append(('s', f's_mov_b32 s{sK}, {stage*128}'))
        out.append(('s', f's_add_u32 m0, s{sMA}, {slot*SLOT}'))
        out.append(('s', f's_mov_b32 s{sK2}, {stage*64*3072}'))
        for i in range(4):
            out.append(('v', f'buffer_load_dwordx4 v{vX+i}, s[{rX}:{rX+3}], s{sK} offen offset:{1024*i} lds', f'st{stage}'))
        for h in range(2):
            out.append(('s', f's_add_u32 m0, s{sMB}, {slot*SLOT + 4096*h}'))
            out.append(('s', 's_nop 0'))
            for i in range(4):
                out.append(('v', f'buffer_load_dwordx4 v{vW+4*h+i}, s[{rB}:{rB+3}], s{sK2} offen offset:{1024*i} lds', f'st{stage}'))
        return out

    for st in range(R):
        emit(a, dma(st))
    stamp(a, 1)
    srd(a, rWS, sWS, WS_SIZE)
    if OPT['l2pf']:
        a(f's_lshr_b32 s{sT3}, s2, 5')
        a(f's_lshl_b32 s{sT0}, s{sC}, 7')
        a(f's_lshl_b32 s{sT1}, s{sT3}, 4')
        a(f's_add_u32 s{sT0}, s{sT0}, s{sT1}')
        a(f's_lshl_b32 s{sT1}, s{sW}, 2')
        a(f's_add_u32 s{sT0}, s{sT0}, s{sT1}')
        a(f'v_lshrrev_b32 v2, 4, v{vL}')
        a(f'v_add_u32 v2, s{sT0}, v2')
        a(f's_movk_i32 s{sT2}, 1280')
        a(f'v_mul_lo_u32 v2, v2, s{sT2}')
        a(f'v_and_b32 v3, 15, v{vL}')
        a('v_min_u32 v3, 9, v3')
        a('v_lshl_add_u32 v2, v3, 7, v2')
        a.vmem(f'buffer_load_dword v8, v2, s[{rX}:{rX+3}], 0 offen', 'pf')
        a(f's_and_b32 s{sT0}, s{sC}, 3')
        a(f's_mul_i32 s{sT0}, s{sT0}, 112')
        a(f's_mul_i32 s{sT1}, s{sW}, 28')
        a(f's_add_u32 s{sT0}, s{sT0}, s{sT1}')
        a(f's_add_u32 s{sT0}, s{sT0}, 192')
        a(f'v_lshrrev_b32 v2, 2, v{vL}')
        a(f'v_add_u32 v2, s{sT0}, v2')
        a(f's_movk_i32 s{sT2}, 3072')
        a(f'v_mul_lo_u32 v2, v2, s{sT2}')
        a(f'v_and_b32 v3, 3, v{vL}')
        a('v_lshl_add_u32 v2, v3, 7, v2')
        a(f's_lshl_b32 s{sT0}, s{sB}, 9')
        a(f's_add_u32 s{sT1}, s{sT0}, {16 * 3072}')
        a.vmem(f'buffer_load_dword v8, v2, s[{rB}:{rB+3}], s{sT0} offen', 'pf')
        a.vmem(f'buffer_load_dword v8, v2, s[{rB}:{rB+3}], s{sT1} offen', 'pf')

    a(f'v_and_b32 v9, 31, v{vL}')
    a(f'v_lshrrev_b32 v2, 5, v{vL}')
    a(f'v_bfe_u32 v3, v{vL}, 1, 3')
    a('v_xor_b32 v2, v2, v3')
    a('v_lshlrev_b32 v2, 4, v2')
    a('v_lshl_add_u32 v2, v9, 7, v2')
    a(f's_lshl_b32 s{sT0}, s{sWT}, 13')
    a(f'v_add_u32 v2, s{sT0}, v2')
    for kk in range(4):
        for s in range(R):
            if kk:
                a(f'v_xor_b32 v{vRX[s]+kk}, {32*kk}, v2')
            else:
                a(f'v_mov_b32 v{vRX[s]+kk}, v2')
            if s:
                a(f'v_add_u32 v{vRX[s]+kk}, {SLOT*s}, v{vRX[s]+kk}')
    a(f'v_lshrrev_b32 v2, 5, v{vL}')
    a('v_lshlrev_b32 v2, 3, v2')
    a(f'v_bfe_u32 v3, v{vL}, 2, 2')
    a('v_add_u32 v2, v2, v3')
    a('v_lshlrev_b32 v2, 9, v2')
    a(f'v_bfe_u32 v4, v{vL}, 4, 1')
    a('v_lshl_add_u32 v2, v4, 5, v2')
    a(f'v_and_b32 v4, 3, v{vL}')
    a('v_lshl_add_u32 v2, v4, 3, v2')
    a('v_lshl_add_u32 v2, v3, 6, v2')
    a(f's_lshl_b32 s{sT0}, s{sWC}, 8')
    a(f's_add_u32 s{sT0}, s{sT0}, 16384')
    a(f'v_add_u32 v2, s{sT0}, v2')
    for mf in range(4):
        for s in range(R):
            if mf:
                a(f'v_xor_b32 v{vRW[s]+mf}, {64*mf}, v2')
            else:
                a(f'v_mov_b32 v{vRW[s]+mf}, v2')
            if s:
                a(f'v_add_u32 v{vRW[s]+mf}, {SLOT*s}, v{vRW[s]+mf}')
    a(f's_lshl_b32 s{sFLAG}, s{sC}, 4')
    a(f's_add_u32 s{sFLAG}, s{sFLAG}, s{sB}')
    a(f's_add_u32 s{sFLAG}, s{sFLAG}, 10')
    a(f's_lshl_b32 s{sFLAG}, s{sFLAG}, 7')
    a(f's_add_u32 s{sFLAG}, s{sFLAG}, {WS_FLAG}')

    def reads(stage):
        slot = stage % R
        rs = stage & 1
        out = []
        for kk in range(4):
            for nt in range(2):
                out.append(f'ds_read_b128 {areg(fX(rs, nt, kk), 4)}, v{vRX[slot]+kk} offset:{4096*nt}')
            for mf in range(4):
                for n in range(2):
                    out.append(f'ds_read_b64_tr_b16 {areg(fW(rs, mf, kk) + 2*n, 2)}, v{vRW[slot]+mf} offset:{8192*kk + 2048*n}')
        return out

    def mf_(rs, stage, kk, mf, nt):
        c = '0' if (stage == 0 and kk == 0) else vreg(acc(mf, nt), 16)
        return f'v_mfma_f32_32x32x16_bf16 {vreg(acc(mf, nt), 16)}, {areg(fW(rs, mf, kk), 4)}, {areg(fX(rs, nt, kk), 4)}, {c}'

    a.wait_vm('st0')
    a('s_barrier')
    stamp(a, 2)
    emit(a, reads(0))
    for s in range(NST - 1):
        a.comment(f'FFN stage {s}')
        a('s_waitcnt lgkmcnt(0)')
        rs = s & 1
        mm = [mf_(rs, s, kk, mf, nt) for kk in range(4) for mf in range(4) for nt in range(2)]
        a(mm[0])
        a(mm[1])
        mm = mm[2:]
        a.wait_vm(f'st{s+1}')
        a('s_barrier')
        stage_stamp(a, s)
        slots = {}
        rd = reads(s + 1)
        spread([rd[2*i:2*i+2] for i in range(20)], range(20), slots)
        if s + R < NST:
            spread(vm_groups(dma(s + R)), OPT['ffn_dma_pos'], slots)
        if s == 7:
            spread([nonce_load(a, NON)], [4], slots)
        emit(a, sched(mm, slots))
    s = NST - 1
    rs = s & 1
    a('s_waitcnt lgkmcnt(0)')
    stamp(a, 3)
    a(f'v_bfe_u32 v2, v{vL}, 4, 1')
    a('v_lshlrev_b32 v2, 10, v2')
    a(f'v_lshrrev_b32 v3, 5, v{vL}')
    a('v_lshl_add_u32 v2, v3, 8, v2')
    a(f'v_and_b32 v3, 15, v{vL}')
    a('v_lshl_add_u32 v2, v3, 4, v2')
    a(f's_lshl_b32 s{sT0}, s{sC}, 1')
    a(f's_add_u32 s{sT0}, s{sT0}, s{sWT}')
    a(f's_mul_i32 s{sT0}, s{sT0}, 88')
    a(f's_lshl_b32 s{sT1}, s{sB}, 3')
    a(f's_add_u32 s{sT0}, s{sT0}, s{sT1}')
    a(f's_lshl_b32 s{sT1}, s{sWC}, 2')
    a(f's_add_u32 s{sT0}, s{sT0}, s{sT1}')
    a(f's_add_u32 s{sT0}, s{sT0}, 40')
    a(f's_lshl_b32 s{sT0}, s{sT0}, 12')
    for mf in range(1, 4):
        a(f's_add_u32 s{sT0+mf}, s{sT0}, {4096*mf}')
    tiles = [(mf, nt) for mf in range(4) for nt in range(2)]

    def epi(idx):
        mf, nt = tiles[idx]
        base = PK + 8 * (idx & 3)
        out = []
        for P_ in range(2):
            for d in range(4):
                r = acc(mf, nt) + 8 * P_ + 2 * d
                out.append(f'v_cvt_pk_bf16_f32 v{base+4*P_+d}, v{r}, v{r+1}')
            for d in range(4):
                out.append(f'v_pk_max_i16 v{base+4*P_+d}, v{base+4*P_+d}, 0')
            out.append(('v', f'buffer_store_dwordx4 {vreg(base+4*P_, 4)}, v2, s[{rWS}:{rWS+3}], s{sT0+mf} offen offset:{2048*nt + 512*P_}{SC}', 'h1'))
        return out

    for idx, (mf, nt) in enumerate(tiles):
        mm = [mf_(rs, s, kk, mf, nt) for kk in range(4)]
        if idx >= 2:
            e = epi(idx - 2)
            a(mm[0])
            if idx == 2:
                a('s_nop 7')
            emit(a, e[:5])
            a(mm[1])
            emit(a, e[5:10])
            a(mm[2])
            emit(a, e[10:14])
            a(mm[3])
            emit(a, e[14:])
        else:
            emit(a, mm)
    emit(a, epi(len(tiles) - 2))
    emit(a, epi(len(tiles) - 1))
    stamp(a, 4)
    a(f's_cmp_lg_u32 s{sW}, 0')
    a('s_cbranch_scc1 L_ffn_no_nonce')
    nonce_wait(a, NON, 'ffn')
    a.label('L_ffn_no_nonce')
    signal_done(a, 'ffn')


def gen_phase2(a):
    D = OPT['K2D']
    vL = 1
    ACC = 128
    PSZ = 64 * 336
    XS, DS, GG = 16, 26, 36
    SK = 44
    OA, RA, GA = 64, 70, 76
    DV[:] = [127, 126]

    def acc(tb, nt):
        return ACC + 4 * (5 * tb + nt)

    def fH(d, tb):
        return 36 * d + 4 * tb

    def fWt(d, nt):
        return 36 * d + 16 + 4 * nt

    a.label('L_phase2')
    stamp(a, 8)
    a(f's_and_b32 s{sT0}, s2, 3')
    a(f's_lshl_b32 s{sT0}, s{sT0}, 3')
    a(f's_bfe_u32 s{sT1}, s2, 0x30003')
    a(f's_add_u32 s{sC}, s{sT0}, s{sT1}')
    a(f's_bfe_u32 s{sT0}, s2, 0x10002')
    a(f's_lshl_b32 s{sT0}, s{sT0}, 2')
    a(f's_lshr_b32 s{sT1}, s2, 6')
    a(f's_add_u32 s{sB}, s{sT0}, s{sT1}')
    srd(a, rX, sX, X_BYTES)
    srd(a, rB, sDSK, 1280)
    for i in range(5):
        a(f'v_add_u32 v4, {64*i}, v{vL}')
        a('v_mul_u32_u24 v5, 0xccd, v4')
        a('v_lshrrev_b32 v5, 16, v5')
        a('v_mul_u32_u24 v6, 20, v5')
        a('v_sub_u32 v6, v4, v6')
        a(f's_lshl_b32 s{sT2}, s{sW}, 4')
        a(f'v_add_u32 v5, s{sT2}, v5')
        a('v_mul_u32_u24 v7, 336, v5')
        a(f'v_lshl_add_u32 v{RA+i}, v6, 4, v7')
        a(f's_lshl_b32 s{sT2}, s{sC}, 6')
        a(f'v_add_u32 v5, s{sT2}, v5')
        a(f's_mul_i32 s{sT3}, s{sB}, 80')
        a('v_lshlrev_b32 v6, 2, v6')
        a(f'v_add_u32 v6, s{sT3}, v6')
        a('v_mul_u32_u24 v7, 640, v5')
        a('v_add_u32 v7, v7, v6')
        a(f'v_lshlrev_b32 v{OA+i}, 2, v7')
        a('v_lshlrev_b32 v7, 1, v7')
        a.vmem(f'buffer_load_dwordx2 {vreg(XS+2*i, 2)}, v7, s[{rX}:{rX+3}], 0 offen', 'epi')
        a('v_lshlrev_b32 v6, 1, v6')
        a.vmem(f'buffer_load_dwordx2 {vreg(DS+2*i, 2)}, v6, s[{rB}:{rB+3}], 0 offen', 'epi')
        a('v_lshlrev_b32 v5, 2, v5')
        a(f'v_add_u32 v{GA+i}, {WS_G}, v5')
    a(f's_mul_i32 s{sT0}, s{sW}, 20')
    a(f's_cmp_eq_u32 s{sW}, 3')
    a(f's_cselect_b32 s{sT1}, 4, 0')
    a(f's_add_u32 s{sT0}, s{sT0}, s{sT1}')
    a(f's_cmp_ge_u32 s{sW}, 2')
    a(f's_cselect_b32 s{sT1}, 24, 20')
    a(f's_mul_i32 s{sT2}, s{sC}, 88')
    a(f's_add_u32 s{sT2}, s{sT2}, s{sT0}')
    a(f's_lshl_b32 s{sT2}, s{sT2}, 12')
    a(f's_add_u32 s{rT0}, s{sWS}, s{sT2}')
    a(f's_addc_u32 s{rT0+1}, s{sWS+1}, 0')
    a(f's_lshl_b32 s{rT0+2}, s{sT1}, 12')
    a(f's_mov_b32 s{rT0+3}, 0x20000')
    a(f's_mul_i32 s{sT2}, s{sB}, 88')
    a(f's_add_u32 s{sT2}, s{sT2}, s{sT0}')
    a(f's_mul_i32 s{sT2}, s{sT2}, 5120')
    a(f's_add_u32 s{sT2}, s{sT2}, {WS_WT}')
    a(f's_add_u32 s{rT1}, s{sWS}, s{sT2}')
    a(f's_addc_u32 s{rT1+1}, s{sWS+1}, 0')
    a(f's_mul_i32 s{rT1+2}, s{sT1}, 5120')
    a(f's_mov_b32 s{rT1+3}, 0x20000')
    a(f'v_lshlrev_b32 v2, 4, v{vL}')
    a('v_add_u32 v3, 4096, v2')
    for r in range(80):
        a(f'v_mov_b32 v{ACC+r}, 0')
    a(f's_mov_b32 s{sHI}, 0xffff0000')
    a.wait_vm('epi')
    for i in range(5):
        for h in range(2):
            x, dd, o = XS + 2*i + h, DS + 2*i + h, SK + 4*i + 2*h
            a(f'v_lshlrev_b32 v4, 16, v{x}')
            a(f'v_and_b32 v5, s{sHI}, v{x}')
            a(f'v_lshlrev_b32 v6, 16, v{dd}')
            a(f'v_and_b32 v7, s{sHI}, v{dd}')
            a('v_mul_f32 v4, v4, v6')
            a('v_mul_f32 v5, v5, v7')
            a('v_cvt_pk_bf16_f32 v4, v4, v5')
            a(f'v_lshlrev_b32 v{o}, 16, v4')
            a(f'v_and_b32 v{o+1}, s{sHI}, v4')

    a(f's_cmp_lg_u32 s{sW}, 0')
    a('s_cbranch_scc1 L_p2_go')
    a(f'v_subrev_u32 v4, 16, v{vL}')
    a('v_mul_u32_u24 v5, 0x199a, v4')
    a('v_lshrrev_b32 v5, 16, v5')
    a('v_mul_u32_u24 v6, 10, v5')
    a('v_sub_u32 v6, v4, v6')
    a(f's_lshr_b32 s{sT0}, s{sB}, 1')
    a(f's_lshl_b32 s{sT0}, s{sT0}, 2')
    a(f'v_add_u32 v5, s{sT0}, v5')
    a('v_lshl_add_u32 v5, v5, 4, v6')
    a(f's_lshr_b32 s{sT0}, s{sC}, 1')
    a(f's_lshl_b32 s{sT0}, s{sT0}, 4')
    a(f'v_add_u32 v6, s{sT0}, v{vL}')
    a(f'v_cmp_gt_u32 vcc, 16, v{vL}')
    a('s_nop 1')
    a('v_cndmask_b32 v5, v5, v6, vcc')
    a('v_lshlrev_b32 v5, 7, v5')
    a(f'v_add_u32 v5, {WS_FLAG}, v5')
    a('s_mov_b32 exec_lo, -1')
    a('s_mov_b32 exec_hi, 0xffffff')
    a(f's_mov_b32 s{sT2}, 0')
    a.label('L_p2_poll')
    a(f'buffer_load_dword v4, v5, s[{rWS}:{rWS+3}], 0 offen sc0 sc1')
    a('s_waitcnt vmcnt(0)')
    a(f'v_cmp_ne_u32 vcc, s{sNONCE}, v4')
    a('s_nop 1')
    a('s_cmp_eq_u64 vcc, 0')
    a('s_cbranch_scc1 L_p2_poll_done')
    a(f's_add_u32 s{sT2}, s{sT2}, 1')
    a(f's_cmp_lt_u32 s{sT2}, 0x40000')
    a('s_cbranch_scc0 L_p2_poll_done')
    a('s_sleep 1')
    a('s_branch L_p2_poll')
    a.label('L_p2_poll_done')
    a('s_mov_b64 exec, -1')
    a.label('L_p2_go')
    a('s_barrier')
    stamp(a, 9)

    def loads(d):
        out = []
        for tb in range(4):
            out.append(f'buffer_load_dwordx4 {areg(fH(d, tb), 4)}, v2, s[{rT0}:{rT0+3}], s{sK} offen offset:{1024*tb}{SC}')
        for nt in range(4):
            out.append(f'buffer_load_dwordx4 {areg(fWt(d, nt), 4)}, v2, s[{rT1}:{rT1+3}], s{sK2} offen offset:{1024*nt}{SC}')
        out.append(f'buffer_load_dwordx4 {areg(fWt(d, 4), 4)}, v3, s[{rT1}:{rT1+3}], s{sK2} offen{SC}')
        return out

    a(f's_mov_b32 s{sK}, 0')
    a(f's_mov_b32 s{sK2}, 0')
    for d in range(D):
        for ld in loads(d):
            a(ld)
        if d == 0:
            for i in range(5):
                a(f'buffer_load_dword v{GG+i}, v{GA+i}, s[{rWS}:{rWS+3}], 0 offen{SC}')
        a(f's_add_u32 s{sK}, s{sK}, 4096')
        a(f's_add_u32 s{sK2}, s{sK2}, 5120')

    def step(d, with_loads, wait):
        a(f's_waitcnt vmcnt({wait})')
        ld = loads(d) if with_loads else None
        for tb in range(4):
            for nt in range(5):
                a(f'v_mfma_f32_16x16x32_bf16 {vreg(acc(tb, nt), 4)}, {areg(fWt(d, nt), 4)}, {areg(fH(d, tb), 4)}, {vreg(acc(tb, nt), 4)}')
                if tb == 3 and ld:
                    a(ld[4 + nt])
            if ld:
                a(ld[tb])
        if ld:
            a(f's_add_u32 s{sK}, s{sK}, 4096')
            a(f's_add_u32 s{sK2}, s{sK2}, 5120')
    assert 20 % D == 0 and 24 % D == 0
    a(f's_cmp_ge_u32 s{sW}, 2')
    a(f's_cselect_b32 s{sT5}, {24 // D - 1}, {20 // D - 1}')
    a.label('L_k2_loop')
    for d in range(D):
        step(d, True, 9 * (D - 1))
    a(f's_sub_u32 s{sT5}, s{sT5}, 1')
    a(f's_cmp_lg_u32 s{sT5}, 0')
    a('s_cbranch_scc1 L_k2_loop')
    for d in range(D):
        step(d, False, 9 * (D - 1 - d))
    stamp(a, 10)
    a(f'v_and_b32 v4, 15, v{vL}')
    a('v_mul_u32_u24 v4, 336, v4')
    a(f'v_lshrrev_b32 v5, 4, v{vL}')
    a('v_lshl_add_u32 v4, v5, 4, v4')
    a(f's_mul_i32 s{sT0}, s{sW}, {PSZ}')
    a(f'v_add_u32 v4, s{sT0}, v4')
    a('s_nop 4')
    for tb in range(4):
        for nt in range(5):
            a(f'ds_write_b128 v4, {vreg(acc(tb, nt), 4)} offset:{5376*tb + 64*nt}')
    a('s_waitcnt lgkmcnt(0)')
    a('s_barrier')
    srd(a, rT0, sOUT, OUT_BYTES)
    RD = 128

    def rd(i):
        for p in range(4):
            a(f'ds_read_b128 {vreg(RD + 16*i + 4*p, 4)}, v{RA+i} offset:{PSZ*p}')
    rd(0)
    rd(1)
    for i in range(5):
        b = RD + 16 * i
        if i + 2 < 5:
            rd(i + 2)
        a(f's_waitcnt lgkmcnt({4 * min(2, 4 - i)})')
        g = GG + i
        a(f'v_pk_add_f32 {pair(b)}, {pair(b)}, {pair(b+4)}')
        a(f'v_pk_add_f32 {pair(b+2)}, {pair(b+2)}, {pair(b+6)}')
        a(f'v_pk_add_f32 {pair(b+8)}, {pair(b+8)}, {pair(b+12)}')
        a(f'v_pk_add_f32 {pair(b+10)}, {pair(b+10)}, {pair(b+14)}')
        a(f'v_sub_f32 v4, 1.0, v{g}')
        a('v_cvt_pk_bf16_f32 v4, v4, v4')
        a('v_lshlrev_b32 v4, 16, v4')
        for h in range(2):
            bb = b + 8 + 2 * h
            a(f'v_cvt_pk_bf16_f32 v5, v{bb}, v{bb+1}')
            a('v_lshlrev_b32 v6, 16, v5')
            a(f'v_and_b32 v7, s{sHI}, v5')
            a('v_mul_f32 v6, v4, v6')
            a('v_mul_f32 v7, v4, v7')
            a('v_cvt_pk_bf16_f32 v5, v6, v7')
            a(f'v_lshlrev_b32 v{bb}, 16, v5')
            a(f'v_and_b32 v{bb+1}, s{sHI}, v5')
        for h in range(2):
            a(f'v_pk_add_f32 {pair(b+2*h)}, {pair(b+2*h)}, {pair(SK+4*i+2*h)}')
        for e in range(4):
            a(f'v_fma_f32 v{b+e}, v{g}, v{b+e}, v{b+8+e}')
        a(f'buffer_store_dwordx4 {vreg(b, 4)}, v{OA+i}, s[{rT0}:{rT0+3}], 0 offen' + ['', ' sc1', ' nt', ' sc0 sc1'][OPT['out_sc']])
    stamp(a, 11)
    stamps_out(a)
    if OPT['probe'] == 1:
        a.label('L_probe')
        a('s_memrealtime s[98:99]')
        a('s_waitcnt lgkmcnt(0)')
        a('s_sub_u32 s98, s98, s73')
        a('s_cmp_lt_u32 s98, 6000')
        a('s_cbranch_scc1 L_probe')
    if OPT['probe'] >= 10:
        a('s_sub_u32 s100, s72, s73')
        a('s_add_u32 s100, s100, 6000')
        a.label('L_probe')
        a('s_memrealtime s[98:99]')
        a('s_waitcnt lgkmcnt(0)')
        a('s_sub_u32 s98, s98, s73')
        a('s_cmp_lt_u32 s98, s100')
        a('s_cbranch_scc1 L_probe')
    if OPT['probe'] == 2:
        a('s_memtime s[100:101]')
        a('s_waitcnt lgkmcnt(0)')
        a('s_sub_u32 s100, s100, s72')
        a('s_mul_hi_u32 s100, s100, 42949673')
        a('s_add_u32 s100, s100, 6000')
        a.label('L_probe')
        a('s_memrealtime s[98:99]')
        a('s_waitcnt lgkmcnt(0)')
        a('s_sub_u32 s98, s98, s73')
        a('s_cmp_lt_u32 s98, s100')
        a('s_cbranch_scc1 L_probe')


def gen_kernel(a):
    kn = NAME + '_kernel'
    a.label(kn)
    DV[:] = [127, 126]
    a('s_cmp_ge_u32 s2, 256')
    a('s_cbranch_scc1 L_exit')
    a('s_load_dwordx16 s[4:19], s[0:1], 0')
    a('s_load_dwordx16 s[20:35], s[0:1], 64')
    if OPT['probe']:
        a('s_memrealtime s[98:99]')
        a('s_memtime s[100:101]')
        a('s_waitcnt lgkmcnt(0)')
        a('s_mov_b32 s73, s98')
        a('s_mov_b32 s72, s100' if OPT['probe'] < 10 else 's_mov_b32 s72, s98')
    if OPT['diag']:
        a('v_mov_b32 v127, 0')
        a('v_mov_b32 v126, 0')
    stamp(a, 0)
    a('v_and_b32 v1, 63, v0')
    a('v_lshrrev_b32 v2, 6, v0')
    a('s_nop 0')
    a(f'v_readfirstlane_b32 s{sW}, v2')
    a(f's_and_b32 s{sT0}, s2, 3')
    a(f's_lshl_b32 s{sT0}, s{sT0}, 2')
    a(f's_bfe_u32 s{sT1}, s2, 0x20003')
    a(f's_add_u32 s{sC}, s{sT0}, s{sT1}')
    a(f's_lshr_b32 s{sT1}, s2, 5')
    a(f's_bfe_u32 s{sT2}, s2, 0x10002')
    a('s_waitcnt lgkmcnt(0)')
    a(f's_lshr_b32 s{sT3}, s2, 3')
    a(f's_or_b32 s{sT3}, s{sT3}, s{sW}')
    a(f's_cmp_lg_u32 s{sT3}, 0')
    a('s_cbranch_scc1 L_no_offer')
    a(f's_memrealtime s[{sT3}:{sT4}]')
    a('s_waitcnt lgkmcnt(0)')
    a(f's_or_b32 s{sT3}, s{sT3}, 1')
    a(f'v_mov_b32 v4, s{sT3}')
    a('v_mov_b32 v5, 0')
    a('v_mov_b32 v6, 0')
    a('s_mov_b64 exec, 1')
    a(f'global_atomic_cmpswap v6, v[4:5], s[{sDBG}:{sDBG+1}] sc1')
    a('s_mov_b64 exec, -1')
    a.label('L_no_offer')
    a(f's_cmp_ge_u32 s{sT1}, 5')
    a('s_cbranch_scc1 L_ffn')
    a(f's_mul_i32 s{sT2}, s{sT2}, 5')
    a(f's_add_u32 s{sB}, s{sT2}, s{sT1}')
    sub = Asm()
    gen_ssm(sub)
    a.lines += sub.lines
    a.label('L_ffn')
    a(f's_mul_i32 s{sT2}, s{sT2}, 3')
    a(f's_add_u32 s{sB}, s{sT2}, s{sT1}')
    a(f's_sub_u32 s{sB}, s{sB}, 5')
    sub = Asm()
    gen_ffn(sub)
    a.lines += sub.lines
    sub = Asm()
    gen_phase2(sub)
    a.lines += sub.lines
    a.label('L_exit')
    a('s_endpgm')


HEADER = open('cdna_kernels/' + NAME + '.s.ref').read().split('; Override launch')[0]


def build():
    k = Asm()
    gen_kernel(k)
    probs = check_hazards(k.lines, 'k')
    kn = NAME + '_kernel'
    out = HEADER
    out += '; @launch grid=(256,1,1) block=(256,1,1) lds=163840\n'
    out += '.amdgcn_target "amdgcn-amd-amdhsa--gfx950"\n.text\n'
    out += f'.globl {kn}\n.p2align 8\n.type {kn},@function\n' + k.text()
    out += f'''.section .rodata,"a"
.p2align 6
.amdhsa_kernel {kn}
  .amdhsa_next_free_vgpr 512
  .amdhsa_next_free_sgpr 102
  .amdhsa_accum_offset 256
  .amdhsa_group_segment_fixed_size 0
  .amdhsa_kernarg_size 128
  .amdhsa_user_sgpr_count 2
  .amdhsa_user_sgpr_kernarg_segment_ptr 1
  .amdhsa_system_sgpr_workgroup_id_x 1
  .amdhsa_float_denorm_mode_32 3
.end_amdhsa_kernel
'''
    return out, probs


if __name__ == '__main__':
    dst = sys.argv[1] if len(sys.argv) > 1 else 'cdna_kernels/' + NAME + '.s'
    for kv in sys.argv[2:]:
        k_, v = kv.split('=')
        OPT[k_] = int(v)
    text, probs = build()
    for p in probs:
        print('HAZARD', p)
    open(dst, 'w').write(text)
    print('wrote', dst, len(text), 'bytes', len(probs), 'hazards')
```
